```python
import torch

def _softmax(x, axis=-1):
    return torch.softmax(x, dim=axis)
def _gelu(x):
    return torch.nn.functional.gelu(x, approximate="tanh")
def _silu(x):
    return torch.nn.functional.silu(x)
def _sigmoid(x):
    return torch.sigmoid(x)
def _layernorm(x, axis=-1, eps=1e-5):
    m = x.mean(dim=axis, keepdim=True)
    v = x.var(dim=axis, keepdim=True, unbiased=False)
    return (x - m) / torch.sqrt(v + eps)
def _scatter_add(tgt, idx, src, axis=0):
    return tgt.clone().index_add_(axis, idx, src)
def _segment_sum(src, seg, n):
    out = torch.zeros((n,) + src.shape[1:], dtype=src.dtype)
    return out.index_add_(0, seg, src)
def _pad(x, pw):
    flat = tuple(v for pair in reversed(pw) for v in pair)
    return torch.nn.functional.pad(x, flat)

kernel_name = 'gated_mix__sliding_local_dilated__linear_kernel_hedgehog__prompt'

def setup_inputs():

    _w = (lambda a: (lambda t: t.to(torch.bfloat16) if t.is_floating_point() else t)(torch.as_tensor(a)))
    def _A_setup():
        B, S, D = 1, 2048, 448
        return {
            "x": _w((lambda *s: torch.randn(*s, dtype=torch.bfloat16) * 0.05)(B, S, D)),
            "wqkv": _w((lambda *s: torch.randn(*s, dtype=torch.bfloat16) * 0.8)(D, 3 * D)),
            "wo": _w((lambda *s: torch.randn(*s, dtype=torch.bfloat16) * 0.05)(D, D)),
        }
    _A_in = _A_setup()

    def _B_setup():
        B, S, D, H = 1, 2048, 448, 16
        Dh = D // H
        return {
            "x": _w((lambda *s: torch.randn(*s, dtype=torch.bfloat16) * 0.05)(B, S, D)),
            "wqkv": _w((lambda *s: torch.randn(*s, dtype=torch.bfloat16) * 1.6)(D, 3 * D)),
            "w_phi": _w((lambda *s: torch.randn(*s, dtype=torch.bfloat16) * 1.6)(H, Dh, Dh) * (Dh ** -0.5)),
            "wo": _w((lambda *s: torch.randn(*s, dtype=torch.bfloat16) * 0.2)(D, D)),
        }
    _B_in = _B_setup()

    return {
        "A_x": _A_in["x"],
        "A_wqkv": _A_in["wqkv"],
        "A_wo": _A_in["wo"],
        "B_x": _B_in["x"],
        "B_wqkv": _B_in["wqkv"],
        "B_w_phi": _B_in["w_phi"],
        "B_wo": _B_in["wo"],
        "gate_w": _w((lambda *s: torch.randn(*s, dtype=torch.bfloat16) * 0.05)(448) * 16.0),
    }

def reference(A_x, A_wqkv, A_wo, B_x, B_wqkv, B_w_phi, B_wo, gate_w):
    def _A_ref(x, wqkv, wo):
        B, S, D = x.shape
        H = 16; Dh = D // H
        W, dil = 8, 2
        qkv = (lambda x, *d: x.permute(*d))((x @ wqkv).reshape(B, S, 3, H, Dh), 2, 0, 3, 1, 4)
        q, k, v = qkv[0], qkv[1], qkv[2]
        scale = Dh ** -0.5
        pos = torch.arange(S)
        off = torch.arange(W) * dil
        idx = pos[:, None] - off[None, :]
        mask = idx >= 0
        idx_c = torch.where(mask, idx, 0).reshape(-1)
        kg = k[:, :, idx_c, :].reshape(B, H, S, W, Dh)
        vg = v[:, :, idx_c, :].reshape(B, H, S, W, Dh)
        logits = torch.einsum("bhsd,bhswd->bhsw", q, kg) * scale
        logits = torch.where(mask[None, None, :, :], logits, -1e9)
        attn = _softmax(logits, axis=-1)
        o = torch.einsum("bhsw,bhswd->bhsd", attn, vg)
        return (lambda x, *d: x.permute(*d))(o, 0, 2, 1, 3).reshape(B, S, D) @ wo

    def _B_ref(x, wqkv, w_phi, wo):
        B, S, D = x.shape
        H = 16; Dh = D // H
        qkv = (lambda x, *d: x.permute(*d))((x @ wqkv).reshape(B, S, 3, H, Dh), 2, 0, 3, 1, 4)
        q, k, v = qkv[0], qkv[1], qkv[2]
        pq = torch.einsum("bhsd,hdf->bhsf", q, w_phi)
        pk = torch.einsum("bhsd,hdf->bhsf", k, w_phi)
        phi_q = torch.concatenate([_softmax(pq, axis=-1), _softmax(-pq, axis=-1)], axis=-1)
        phi_k = torch.concatenate([_softmax(pk, axis=-1), _softmax(-pk, axis=-1)], axis=-1)
        kv = torch.einsum("bhsf,bhsd->bhfd", phi_k, v)
        z  = torch.einsum("bhsf->bhf", phi_k)
        num = torch.einsum("bhqf,bhfd->bhqd", phi_q, kv)
        den = torch.einsum("bhqf,bhf->bhq", phi_q, z)[..., None] + 1e-6
        o = num / den
        return (lambda x, *d: x.permute(*d))(o, 0, 2, 1, 3).reshape(B, S, D) @ wo

    x = A_x
    g = _sigmoid((x * gate_w).sum(-1, keepdims=True))
    a = _A_ref(x, A_wqkv, A_wo)
    b = _B_ref(x, B_wqkv, B_w_phi, B_wo)
    return g * a + (1 - g) * b
```

```python
import re

REG_RE = re.compile(r'\b([vsa])\[(\d+):(\d+)\]|\b([vsa])(\d+)\b|\b(vcc|exec|m0|scc)(?:_lo|_hi)?\b')

def regs_of(text):
    out = set()
    for m in REG_RE.finditer(text):
        if m.group(1):
            for i in range(int(m.group(2)), int(m.group(3)) + 1):
                out.add(m.group(1) + str(i))
        elif m.group(4):
            out.add(m.group(4) + m.group(5))
        else:
            out.add(m.group(6))
    return out

TRANS = ('v_exp_f32', 'v_log_f32', 'v_rcp_f32', 'v_rsq_f32', 'v_sqrt_f32', 'v_sin_f32', 'v_cos_f32')

class Ins:
    __slots__ = ('text', 'op', 'kind', 'wr', 'rd', 'srcc', 'passes', 'states', 'wide_store')
    def __init__(self, text):
        self.text = text
        t = text.split(';')[0].strip()
        parts = t.split(None, 1)
        self.op = parts[0]
        args = parts[1] if len(parts) > 1 else ''
        ops = [a.strip() for a in args.split(',')]
        op = self.op
        self.wr = set(); self.rd = set(); self.srcc = set(); self.passes = 0; self.states = 1
        self.wide_store = False
        if op.startswith('v_mfma'):
            self.kind = 'mfma'
            self.wr = regs_of(ops[0]); self.rd = regs_of(','.join(ops[1:])); self.srcc = regs_of(ops[3])
            self.passes = 8 if '32x32' in op else 4
        elif op.startswith('v_'):
            self.kind = 'valu'
            if op.startswith('v_permlane') and 'swap' in op:
                self.wr = regs_of(ops[0]) | regs_of(ops[1]); self.rd = set(self.wr)
            elif op.startswith('v_cmpx'):
                self.wr = regs_of(ops[0]) | {'exec'}; self.rd = regs_of(','.join(ops[1:]))
            else:
                self.wr = regs_of(ops[0]); self.rd = regs_of(','.join(ops[1:]))
                if op.startswith('v_fmac') or op.startswith('v_pk_fmac') or op.startswith('v_dot2c') or op.startswith('v_writelane'):
                    self.rd |= self.wr
                if op.startswith('v_cndmask') and len(ops) == 3:
                    self.rd.add('vcc')
                if '_co_' in op:
                    self.wr |= regs_of(ops[1])
        elif op.startswith('ds_'):
            self.kind = 'ds'
            if op.startswith('ds_read') or op.startswith('ds_bpermute') or op.startswith('ds_permute') or op.startswith('ds_swizzle') or '_rtn' in op:
                self.wr = regs_of(ops[0]); self.rd = regs_of(','.join(ops[1:]))
            else:
                self.rd = regs_of(args)
        elif op.startswith('buffer_') or op.startswith('global_'):
            self.kind = 'vmem'
            islds = re.search(r'\blds\b', args) is not None or '_lds_' in op
            if 'load' in op and not islds:
                self.wr = regs_of(ops[0]); self.rd = regs_of(','.join(ops[1:]))
            else:
                self.rd = regs_of(args)
                if islds: self.rd.add('m0')
                if 'atomic' in op and re.search(r'\bsc0\b', args):
                    self.wr = regs_of(ops[0])
                if 'store' in op and ('x3' in op or 'x4' in op):
                    self.wide_store = True
        elif op.startswith('s_'):
            self.kind = 'salu'
            if op in ('s_nop',):
                self.states = int(ops[0], 0) + 1
            elif op.startswith('s_cmp') or op.startswith('s_cbranch') or op in ('s_branch', 's_waitcnt', 's_barrier', 's_endpgm', 's_setprio', 's_sleep'):
                self.rd = regs_of(args) if op.startswith('s_cmp') else set()
            elif op.startswith('s_load') or op.startswith('s_buffer_load') or op.startswith('s_mem') or op.startswith('s_atomic'):
                self.kind = 'smem'
                self.wr = regs_of(ops[0]); self.rd = regs_of(','.join(ops[1:]))
            else:
                self.wr = regs_of(ops[0]); self.rd = regs_of(','.join(ops[1:]))
                if 'saveexec' in op: self.wr.add('exec')
        else:
            raise ValueError('unknown op ' + op)

def need_states(p, c):
    n = 0
    pv = {r for r in p.wr if r[0] in 'va'}
    ps = {r for r in p.wr if r[0] == 's' or r == 'vcc'}
    if p.kind == 'valu':
        if c.kind == 'mfma' and pv & c.rd: n = max(n, 2)
        if c.kind == 'mfma' and 'exec' in p.wr: n = max(n, 4)
        if c.op.startswith('v_permlane') and pv & c.rd: n = max(n, 2)
        if c.op.startswith('v_permlane') and 'exec' in p.wr: n = max(n, 4)
        if c.op.startswith(('v_readlane', 'v_readfirstlane')) and pv & c.rd: n = max(n, 1)
        if c.op.startswith(('v_readlane', 'v_readfirstlane', 'v_writelane')) and 'exec' in p.wr: n = max(n, 4)
        if c.kind == 'valu' and ps & c.rd: n = max(n, 4 if c.op.startswith(('v_readlane', 'v_writelane', 'v_div_fmas')) else 2)
        if c.kind == 'vmem' and ps & c.rd: n = max(n, 5)
        if c.kind in ('salu', 'smem') and ps & c.rd: n = max(n, 1)
        if p.op.startswith(TRANS) and c.kind in ('valu', 'mfma') and not c.op.startswith(TRANS) and pv & (c.rd | c.wr): n = max(n, 1)
        if 'dpp' in c.text or 'row_' in c.text or 'quad_perm' in c.text:
            if pv & c.rd: n = max(n, 2)
            if 'exec' in p.wr: n = max(n, 5)
        if ('op_sel' in p.text or 'sdwa' in p.text) and c.kind == 'valu' and pv & (c.rd | c.wr): n = max(n, 1)
    if p.kind == 'mfma':
        far = {4: 8, 8: 12}[p.passes]
        if c.kind == 'mfma':
            ab = c.rd - c.srcc
            if pv & ab: n = max(n, far)
            if pv & c.srcc:
                if c.srcc == pv and c.passes == p.passes: pass
                else: n = max(n, {4: 6, 8: 10}[p.passes])
            elif pv & c.wr: n = max(n, {4: 6, 8: 10}[p.passes])
        elif c.kind in ('valu', 'ds', 'vmem'):
            if pv & (c.rd | c.wr): n = max(n, far)
            if c.kind == 'valu' and p.srcc & c.wr: n = max(n, {4: 3, 8: 7}[p.passes])
    if p.kind == 'salu' and 'm0' in p.wr and 'm0' in c.rd: n = max(n, 1)
    if p.kind == 'vmem' and p.wide_store:
        dv = {r for r in p.rd if r[0] in 'va'}
        if dv & c.wr: n = max(n, 2)
    return n

class Asm:
    def __init__(self):
        self.lines = []
        self.hist = []
    def raw(self, s):
        self.lines.append(s)
    def label(self, name, pad=True):
        if pad: self.flush()
        self.lines.append(name + ':')
        self.hist = []
    def flush(self, n=12):
        need = 0
        dist = 0
        for p in reversed(self.hist):
            worst = 0
            if p.kind == 'mfma': worst = {4: 8, 8: 12}[p.passes]
            elif p.kind == 'valu': worst = 5 if any(r[0] == 's' or r in ('vcc', 'exec') for r in p.wr) else 2
            elif p.kind == 'salu' and 'm0' in p.wr: worst = 1
            elif p.kind == 'vmem' and p.wide_store: worst = 2
            need = max(need, worst - dist)
            dist += p.states
            if dist > 16: break
        while need > 0:
            k = min(need, 16)
            self._emit(Ins(f's_nop {k-1}'))
            need -= k
    def _emit(self, ins):
        self.lines.append('    ' + ins.text)
        self.hist.append(ins)
        if len(self.hist) > 40: self.hist = self.hist[-40:]
    def __call__(self, text):
        for t in text.strip().split('\n'):
            t = t.strip()
            if not t or t.startswith(';'):
                continue
            ins = Ins(t)
            need = 0
            dist = 0
            for p in reversed(self.hist):
                req = need_states(p, ins)
                need = max(need, req - dist)
                dist += p.states
                if dist > 20: break
            while need > 0:
                k = min(need, 16)
                self._emit(Ins(f's_nop {k-1}'))
                need -= k
            if ins.op.startswith('s_cbranch') or ins.op == 's_branch':
                self.flush()
            self._emit(ins)
    def text(self):
        return '\n'.join(self.lines) + '\n'

def vr(b, n=1):
    return f'v{b}' if n == 1 else f'v[{b}:{b+n-1}]'
def sr(b, n=1):
    return f's{b}' if n == 1 else f's[{b}:{b+n-1}]'
```

```python
import sys, math
from asmlib import *

KN = 'gated_mix__sliding_local_dilated__linear_kernel_hedgehog__prompt_kernel'
WS_OA = 0
WS_OB = 2 << 20
WS_G = 4 << 20
WS_KVP = 5 << 20
WS_PHIQ = 10 << 20
WS_SIZE = 16 << 20

LOG2E = 1.4426950408889634
def f2u(x):
    import struct
    return struct.unpack('<I', struct.pack('<f', x))[0]

SLOT_A = 18432 + 24576
SLOT_B = 16384 + 24576
SLOT = SLOT_A
GOFF = 3 * SLOT
LDS_K1 = GOFF + 1024

a = Asm()
a.raw(f'; @launch kernel=k1_kernel grid=(256,1,1) block=(512,1,1) lds={LDS_K1}')
a.raw(f'; @launch kernel=k2_kernel grid=(128,1,1) block=(256,1,1) lds=0')
a.raw(f'; @launch kernel=k3_kernel grid=(224,1,1) block=(256,1,1) lds={896*128}')
a.raw('.amdgcn_target "amdgcn-amd-amdhsa--gfx950"')
a.raw('.text')

def kernel_begin(name):
    a.raw(f'.globl {name}')
    a.raw('.p2align 8')
    a.raw(f'.type {name},@function')
    a.label(name, pad=False)

def srd(dst, lo, size):
    a(f's_mov_b32 s{dst}, s{lo}')
    a(f's_and_b32 s{dst+1}, s{lo+1}, 0xffff')
    a(f's_mov_b32 s{dst+2}, {size}')
    a(f's_mov_b32 s{dst+3}, 0x00020000')

SX, SW, SWS, SPHI, SGATE = 8, 12, 16, 20, 24
S_RB, S_HP, S_BR, S_WAVE, S_ROT = 32, 33, 34, 35, 48

kernel_begin('k1_kernel')
a('s_cmp_ge_u32 s2, 256')
a('s_cbranch_scc1 K1_END')
a('s_load_dwordx4 s[36:39], s[0:1], 0')
a('s_load_dwordx4 s[40:43], s[0:1], 32')
a('s_load_dwordx2 s[44:45], s[0:1], 56')
a('s_load_dwordx2 s[46:47], s[0:1], 80')
a('v_lshrrev_b32 v1, 6, v0')
a('v_and_b32 v0, 63, v0')
a(f'v_readfirstlane_b32 s{S_WAVE}, v1')
a('s_and_b32 s3, s2, 7')
a('s_lshr_b32 s4, s2, 3')
a('s_and_b32 s4, s4, 15')
a(f's_lshr_b32 s{S_BR}, s2, 7')
a('s_and_b32 s5, s3, 3')
a('s_lshl_b32 s5, s5, 2')
a('s_and_b32 s6, s4, 3')
a(f's_add_u32 s{S_RB}, s5, s6')
a('s_lshr_b32 s5, s3, 2')
a('s_lshl_b32 s5, s5, 2')
a('s_lshr_b32 s6, s4, 2')
a(f's_add_u32 s{S_HP}, s5, s6')
a(f's_mul_i32 s5, s{S_HP}, 3')
a(f's_add_u32 s5, s5, s{S_RB}')
a(f's_mul_i32 s6, s{S_BR}, 5')
a('s_add_u32 s5, s5, s6')
a('s_mul_i32 s6, s5, 37')
a('s_lshr_b32 s6, s6, 8')
a('s_mul_i32 s6, s6, 7')
a(f's_sub_u32 s{S_ROT}, s5, s6')
a('s_waitcnt lgkmcnt(0)')
srd(SX, 36, 2048 * 896)
a(f's_cmp_eq_u32 s{S_BR}, 1')
a('s_cselect_b32 s4, s38, s40')
a('s_cselect_b32 s5, s39, s41')
srd(SW, 4, 448 * 2688)
srd(SWS, 46, WS_SIZE)
srd(SPHI, 42, 16 * 28 * 28 * 2)
srd(SGATE, 44, 896)
a(f's_cmp_ge_u32 s{S_WAVE}, 4')
a('s_cbranch_scc1 K1_LOADER')
a(f's_cmp_eq_u32 s{S_BR}, 1')
a('s_cbranch_scc1 K1_COMP_A')
a('s_branch K1_COMP_B')

def loader(isA):
    XP = 9216 if isA else 8192
    XH = 1024 if isA else 0
    WOFF = 18432 if isA else 16384
    nops = 11 if isA else 10
    a(f's_sub_u32 s50, s{S_WAVE}, 4')
    a('s_lshr_b32 s51, s50, 1')
    a('s_and_b32 s52, s50, 1')
    a('v_lshrrev_b32 v1, 3, v0')
    a('v_and_b32 v2, 7, v0')
    a('v_lshrrev_b32 v3, 1, v1')
    a('v_xor_b32 v4, v2, v3')
    a('v_lshlrev_b32 v4, 4, v4')
    a('v_mul_u32_u24 v8, 1792, v1')
    a('v_xor_b32 v5, 64, v4')
    a('v_add_u32 v4, v4, v8')
    a('v_add_u32 v5, v5, v8')
    a('v_add_u32 v5, 14336, v5')
    a('v_add_u32 v6, 28672, v4')
    a('v_add_u32 v7, 28672, v5')
    a('v_and_b32 v11, 1, v3')
    a('v_lshlrev_b32 v11, 1, v11')
    a('v_xor_b32 v9, v2, v11')
    a('v_xor_b32 v10, 4, v9')
    a('v_min_u32 v9, 6, v9')
    a('v_min_u32 v10, 6, v10')
    a('v_lshlrev_b32 v9, 4, v9')
    a('v_lshlrev_b32 v10, 4, v10')
    a('s_lshl_b32 s53, s50, 4')
    a('v_add_u32 v11, s53, v1')
    a('v_mul_u32_u24 v11, 2688, v11')
    a('v_add_u32 v9, v9, v11')
    a('v_add_u32 v10, v10, v11')
    a('v_add_u32 v10, 21504, v10')
    if isA:
        a('s_lshl_b32 s53, s52, 1')
        a('s_add_u32 s53, s53, 4')
        a('v_add_u32 v12, s53, v3')
        a('v_xor_b32 v12, v2, v12')
        a('v_lshlrev_b32 v12, 4, v12')
        a('v_add_u32 v12, v12, v8')
        a('s_lshl_b32 s53, s52, 2')
        a('s_add_u32 s53, s53, 8')
        a('s_mul_i32 s53, s53, 1792')
        a('v_add_u32 v12, s53, v12')
    a(f's_lshl_b32 s54, s{S_RB}, 7')
    a('s_lshl_b32 s53, s52, 6')
    a('s_add_u32 s54, s54, s53')
    a('s_add_u32 s54, s54, s51')
    a('s_mul_i32 s54, s54, 896')
    if isA:
        a(f's_lshl_b32 s55, s{S_RB}, 7')
        a('s_max_u32 s55, s55, 32')
        a('s_sub_u32 s55, s55, 32')
        a('s_add_u32 s55, s55, s51')
        a('s_mul_i32 s55, s55, 896')
    a(f's_mul_i32 s56, s{S_HP}, 112')
    a(f's_mul_i32 s57, s51, {XP}')
    if isA:
        a('s_lshl_b32 s58, s52, 9')
        a('s_add_u32 s58, s58, s57')
    a('s_lshl_b32 s53, s52, 12')
    a('s_add_u32 s57, s57, s53')
    if XH: a(f's_add_u32 s57, s57, {XH}')
    a('s_lshl_b32 s59, s50, 11')
    a(f's_add_u32 s59, s59, {WOFF}')
    a('v_lshlrev_b32 v13, 4, v0')
    a('v_add_u32 v14, s57, v13')
    a('v_add_u32 v15, s59, v13')
    if isA: a('v_add_u32 v16, s58, v13')
    a(f'v_add_u32 v17, {2*SLOT}, v14')
    a(f'v_add_u32 v18, {2*SLOT}, v15')
    if isA: a(f'v_add_u32 v19, {2*SLOT}, v16')
    if not isA:
        a('s_cmp_lg_u32 s50, 0')
        a('s_cbranch_scc1 LB_NOGATE')
        a(f's_mov_b32 m0, {GOFF}')
        a(f'buffer_load_dwordx4 v13, s[{SGATE}:{SGATE+3}], 0 offen lds')
        a('s_waitcnt vmcnt(0)')
        a.label('LB_NOGATE')
    a(f's_mov_b32 s60, s{S_ROT}')
    LAND = 64
    def issue(c):
        a('s_lshl_b32 s61, s60, 7')
        if isA: a('s_add_u32 s62, s61, s55')
        a('s_add_u32 s61, s61, s54')
        a('s_mul_i32 s63, s60, 172032')
        a('s_add_u32 s63, s63, s56')
        a('s_add_u32 s60, s60, 1')
        a('s_cmp_eq_u32 s60, 7')
        a('s_cselect_b32 s60, 0, s60')
        if c < 3:
            sb = c * SLOT
            a('s_add_u32 s64, s63, 896')
            a('s_add_u32 s65, s63, 1792')
            for n, vo in enumerate((4, 5, 6, 7)):
                a(f's_add_u32 m0, s57, {sb + n*1024}')
                a(f'buffer_load_dwordx4 v{vo}, s[{SX}:{SX+3}], s61 offen lds')
            if isA:
                a(f's_add_u32 m0, s58, {sb}')
                a('s_mov_b32 exec_hi, 0')
                a(f'buffer_load_dwordx4 v12, s[{SX}:{SX+3}], s62 offen lds')
                a('s_mov_b32 exec_hi, -1')
            for b in range(3):
                for h in range(2):
                    a(f's_add_u32 m0, s59, {sb + b*8192 + h*1024}')
                    a(f'buffer_load_dwordx4 v{9+h}, s[{SW}:{SW+3}], s{63+b} offen lds')
        else:
            r = LAND + (c - 3) * nops * 4
            for n, vo in enumerate((4, 5, 6, 7)):
                a(f'buffer_load_dwordx4 {vr(r,4)}, v{vo}, s[{SX}:{SX+3}], s61 offen'); r += 4
            if isA:
                a('s_mov_b32 exec_hi, 0')
                a(f'buffer_load_dwordx4 {vr(r,4)}, v12, s[{SX}:{SX+3}], s62 offen'); r += 4
                a('s_mov_b32 exec_hi, -1')
            for b in range(3):
                for h in range(2):
                    a(f'buffer_load_dwordx4 {vr(r,4)}, v{9+h}, s[{SW}:{SW+3}], s63 offen offset:{b*896}'); r += 4
    def write(c):
        slot = c % 3
        r = LAND + (c - 3) * nops * 4
        ax, aw, ah = (17, 18, 19) if slot == 2 else (14, 15, 16)
        sb = 0 if slot == 2 else slot * SLOT
        for n in range(4):
            a(f'ds_write_b128 v{ax}, {vr(r,4)} offset:{sb + n*1024}'); r += 4
        if isA:
            a('s_mov_b32 exec_hi, 0')
            a(f'ds_write_b128 v{ah}, {vr(r,4)} offset:{sb}'); r += 4
            a('s_mov_b32 exec_hi, -1')
        for b in range(3):
            for h in range(2):
                a(f'ds_write_b128 v{aw}, {vr(r,4)} offset:{sb + b*8192 + h*1024}'); r += 4
    for c in range(5): issue(c)
    a(f's_waitcnt vmcnt({4*nops})'); a('s_barrier')
    issue(5)
    a(f's_waitcnt vmcnt({4*nops})'); a('s_barrier')
    issue(6)
    a(f's_waitcnt vmcnt({4*nops})'); a('s_barrier')
    for c in range(3, 7):
        a(f's_waitcnt vmcnt({(6-c)*nops})')
        write(c)
        a('s_waitcnt lgkmcnt(0)')
        a('s_barrier')
    a('s_barrier')
    a('s_branch K1_END')

a.label('K1_LOADER')
a(f's_cmp_eq_u32 s{S_BR}, 1')
a('s_cbranch_scc0 K1_LOADER_B')
loader(True)
a.label('K1_LOADER_B')
loader(False)

F0, F1 = 16, 60
ACC = 104
def compute_main(isA, tag):
    XP = 9216 if isA else 8192
    XH = 1024 if isA else 0
    WOFF = 18432 if isA else 16384
    a(f's_and_b32 s50, s{S_WAVE}, 1')
    a(f's_lshr_b32 s51, s{S_WAVE}, 1')
    a('v_and_b32 v1, 15, v0')
    a('v_lshrrev_b32 v2, 4, v0')
    a('v_lshrrev_b32 v3, 1, v1')
    a('v_xor_b32 v4, v2, v3')
    a('v_lshlrev_b32 v4, 4, v4')
    a('v_lshl_add_u32 v4, v1, 7, v4')
    a(f's_mul_i32 s52, s51, {XP}')
    a('v_add_u32 v4, s52, v4')
    a('v_xor_b32 v5, 64, v4')
    if isA:
        a('v_or_b32 v3, 8, v1')
        a('v_lshrrev_b32 v6, 1, v3')
        a('v_xor_b32 v6, v2, v6')
        a('v_lshlrev_b32 v6, 4, v6')
        a('v_and_b32 v3, 7, v3')
        a('v_lshl_add_u32 v6, v3, 7, v6')
        a('v_add_u32 v6, s52, v6')
        a('v_xor_b32 v7, 64, v6')
    else:
        a(f's_lshl_b32 s53, s{S_ROT}, 7')
        a(f's_add_u32 s53, s53, {GOFF}')
        a('v_lshlrev_b32 v6, 4, v2')
        a('v_add_u32 v6, s53, v6')
        a(f's_mov_b32 s54, s{S_ROT}')
    a('v_lshrrev_b32 v3, 2, v1')
    a('v_and_b32 v10, 3, v0')
    a('v_lshl_add_u32 v11, v2, 3, v3')
    a('v_lshlrev_b32 v11, 7, v11')
    a('v_lshrrev_b32 v12, 1, v3')
    a('v_lshlrev_b32 v12, 1, v12')
    a('v_and_b32 v13, 1, v2')
    a('v_lshl_add_u32 v12, v13, 2, v12')
    a('s_mul_i32 s53, s50, 56')
    a('v_lshlrev_b32 v13, 3, v10')
    a('v_add_u32 v13, s53, v13')
    for dt in range(2):
        if dt: a('v_add_u32 v13, 32, v13')
        a('v_lshrrev_b32 v14, 4, v13')
        a('v_xor_b32 v14, v14, v12')
        a('v_lshlrev_b32 v14, 4, v14')
        a('v_and_b32 v15, 8, v13')
        a(f'v_add3_u32 v{8+dt}, v11, v14, v15')
        a(f'v_add_u32 v{8+dt}, {WOFF}, v{8+dt}')
    for r in range(ACC, ACC + 112):
        a(f'v_mov_b32 v{r}, 0')
    def reads(F, ks):
        L = []
        nx = 5 if isA else 4
        for t in range(4):
            L.append(f'ds_read_b128 {vr(F+4*t,4)}, v{4+ks} offset:{XH + t*2048}')
        if isA: L.append(f'ds_read_b128 {vr(F+16,4)}, v{6+ks}')
        else: L.append(f'ds_read_b128 {vr(F+16,4)}, v6 offset:{ks*64}')
        for b in range(3):
            for dt in range(2):
                for h2 in range(2):
                    L.append(f'ds_read_b64_tr_b16 {vr(F+20+(b*2+dt)*4+h2*2,2)}, v{8+dt} offset:{b*8192+(32*ks+4*h2)*128}')
        return L
    def mfmas(F):
        L = []
        X = lambda t: vr(F + 4 * t, 4) if t >= 0 else vr(F + 16, 4)
        W = lambda b, dt: vr(F + 20 + (b * 2 + dt) * 4, 4)
        if isA:
            for t in range(4):
                for dt in range(2):
                    c = vr(ACC + (t * 2 + dt) * 4, 4); L.append(f'v_mfma_f32_16x16x32_bf16 {c}, {W(0,dt)}, {X(t)}, {c}')
            for t in range(-1, 4):
                for dt in range(2):
                    c = vr(ACC + 32 + ((t + 1) * 2 + dt) * 4, 4); L.append(f'v_mfma_f32_16x16x32_bf16 {c}, {W(1,dt)}, {X(t)}, {c}')
            for t in range(-1, 4):
                for dt in range(2):
                    c = vr(ACC + 72 + ((t + 1) * 2 + dt) * 4, 4); L.append(f'v_mfma_f32_16x16x32_bf16 {c}, {X(t)}, {W(2,dt)}, {c}')
        else:
            for b in range(2):
                for t in range(4):
                    for dt in range(2):
                        c = vr(ACC + b * 32 + (t * 2 + dt) * 4, 4); L.append(f'v_mfma_f32_16x16x32_bf16 {c}, {W(b,dt)}, {X(t)}, {c}')
            for t in range(4):
                for dt in range(2):
                    c = vr(ACC + 64 + (t * 2 + dt) * 4, 4); L.append(f'v_mfma_f32_16x16x32_bf16 {c}, {X(t)}, {W(2,dt)}, {c}')
            for t in range(4):
                c = vr(ACC + 96 + t * 4, 4); L.append(f'v_mfma_f32_16x16x32_bf16 {c}, {X(-1)}, {X(t)}, {c}')
        return L
    def interleave(M, R):
        for n, m in enumerate(M):
            a(m)
            if n < len(R): a(R[n])
    a('s_barrier')
    for r in reads(F0, 0): a(r)
    a(f's_mov_b32 s58, {SLOT}')
    a(f's_mov_b32 s59, {-2*SLOT & 0xffffffff}')
    a('s_mov_b32 s60, 128')
    a(f's_mov_b32 s61, {-768 & 0xffffffff}')
    a('s_mov_b32 s55, 0')
    a('s_mov_b32 s56, 0')
    a.label(f'K1_LOOP_{tag}')
    a('s_waitcnt lgkmcnt(0)')
    interleave(mfmas(F0), reads(F1, 1))
    a('s_add_u32 s56, s56, 1')
    a('s_cmp_eq_u32 s56, 3')
    a('s_cselect_b32 s57, s59, s58')
    a('s_cselect_b32 s56, 0, s56')
    a('s_waitcnt lgkmcnt(0)')
    for r in ((4, 5, 6, 7, 8, 9) if isA else (4, 5, 8, 9)):
        a(f'v_add_u32 v{r}, s57, v{r}')
    if not isA:
        a('s_add_u32 s54, s54, 1')
        a('s_cmp_eq_u32 s54, 7')
        a('s_cselect_b32 s57, s61, s60')
        a('s_cselect_b32 s54, 0, s54')
        a('v_add_u32 v6, s57, v6')
    a('s_barrier')
    interleave(mfmas(F1), reads(F0, 0))
    a('s_add_u32 s55, s55, 1')
    a('s_cmp_lt_u32 s55, 7')
    a(f's_cbranch_scc1 K1_LOOP_{tag}')
    a('s_waitcnt lgkmcnt(0)')

def xlane4(op, m, tmp):
    m0, m1, m2, m3 = m
    a(f'v_permlane32_swap_b32 v{m0}, v{m1}')
    a(f'v_permlane32_swap_b32 v{m2}, v{m3}')
    a(f'{op} v{m0}, v{m0}, v{m1}')
    a(f'{op} v{m2}, v{m2}, v{m3}')
    a(f'v_permlane16_swap_b32 v{m0}, v{m2}')
    a(f'{op} v{m0}, v{m0}, v{m2}')
    a(f'v_mov_b32 v{m2}, v{m0}')
    a(f'v_permlane16_swap_b32 v{m0}, v{m2}')
    a(f'v_mov_b32 v{m1}, v{m0}')
    a(f'v_mov_b32 v{m3}, v{m2}')
    a(f'v_permlane32_swap_b32 v{m0}, v{m1}')
    a(f'v_permlane32_swap_b32 v{m2}, v{m3}')
    return [m0, m1, m2, m3]

def cvt4(dst, s0, s1):
    a(f'v_cvt_pk_bf16_f32 v{dst}, v{s0}, v{s0+1}')
    a(f'v_cvt_pk_bf16_f32 v{dst+1}, v{s0+2}, v{s0+3}')
    a(f'v_cvt_pk_bf16_f32 v{dst+2}, v{s1}, v{s1+1}')
    a(f'v_cvt_pk_bf16_f32 v{dst+3}, v{s1+2}, v{s1+3}')

a.label('K1_COMP_A')
compute_main(True, 'A')
a('v_cmp_le_u32 s[64:65], 48, v0')
a('v_lshlrev_b32 v3, 2, v2')
for r in range(4):
    a(f'v_add_u32 v4, {r}, v3')
    a('v_add_u32 v5, 9, v1')
    a(f'v_cmp_ge_u32 s[{66+2*r}:{67+2*r}], v4, v5')
    a('v_sub_u32 v5, v1, v4')
    a(f'v_cmp_gt_u32 s[{74+2*r}:{75+2*r}], 8, v5')
a(f's_cmp_eq_u32 s{S_RB}, 0')
for r in range(4):
    a(f's_cselect_b64 s[{82+2*r}:{83+2*r}], 0, s[{66+2*r}:{67+2*r}]')
QP, KP, VP = 16, 32, 52
for t in range(4):
    cvt4(QP + 4 * t, ACC + (t * 2) * 4, ACC + (t * 2 + 1) * 4)
    a(f'v_cndmask_b32_e64 v{QP+4*t+2}, v{QP+4*t+2}, 0, s[64:65]')
    a(f'v_cndmask_b32_e64 v{QP+4*t+3}, v{QP+4*t+3}, 0, s[64:65]')
for t in range(5):
    cvt4(KP + 4 * t, ACC + 32 + (t * 2) * 4, ACC + 32 + (t * 2 + 1) * 4)
for t in range(5):
    for dt in range(2):
        s = ACC + 72 + (t * 2 + dt) * 4
        a(f'v_cvt_pk_bf16_f32 v{VP+dt*10+2*t}, v{s}, v{s+1}')
        a(f'v_cvt_pk_bf16_f32 v{VP+dt*10+2*t+1}, v{s+2}, v{s+3}')
SC = ACC
for t in range(4):
    a(f'v_mfma_f32_16x16x32_bf16 {vr(SC+8*t,4)}, {vr(KP+4*t,4)}, {vr(QP+4*t,4)}, 0')
    a(f'v_mfma_f32_16x16x32_bf16 {vr(SC+8*t+4,4)}, {vr(KP+4*(t+1),4)}, {vr(QP+4*t,4)}, 0')
a('v_mov_b32 v10, 0xff800000')
ONES = 72
for r in range(4): a(f'v_mov_b32 v{ONES+r}, 0x3f803f80')
MX = 76
for t in range(4):
    for r in range(4):
        mp = (82 if t == 0 else 66) + 2 * r
        a(f'v_cndmask_b32_e64 v{SC+8*t+r}, v10, v{SC+8*t+r}, s[{mp}:{mp+1}]')
        a(f'v_cndmask_b32_e64 v{SC+8*t+4+r}, v10, v{SC+8*t+4+r}, s[{74+2*r}:{75+2*r}]')
    s = SC + 8 * t
    a(f'v_max3_f32 v{MX+t}, v{s}, v{s+1}, v{s+2}')
    a(f'v_max3_f32 v{MX+t}, v{MX+t}, v{s+3}, v{s+4}')
    a(f'v_max3_f32 v{MX+t}, v{MX+t}, v{s+5}, v{s+6}')
    a(f'v_max_f32 v{MX+t}, v{MX+t}, v{s+7}')
xlane4('v_max_f32', [MX, MX + 1, MX + 2, MX + 3], None)
a(f's_mov_b32 s90, {f2u(28 ** -0.5 * LOG2E):#x}')
PP = 80
for t in range(4):
    a(f'v_mul_f32 v{MX+t}, s90, v{MX+t}')
    for r in range(8):
        a(f'v_fma_f32 v{SC+8*t+r}, v{SC+8*t+r}, s90, -v{MX+t}')
    for r in range(8):
        a(f'v_exp_f32 v{SC+8*t+r}, v{SC+8*t+r}')
    cvt4(PP + 4 * t, SC + 8 * t, SC + 8 * t + 4)
OO = ACC + 32
for t in range(4):
    for dt in range(2):
        a(f'v_mfma_f32_16x16x32_bf16 {vr(OO+12*t+4*dt,4)}, {vr(VP+dt*10+2*t,4)}, {vr(PP+4*t,4)}, 0')
    a(f'v_mfma_f32_16x16x32_bf16 {vr(OO+12*t+8,4)}, {vr(ONES,4)}, {vr(PP+4*t,4)}, 0')
a(f's_lshl_b32 s52, s{S_RB}, 1')
a('s_add_u32 s52, s52, s51')
a('s_lshl_b32 s52, s52, 6')
a(f's_lshl_b32 s53, s{S_HP}, 1')
a('s_add_u32 s52, s52, s53')
a('s_add_u32 s52, s52, s50')
a('s_lshl_b32 s52, s52, 10')
a('v_lshlrev_b32 v11, 4, v0')
for t in range(4):
    o = OO + 12 * t
    a(f'v_rcp_f32 v{o+8}, v{o+8}')
    for r in range(8):
        a(f'v_mul_f32 v{o+r}, v{o+r}, v{o+8}')
    cvt4(QP + 4 * t, o, o + 4)
    a(f'v_cndmask_b32_e64 v{QP+4*t+2}, v{QP+4*t+2}, 0, s[64:65]')
    a(f'v_cndmask_b32_e64 v{QP+4*t+3}, v{QP+4*t+3}, 0, s[64:65]')
    a(f's_add_u32 s53, s52, {WS_OA + t*16384}')
    a(f'buffer_store_dwordx4 {vr(QP+4*t,4)}, v11, s[{SWS}:{SWS+3}], s53 offen')
a('s_branch K1_END')

a.label('K1_COMP_B')
a(f's_and_b32 s50, s{S_WAVE}, 1')
a(f's_lshl_b32 s52, s{S_HP}, 1')
a('s_add_u32 s52, s52, s50')
a('s_mul_i32 s52, s52, 1568')
a('v_and_b32 v1, 15, v0')
a('v_lshrrev_b32 v2, 4, v0')
a('v_mul_u32_u24 v3, 224, v2')
a('v_lshl_add_u32 v3, v1, 1, v3')
a('v_add_u32 v4, 16, v1')
a('v_min_u32 v4, 27, v4')
a('v_mul_u32_u24 v5, 224, v2')
a('v_lshl_add_u32 v4, v4, 1, v5')
for ft in range(2):
    for j in range(8):
        d = j if j < 4 else 16 + (j - 4)
        a(f'buffer_load_ushort v{216+ft*8+j}, v{3+ft}, s[{SPHI}:{SPHI+3}], s52 offen offset:{d*56}')
compute_main(False, 'B')
a('v_cmp_le_u32 s[64:65], 48, v0')
a('v_cmp_eq_u32 s[66:67], 12, v1')
a('s_waitcnt vmcnt(0)')
WP = 232
for ft in range(2):
    for jj in range(4):
        a(f'v_lshl_or_b32 v{WP+ft*4+jj}, v{216+ft*8+2*jj+1}, 16, v{216+ft*8+2*jj}')
    a(f'v_cndmask_b32_e64 v{WP+ft*4+2}, v{WP+ft*4+2}, 0, s[64:65]')
    a(f'v_cndmask_b32_e64 v{WP+ft*4+3}, v{WP+ft*4+3}, 0, s[64:65]')
a('v_mov_b32 v10, 0xff800000')
a(f's_mov_b32 s90, {f2u(LOG2E):#x}')
ONES = 12
for r in range(4): a(f'v_mov_b32 v{ONES+r}, 0x3f803f80')

def hedgehog(accbase, PK, E, ST, XP_):
    for t in range(4):
        cvt4(XP_ + 4 * t, accbase + t * 8, accbase + t * 8 + 4)
    for t in range(4):
        for ft in range(2):
            a(f'v_mfma_f32_16x16x32_bf16 {vr(PK+8*t+4*ft,4)}, {vr(WP+4*ft,4)}, {vr(XP_+4*t,4)}, 0')
    for t in range(4):
        s = PK + 8 * t
        for op, d in (('max', ST + t), ('min', ST + 4 + t)):
            a(f'v_{op}3_f32 v{d}, v{s}, v{s+1}, v{s+2}')
            a(f'v_{op}3_f32 v{d}, v{d}, v{s+3}, v{s+4}')
            a(f'v_{op}3_f32 v{d}, v{d}, v{s+5}, v{s+6}')
            a(f'v_{op}_f32 v{d}, v{d}, v{s+7}')
    xlane4('v_max_f32', [ST, ST + 1, ST + 2, ST + 3], None)
    xlane4('v_min_f32', [ST + 4, ST + 5, ST + 6, ST + 7], None)
    for t in range(4):
        a(f'v_mul_f32 v{ST+t}, s90, v{ST+t}')
        a(f'v_mul_f32 v{ST+4+t}, s90, v{ST+4+t}')
        a(f'v_cndmask_b32_e64 v{ST+8}, -v{ST+t}, v10, s[64:65]')
        a(f'v_cndmask_b32_e64 v{ST+9}, v{ST+4+t}, v10, s[64:65]')
        for ft in range(2):
            for r in range(4):
                p = PK + 8 * t + 4 * ft + r
                cp = f'-v{ST+t}' if ft == 0 else f'v{ST+8}'
                cm = f'v{ST+4+t}' if ft == 0 else f'v{ST+9}'
                a(f'v_fma_f32 v{E+8*t+4*ft+r}, v{p}, s90, {cp}')
                a(f'v_fma_f32 v{E+32+8*t+4*ft+r}, -v{p}, s90, {cm}')
        for sg in range(2):
            for r in range(8):
                a(f'v_exp_f32 v{E+32*sg+8*t+r}, v{E+32*sg+8*t+r}')

def normalize_pack(E, EP, SUM):
    for sg in range(2):
        for t in range(4):
            cvt4(EP + sg * 16 + 4 * t, E + 32 * sg + 8 * t, E + 32 * sg + 8 * t + 4)
    for sg in range(2):
        for t in range(4):
            a(f'v_mfma_f32_16x16x32_bf16 {vr(SUM+sg*16+4*t,4)}, {vr(ONES,4)}, {vr(EP+sg*16+4*t,4)}, 0')
    for sg in range(2):
        for t in range(4):
            s = SUM + sg * 16 + 4 * t
            a(f'v_rcp_f32 v{s}, v{s}')
            for r in range(8):
                a(f'v_mul_f32 v{E+32*sg+8*t+r}, v{E+32*sg+8*t+r}, v{s}')
            cvt4(EP + sg * 16 + 4 * t, E + 32 * sg + 8 * t, E + 32 * sg + 8 * t + 4)

VB = 216
for u in range(2):
    for dt in range(2):
        d = VB + (u * 2 + dt) * 4
        s0 = ACC + 64 + ((2 * u) * 2 + dt) * 4
        s1 = ACC + 64 + ((2 * u + 1) * 2 + dt) * 4
        cvt4(d, s0, s1)
        if dt == 1:
            for r in range(4):
                a(f'v_cndmask_b32_e64 v{d+r}, v{d+r}, v{ONES}, s[66:67]')
hedgehog(ACC + 32, 32, 136, 240, 16)
EP = 64
normalize_pack(136, EP, 32)
a(f's_mul_i32 s52, s{S_WAVE}, 8704')
a(f's_add_u32 s52, s52, {SLOT}')
a('v_mul_u32_u24 v3, 136, v1')
a('v_lshl_add_u32 v3, v2, 3, v3')
a('v_add_u32 v3, s52, v3')
for sg in range(2):
    for t in range(4):
        for ft in range(2):
            a(f'ds_write_b64 v3, {vr(EP+sg*16+4*t+2*ft,2)} offset:{t*16*136 + sg*64 + ft*32}')
a('v_lshrrev_b32 v4, 2, v1')
a('v_lshl_add_u32 v4, v2, 2, v4')
a('v_mul_u32_u24 v4, 136, v4')
a('v_and_b32 v5, 3, v0')
a('v_lshl_add_u32 v4, v5, 3, v4')
a('v_add_u32 v4, s52, v4')
a('s_waitcnt lgkmcnt(0)')
ET = 136
for Ft in range(4):
    for u in range(2):
        for hh in range(2):
            a(f'ds_read_b64_tr_b16 {vr(ET+(Ft*2+u)*4+2*hh,2)}, v4 offset:{(2*u+hh)*16*136 + Ft*32}')
a('s_waitcnt lgkmcnt(0)')
KV = 168
for Ft in range(4):
    for dt in range(2):
        c = vr(KV + (Ft * 2 + dt) * 4, 4)
        a(f'v_mfma_f32_16x16x32_bf16 {c}, {vr(ET+(Ft*2)*4,4)}, {vr(VB+dt*4,4)}, 0')
for Ft in range(4):
    for dt in range(2):
        c = vr(KV + (Ft * 2 + dt) * 4, 4)
        a(f'v_mfma_f32_16x16x32_bf16 {c}, {vr(ET+(Ft*2+1)*4,4)}, {vr(VB+(2+dt)*4,4)}, {c}')
a(f's_lshl_b32 s52, s{S_HP}, 1')
a('s_add_u32 s52, s52, s50')
a('s_lshl_b32 s53, s52, 5')
a(f's_lshl_b32 s54, s{S_RB}, 1')
a('s_add_u32 s54, s54, s51')
a('s_add_u32 s53, s53, s54')
a('s_lshl_b32 s53, s53, 13')
a(f's_add_u32 s53, s53, {WS_KVP}')
a('v_lshlrev_b32 v11, 4, v0')
for n in range(8):
    if n == 4: a('s_add_u32 s53, s53, 4096')
    a(f'buffer_store_dwordx4 {vr(KV+4*n,4)}, v11, s[{SWS}:{SWS+3}], s53 offen offset:{(n%4)*1024}')
a('s_nop 4')
hedgehog(ACC, 32, 136, 240, 16)
normalize_pack(136, EP, 32)
a('s_lshl_b32 s53, s54, 6')
a('s_add_u32 s53, s53, s52')
a('s_lshl_b32 s53, s53, 11')
a(f's_add_u32 s53, s53, {WS_PHIQ}')
for t in range(4):
    for sg in range(2):
        a(f'buffer_store_dwordx4 {vr(EP+sg*16+4*t,4)}, v11, s[{SWS}:{SWS+3}], s53 offen offset:{sg*1024}')
    a('s_add_u32 s53, s53, 32768')
a('s_cmp_lg_u32 s52, 0')
a('s_cbranch_scc1 K1_END')
a('s_lshl_b32 s53, s54, 10')
a(f's_add_u32 s53, s53, {WS_G}')
a('v_lshlrev_b32 v11, 2, v0')
for t in range(4):
    gsr = ACC + 96 + 4 * t
    a(f'v_mul_f32 v{gsr}, s90, v{gsr}')
    a(f'v_exp_f32 v{gsr}, -v{gsr}')
    a(f'v_add_f32 v{gsr}, 1.0, v{gsr}')
    a(f'v_rcp_f32 v{gsr}, v{gsr}')
    a(f'buffer_store_dword v{gsr}, v11, s[{SWS}:{SWS+3}], s53 offen offset:{t*256}')
a.label('K1_END')
a('s_endpgm')

kernel_begin('k2_kernel')
a('s_cmp_ge_u32 s2, 128')
a('s_cbranch_scc1 K2_END')
a('s_load_dwordx2 s[46:47], s[0:1], 80')
a('v_lshrrev_b32 v1, 6, v0')
a('v_and_b32 v0, 63, v0')
a('v_readfirstlane_b32 s35, v1')
a('s_and_b32 s32, s2, 15')
a('s_lshr_b32 s33, s2, 4')
a('s_and_b32 s50, s35, 1')
a('s_lshr_b32 s51, s35, 1')
a('s_lshl_b32 s52, s33, 1')
a('s_add_u32 s52, s52, s50')
a('s_lshl_b32 s54, s32, 1')
a('s_add_u32 s54, s54, s51')
a('s_waitcnt lgkmcnt(0)')
srd(SWS, 46, WS_SIZE)
a('v_lshlrev_b32 v11, 4, v0')
a('v_cmp_le_u32 s[64:65], 48, v0')
for r in range(32): a(f'v_mov_b32 v{32+r}, 0')
a('s_lshl_b32 s53, s52, 18')
a(f's_add_u32 s53, s53, {WS_KVP}')
a('s_mov_b32 s55, 0')
a.label('K2_LOOP')
a('s_add_u32 s56, s53, 4096')
for n in range(8):
    a(f'buffer_load_dwordx4 {vr(64+4*n,4)}, v11, s[{SWS}:{SWS+3}], s{53 if n < 4 else 56} offen offset:{(n%4)*1024}')
a('s_waitcnt vmcnt(0)')
for r in range(32): a(f'v_add_f32 v{32+r}, v{32+r}, v{64+r}')
a('s_add_u32 s53, s53, 8192')
a('s_add_u32 s55, s55, 1')
a('s_cmp_lt_u32 s55, 32')
a('s_cbranch_scc1 K2_LOOP')
for sg in range(2):
    for dt in range(2):
        cvt4(16 + (sg * 2 + dt) * 4, 32 + ((2 * sg) * 2 + dt) * 4, 32 + ((2 * sg + 1) * 2 + dt) * 4)
a('s_lshl_b32 s53, s54, 6')
a('s_add_u32 s53, s53, s52')
a('s_lshl_b32 s56, s53, 10')
a(f's_add_u32 s56, s56, {WS_OB}')
a('s_lshl_b32 s53, s53, 11')
a(f's_add_u32 s53, s53, {WS_PHIQ}')
a('s_lshl_b32 s57, s54, 10')
a(f's_add_u32 s57, s57, {WS_G}')
a('v_lshlrev_b32 v12, 2, v0')
for t in range(4):
    for sg in range(2):
        a(f'buffer_load_dwordx4 {vr(64+(t*2+sg)*4,4)}, v11, s[{SWS}:{SWS+3}], s53 offen offset:{sg*1024}')
    a('s_add_u32 s53, s53, 32768')
    a(f'buffer_load_dword v{96+t}, v12, s[{SWS}:{SWS+3}], s57 offen offset:{t*256}')
a('s_waitcnt vmcnt(0)')
for t in range(4):
    for dt in range(2):
        c = vr(32 + (t * 2 + dt) * 4, 4)
        a(f'v_mfma_f32_16x16x32_bf16 {c}, {vr(16+dt*4,4)}, {vr(64+(t*2)*4,4)}, 0')
        a(f'v_mfma_f32_16x16x32_bf16 {c}, {vr(16+(2+dt)*4,4)}, {vr(64+(t*2+1)*4,4)}, {c}')
a(f's_mov_b32 s90, {f2u(1e-6):#x}')
for t in range(4):
    o = 32 + t * 8
    a(f'v_mov_b32 v100, v{o+4}')
    a(f'v_mov_b32 v101, v{o+4}')
    a('v_permlane32_swap_b32 v100, v101')
    a('v_mov_b32 v100, v101')
    a('v_permlane16_swap_b32 v101, v100')
    a('v_add_f32 v100, s90, v100')
    a('v_rcp_f32 v100, v100')
    a(f'v_sub_f32 v101, 1.0, v{96+t}')
    a('v_mul_f32 v100, v100, v101')
    for r in range(8): a(f'v_mul_f32 v{o+r}, v{o+r}, v100')
    cvt4(104 + 4 * t, o, o + 4)
    a(f'v_cndmask_b32_e64 v{104+4*t+2}, v{104+4*t+2}, 0, s[64:65]')
    a(f'v_cndmask_b32_e64 v{104+4*t+3}, v{104+4*t+3}, 0, s[64:65]')
    a(f'buffer_store_dwordx4 {vr(104+4*t,4)}, v11, s[{SWS}:{SWS+3}], s56 offen')
    a('s_add_u32 s56, s56, 16384')
a.label('K2_END')
a('s_endpgm')

kernel_begin('k3_kernel')
a('s_cmp_ge_u32 s2, 224')
a('s_cbranch_scc1 K3_END')
a('s_load_dwordx2 s[36:37], s[0:1], 16')
a('s_load_dwordx2 s[38:39], s[0:1], 48')
a('s_load_dwordx2 s[40:41], s[0:1], 64')
a('s_load_dwordx2 s[46:47], s[0:1], 80')
a('v_lshrrev_b32 v1, 6, v0')
a('v_and_b32 v0, 63, v0')
a('v_readfirstlane_b32 s35, v1')
a('s_and_b32 s3, s2, 7')
a('s_lshr_b32 s4, s2, 3')
a('s_mul_i32 s5, s4, 37')
a('s_lshr_b32 s5, s5, 8')
a('s_mul_i32 s6, s5, 7')
a('s_sub_u32 s33, s4, s6')
a('s_lshl_b32 s3, s3, 2')
a('s_add_u32 s32, s3, s5')
a('s_waitcnt lgkmcnt(0)')
srd(8, 36, 448 * 896)
srd(12, 38, 448 * 896)
srd(SWS, 46, WS_SIZE)
srd(20, 40, 2048 * 896)
a('v_lshlrev_b32 v11, 4, v0')
a('s_lshl_b32 s52, s32, 2')
a('s_add_u32 s52, s52, s35')
a('s_lshl_b32 s53, s52, 14')
a('v_lshrrev_b32 v1, 3, v0')
a('v_and_b32 v2, 7, v0')
a('v_lshrrev_b32 v3, 1, v1')
a('v_lshlrev_b32 v3, 1, v3')
a('v_xor_b32 v3, v2, v3')
a('v_lshlrev_b32 v3, 4, v3')
a('v_mul_u32_u24 v4, 896, v1')
a('v_add_u32 v3, v3, v4')
a('s_mul_i32 s54, s35, 100352')
a('s_lshl_b32 s55, s33, 7')
a('s_add_u32 s54, s54, s55')
a('s_mul_i32 s56, s35, 14336')
for br in range(2):
    for n in range(14):
        a(f's_add_u32 m0, s56, {br*57344 + n*1024}')
        a(f's_add_u32 s57, s54, {n*7168}')
        a(f'buffer_load_dwordx4 v3, s[{8+4*br}:{11+4*br}], s57 offen lds')
OF = 64
for br in range(2):
    for h in range(16):
        if h % 4 == 0: a(f's_add_u32 s57, s53, {br*WS_OB + h*1024}')
        a(f'buffer_load_dwordx4 {vr(OF+(br*16+h)*4,4)}, v11, s[{SWS}:{SWS+3}], s57 offen offset:{(h%4)*1024}')
a('s_lshl_b32 s57, s52, 8')
a(f's_add_u32 s57, s57, {WS_G}')
a('v_lshlrev_b32 v12, 2, v0')
a(f'buffer_load_dword v13, v12, s[{SWS}:{SWS+3}], s57 offen')
a('v_and_b32 v1, 15, v0')
a('v_lshrrev_b32 v2, 4, v0')
a('v_lshrrev_b32 v3, 2, v1')
a('v_and_b32 v4, 3, v0')
a('v_lshl_add_u32 v5, v2, 2, v3')
a('v_lshlrev_b32 v5, 7, v5')
a('v_and_b32 v6, 1, v4')
a('v_lshl_add_u32 v5, v6, 3, v5')
a('v_lshrrev_b32 v6, 1, v4')
a('v_lshl_add_u32 v5, v6, 4, v5')
a('v_cmp_eq_u32 s[64:65], 3, v2')
a('v_mov_b32 v7, 2048')
a('v_cndmask_b32_e64 v7, v7, 0, s[64:65]')
a('v_lshrrev_b32 v6, 1, v3')
a('v_lshl_add_u32 v6, v2, 1, v6')
for par in range(2):
    a(f'v_add_u32 v8, {2*par}, v6')
    a('v_and_b32 v8, 3, v8')
    for T in range(4):
        a(f'v_xor_b32 v9, {T}, v8')
        a(f'v_lshl_add_u32 v{16+par*8+T}, v9, 5, v5')
        a(f'v_add_u32 v{16+par*8+4+T}, v{16+par*8+T}, v7')
ACC3 = 192
for r in range(16): a(f'v_mov_b32 v{ACC3+r}, 0')
a('s_waitcnt vmcnt(0)')
a('s_barrier')
WF = [32, 48]
def k3reads(kk, F):
    br, h = kk // 16, kk % 16
    L = []
    for T in range(4):
        for sec in range(2):
            L.append(f'ds_read_b64_tr_b16 {vr(F+4*T+2*sec,2)}, v{16+(h&1)*8+sec*4+T} offset:{h*3584}')
    return L
for r in k3reads(0, WF[0]): a(r)
for kk in range(32):
    a('s_waitcnt lgkmcnt(0)')
    if kk == 15:
        for r in range(16, 32): a(f'v_add_u32 v{r}, 57344, v{r}')
    R = k3reads(kk + 1, WF[(kk + 1) & 1]) if kk < 31 else []
    if kk == 16:
        for r in range(16): a(f'v_mul_f32 v{ACC3+r}, v{ACC3+r}, v13')
    for T in range(4):
        c = vr(ACC3 + 4 * T, 4)
        a(f'v_mfma_f32_16x16x32_bf16 {c}, {vr(WF[kk&1]+4*T,4)}, {vr(OF+4*kk,4)}, {c}')
        for r in R[2 * T:2 * T + 2]: a(r)
a('s_lshr_b32 s54, s32, 1')
a('s_lshl_b32 s54, s54, 7')
a('s_and_b32 s55, s32, 1')
a('s_add_u32 s54, s54, s55')
a('s_lshl_b32 s55, s35, 5')
a('s_add_u32 s54, s54, s55')
a('s_mul_i32 s54, s54, 896')
a('s_lshl_b32 s55, s33, 7')
a('s_add_u32 s54, s54, s55')
a('v_mul_u32_u24 v5, 1792, v1')
a('v_lshl_add_u32 v5, v2, 3, v5')
for T in range(4):
    a(f'v_cvt_pk_bf16_f32 v{32+2*T}, v{ACC3+4*T}, v{ACC3+4*T+1}')
    a(f'v_cvt_pk_bf16_f32 v{33+2*T}, v{ACC3+4*T+2}, v{ACC3+4*T+3}')
    a(f'buffer_store_dwordx2 {vr(32+2*T,2)}, v5, s[20:23], s54 offen offset:{32*T}')
a.label('K3_END')
a('s_endpgm')

a.raw('.section .rodata,"a"')
for name, nv in (('k1_kernel', 256), ('k2_kernel', 128), ('k3_kernel', 208)):
    a.raw('.p2align 6')
    a.raw(f'.amdhsa_kernel {name}')
    a.raw(f'  .amdhsa_next_free_vgpr {nv}')
    a.raw('  .amdhsa_next_free_sgpr 102')
    a.raw(f'  .amdhsa_accum_offset {nv}')
    a.raw('  .amdhsa_group_segment_fixed_size 0')
    a.raw('  .amdhsa_kernarg_size 88')
    a.raw('  .amdhsa_user_sgpr_count 2')
    a.raw('  .amdhsa_user_sgpr_kernarg_segment_ptr 1')
    a.raw('  .amdhsa_system_sgpr_workgroup_id_x 1')
    a.raw('.end_amdhsa_kernel')
sys.stdout.write(a.text())
```

```python
import sys, math, os, struct
from asmlib import *
STAMP = os.environ.get('STAMP') == '1'
SPIN = int(os.environ.get('SPIN', '200000'))

KN = 'gated_mix__sliding_local_dilated__linear_kernel_hedgehog__prompt_kernel'
WS_OA = 0
WS_OB = 2 << 20
WS_G = 4 << 20
WS_KVP = 5 << 20
WS_FL = 6 << 20
WS_ST = 7 << 20
WS_SIZE = 8 << 20
LOG2E = 1.4426950408889634
def f2u(x): return struct.unpack('<I', struct.pack('<f', x))[0]

SLOT_A = 18432 + 24576
SLOT_B = 32768
L_PT = 98304
L_VF = 133120
L_GATE = 149504
L_KVL = 150528
L_RED = 114688
LDS = 158720

a = Asm()
a.raw(f'; @launch grid=(256,1,1) block=(512,1,1) lds={LDS}')
a.raw('.amdgcn_target "amdgcn-amd-amdhsa--gfx950"')
a.raw('.text')
a.raw(f'.globl {KN}')
a.raw('.p2align 8')
a.raw(f'.type {KN},@function')
a.label(KN, pad=False)

SX, SW, SWS, SPHI, SGATE, SDBG, SWOA, SWOB, SOUT = 8, 12, 16, 20, 24, 28, 72, 76, 80
S_RB, S_HP, S_BR, S_WAVE, S_ROT, S_NONCE = 32, 33, 34, 35, 48, 49
S_J, S_PI, S_HH = 50, 51, 52
S_PT, S_NB, S_WORK = 46, 47, 45
M48 = 84

def srd(dst, lo, size):
    a(f's_mov_b32 s{dst}, s{lo}')
    a(f's_and_b32 s{dst+1}, s{lo+1}, 0xffff')
    a(f's_mov_b32 s{dst+2}, {size}')
    a(f's_mov_b32 s{dst+3}, 0x00020000')
def R(s): return f's[{s}:{s+3}]'

nstamp = [0]
def stamp(n):
    if STAMP:
        a('s_memrealtime s[98:99]')
        a('s_waitcnt lgkmcnt(0)')
        a(f'v_writelane_b32 v250, s98, {n}')

a('s_cmp_ge_u32 s2, 256')
a('s_cbranch_scc1 L_EXIT')
if STAMP: a('v_mov_b32 v250, 0')
stamp(0)
a('s_load_dwordx8 s[36:43], s[0:1], 0')
a('s_load_dwordx8 s[56:63], s[0:1], 32')
a('s_load_dwordx4 s[64:67], s[0:1], 64')
a('s_load_dwordx2 s[44:45], s[0:1], 80')
a('v_lshrrev_b32 v1, 6, v0')
a('v_and_b32 v0, 63, v0')
a(f'v_readfirstlane_b32 s{S_WAVE}, v1')
a('s_and_b32 s3, s2, 7')
a('s_lshr_b32 s7, s2, 3')
a('s_and_b32 s4, s7, 15')
a(f's_lshr_b32 s{S_BR}, s2, 7')
a('s_and_b32 s5, s3, 3')
a('s_lshl_b32 s5, s5, 2')
a('s_and_b32 s6, s4, 3')
a(f's_add_u32 s{S_RB}, s5, s6')
a('s_lshr_b32 s5, s3, 2')
a('s_lshl_b32 s5, s5, 2')
a('s_lshr_b32 s6, s4, 2')
a(f's_add_u32 s{S_HP}, s5, s6')
a(f's_mul_i32 s5, s{S_HP}, 3')
a(f's_add_u32 s5, s5, s{S_RB}')
a(f's_mul_i32 s6, s{S_BR}, 5')
a('s_add_u32 s5, s5, s6')
a('s_mul_i32 s6, s5, 37')
a('s_lshr_b32 s6, s6, 8')
a('s_mul_i32 s6, s6, 7')
a(f's_sub_u32 s{S_ROT}, s5, s6')
a('s_xor_b32 s7, s7, 16')
a('s_mul_i32 s5, s7, 37')
a('s_lshr_b32 s5, s5, 8')
a('s_mul_i32 s6, s5, 7')
a(f's_sub_u32 s{S_NB}, s7, s6')
a('s_lshl_b32 s3, s3, 2')
a(f's_add_u32 s{S_PT}, s3, s5')
a('s_mov_b32 s53, s7')
a(f's_and_b32 s{S_J}, s{S_WAVE}, 1')
a(f's_lshr_b32 s{S_PI}, s{S_WAVE}, 1')
a(f's_and_b32 s{S_PI}, s{S_PI}, 1')
a(f's_lshr_b32 s{S_HH}, s{S_WAVE}, 2')
a('s_waitcnt lgkmcnt(0)')
srd(SX, 36, 2048 * 896)
a(f's_cmp_eq_u32 s{S_BR}, 1')
a('s_cselect_b32 s4, s38, s56')
a('s_cselect_b32 s5, s39, s57')
srd(SW, 4, 448 * 2688)
srd(SWS, 44, WS_SIZE)
srd(SPHI, 58, 16 * 28 * 28 * 2)
srd(SGATE, 62, 896)
srd(SDBG, 66, 256)
srd(SWOA, 40, 448 * 896)
srd(SWOB, 60, 448 * 896)
srd(SOUT, 64, 2048 * 896)
a(f's_mov_b32 s{S_WORK}, s53')
a(f'v_cmp_le_u32 s[{M48}:{M48+1}], 48, v0')
a('v_and_b32 v1, 15, v0')
a('v_lshrrev_b32 v2, 4, v0')

a('v_lshrrev_b32 v3, 3, v0')
a('v_and_b32 v4, 7, v0')
a('v_lshrrev_b32 v5, 1, v3')
a('v_xor_b32 v16, v4, v5')
a('v_lshlrev_b32 v16, 4, v16')
a('v_mul_u32_u24 v6, 1792, v3')
a('v_xor_b32 v17, 64, v16')
a('v_add_u32 v16, v16, v6')
a('v_add3_u32 v17, v17, v6, 0')
a('v_add_u32 v17, 14336, v17')
a('v_and_b32 v7, 1, v5')
a('v_lshlrev_b32 v7, 1, v7')
a(f's_lshl_b32 s53, s{S_J}, 2')
a('v_add_u32 v7, s53, v7')
a('v_xor_b32 v18, v4, v7')
a('v_min_u32 v18, 6, v18')
a('v_lshlrev_b32 v18, 4, v18')
a(f's_lshl_b32 s53, s{S_WAVE}, 3')
a('v_add_u32 v7, s53, v3')
a('v_mul_u32_u24 v7, 2688, v7')
a('v_add_u32 v18, v18, v7')
a(f's_and_b32 s54, s{S_WAVE}, 3')
a('s_add_u32 s53, s54, 4')
a('v_xor_b32 v19, s53, v4')
a('v_lshlrev_b32 v19, 4, v19')
a('v_add_u32 v19, v19, v6')
a('s_lshl_b32 s53, s54, 1')
a('s_add_u32 s53, s53, 8')
a('s_mul_i32 s53, s53, 1792')
a('v_add_u32 v19, s53, v19')
a(f's_lshl_b32 s55, s{S_RB}, 7')
a('s_max_u32 s56, s55, 32')
a('s_sub_u32 s56, s56, 32')
a(f's_add_u32 s56, s56, s{S_HH}')
a('s_mul_i32 s56, s56, 896')
a('s_lshl_b32 s53, s54, 5')
a('s_add_u32 s55, s55, s53')
a(f's_add_u32 s55, s55, s{S_HH}')
a('s_mul_i32 s55, s55, 896')
a(f's_mul_i32 s57, s{S_HP}, 112')
a('v_lshrrev_b32 v3, 2, v1')
a('v_and_b32 v10, 3, v0')
a('v_lshl_add_u32 v11, v2, 3, v3')
a('v_lshlrev_b32 v11, 7, v11')
a('v_lshrrev_b32 v12, 1, v3')
a('v_lshlrev_b32 v12, 1, v12')
a('v_and_b32 v13, 1, v2')
a('v_lshl_add_u32 v12, v13, 2, v12')
a(f's_mul_i32 s53, s{S_J}, 56')
a('v_lshlrev_b32 v13, 3, v10')
a('v_add_u32 v13, s53, v13')
for dt in range(2):
    if dt: a('v_add_u32 v13, 32, v13')
    a('v_lshrrev_b32 v14, 4, v13')
    a('v_xor_b32 v14, v14, v12')
    a('v_lshlrev_b32 v14, 4, v14')
    a('v_and_b32 v15, 8, v13')
    a(f'v_add3_u32 v{8+dt}, v11, v14, v15')
a('v_lshrrev_b32 v3, 1, v1')
a('v_xor_b32 v4, v2, v3')
a('v_lshlrev_b32 v4, 4, v4')
a('v_lshl_add_u32 v4, v1, 7, v4')
a(f's_cmp_eq_u32 s{S_BR}, 1')
a('s_cbranch_scc1 L_A')

def dma_groups(halo, wblocks, XDST, HDST, WDST):
    G = []
    g = ['s_lshl_b32 s62, s60, 7']
    if halo: g.append('s_add_u32 s63, s62, s56')
    g += ['s_add_u32 s62, s62, s55', 's_mul_i32 s64, s60, 172032', 's_add_u32 s64, s64, s57', 's_add_u32 s60, s60, 1',
          's_cmp_eq_u32 s60, 7', 's_cselect_b32 s60, 0, s60', f's_add_u32 s65, s{XDST}, s61', f's_add_u32 s94, s{WDST}, s61']
    if halo: g.append(f's_add_u32 s95, s{HDST}, s61')
    g += ['s_mov_b32 m0, s65', f'buffer_load_dwordx4 v16, {R(SX)}, s62 offen lds']
    G.append(g)
    G.append(['s_add_u32 m0, s65, 1024', f'buffer_load_dwordx4 v17, {R(SX)}, s62 offen lds'])
    if halo:
        G.append(['s_mov_b32 m0, s95', 's_mov_b64 exec, 0xffff', f'buffer_load_dwordx4 v19, {R(SX)}, s63 offen lds', 's_mov_b64 exec, -1'])
    for n, b in enumerate(wblocks):
        g = []
        if b: g.append(f's_add_u32 s66, s64, {b*896}')
        g += [f's_add_u32 m0, s94, {n*8192}', f'buffer_load_dwordx4 v18, {R(SW)}, s{66 if b else 64} offen lds']
        G.append(g)
    return G

def emit_mix(M, Rr, G):
    for n, m in enumerate(M):
        a(m)
        k0 = (n * len(Rr)) // len(M); k1 = ((n + 1) * len(Rr)) // len(M)
        for r in Rr[k0:k1]: a(r)
        k0 = (n * len(G)) // len(M); k1 = ((n + 1) * len(G)) // len(M)
        for g in G[k0:k1]:
            for i in g: a(i)

def main_loop(tag, SLOT, groups, reads, mfmas, addr_regs, F0, F1, extra_adv=None):
    nops = len(groups())
    h1 = (nops + 1) // 2
    a(f's_waitcnt vmcnt({2*nops})')
    a('s_barrier')
    for r in reads(F0, 0): a(r)
    a(f's_mov_b32 s68, {SLOT}')
    a(f's_mov_b32 s69, {-2*SLOT & 0xffffffff}')
    a('s_mov_b32 s67, 0')
    a('s_mov_b32 s61, 0')
    def body(first_g, wait_n, second_g):
        a('s_waitcnt lgkmcnt(0)')
        emit_mix(mfmas(F0), reads(F1, 1), first_g)
        a(f's_cmp_eq_u32 s61, {2*SLOT}')
        a('s_cselect_b32 s70, s69, s68')
        a('s_waitcnt lgkmcnt(0)')
        for r in addr_regs: a(f'v_add_u32 v{r}, s70, v{r}')
        if extra_adv: extra_adv()
        if wait_n is not None: a(f's_waitcnt vmcnt({wait_n})')
        a('s_barrier')
        emit_mix(mfmas(F1), reads(F0, 0), second_g)
        a('s_add_u32 s61, s61, s70')
    G = groups()
    body([], nops, G[:h1])
    a.label(f'L_LOOP_{tag}')
    body(G[h1:], nops, G[:h1])
    a('s_add_u32 s67, s67, 1')
    a('s_cmp_lt_u32 s67, 3')
    a(f's_cbranch_scc1 L_LOOP_{tag}')
    body(G[h1:], nops, [])
    a('s_mov_b32 s67, 0')
    a.label(f'L_LOOPT_{tag}')
    body([], 0, [])
    a('s_add_u32 s67, s67, 1')
    a('s_cmp_lt_u32 s67, 2')
    a(f's_cbranch_scc1 L_LOOPT_{tag}')
    a('s_waitcnt lgkmcnt(0)')

def xlane4(op, m):
    m0, m1, m2, m3 = m
    a(f'v_permlane32_swap_b32 v{m0}, v{m1}')
    a(f'v_permlane32_swap_b32 v{m2}, v{m3}')
    a(f'{op} v{m0}, v{m0}, v{m1}')
    a(f'{op} v{m2}, v{m2}, v{m3}')
    a(f'v_permlane16_swap_b32 v{m0}, v{m2}')
    a(f'{op} v{m0}, v{m0}, v{m2}')
    a(f'v_mov_b32 v{m2}, v{m0}')
    a(f'v_permlane16_swap_b32 v{m0}, v{m2}')
    a(f'v_mov_b32 v{m1}, v{m0}')
    a(f'v_mov_b32 v{m3}, v{m2}')
    a(f'v_permlane32_swap_b32 v{m0}, v{m1}')
    a(f'v_permlane32_swap_b32 v{m2}, v{m3}')

def xlane2(op, m0, m1):
    a(f'v_permlane32_swap_b32 v{m0}, v{m1}')
    a(f'{op} v{m0}, v{m0}, v{m1}')
    a(f'v_mov_b32 v{m1}, v{m0}')
    a(f'v_permlane16_swap_b32 v{m0}, v{m1}')
    a(f'{op} v{m0}, v{m0}, v{m1}')
    a(f'v_mov_b32 v{m1}, v{m0}')
    a(f'v_permlane32_swap_b32 v{m0}, v{m1}')

def cvt4(dst, s0, s1):
    a(f'v_cvt_pk_bf16_f32 v{dst}, v{s0}, v{s0+1}')
    a(f'v_cvt_pk_bf16_f32 v{dst+1}, v{s0+2}, v{s0+3}')
    a(f'v_cvt_pk_bf16_f32 v{dst+2}, v{s1}, v{s1+1}')
    a(f'v_cvt_pk_bf16_f32 v{dst+3}, v{s1+2}, v{s1+3}')
def zero_pad(r):
    a(f'v_cndmask_b32_e64 v{r+2}, v{r+2}, 0, s[{M48}:{M48+1}]')
    a(f'v_cndmask_b32_e64 v{r+3}, v{r+3}, 0, s[{M48}:{M48+1}]')

uid = [0]
def get_nonce():
    uid[0] += 1; u = uid[0]
    a('v_mov_b32 v248, 0')
    a('s_mov_b32 s92, 0')
    a.label(f'L_GN_{u}')
    a(f'buffer_load_dword v249, v248, {R(SDBG)}, 0 offen sc1')
    a('s_waitcnt vmcnt(0)')
    a(f'v_readfirstlane_b32 s{S_NONCE}, v249')
    a(f's_cmp_lg_u32 s{S_NONCE}, 0')
    a(f's_cbranch_scc1 L_GNX_{u}')
    a('s_sleep 2')
    a('s_add_u32 s92, s92, 1')
    a(f's_cmp_lt_u32 s92, {SPIN}')
    a(f's_cbranch_scc1 L_GN_{u}')
    a.label(f'L_GNX_{u}')
def set_flag(off_sgpr):
    a('v_mov_b32 v248, 0')
    a(f'v_mov_b32 v249, s{S_NONCE}')
    a('s_mov_b64 exec, 1')
    a(f'buffer_store_dword v249, v248, {R(SWS)}, s{off_sgpr} offen sc1')
    a('s_mov_b64 exec, -1')
def poll(off_sgpr, nflags):
    uid[0] += 1; u = uid[0]
    mask = (1 << nflags) - 1
    a('v_lshlrev_b32 v248, 2, v1')
    a('s_mov_b32 s92, 0')
    a.label(f'L_PL_{u}')
    a(f'buffer_load_dword v249, v248, {R(SWS)}, s{off_sgpr} offen sc1')
    a('s_waitcnt vmcnt(0)')
    a(f'v_cmp_eq_u32 vcc, s{S_NONCE}, v249')
    a(f's_and_b32 s93, vcc_lo, {mask}')
    a(f's_cmp_eq_u32 s93, {mask}')
    a(f's_cbranch_scc1 L_PLX_{u}')
    a('s_sleep 1')
    a('s_add_u32 s92, s92, 1')
    a(f's_cmp_lt_u32 s92, {SPIN}')
    a(f's_cbranch_scc1 L_PL_{u}')
    a.label(f'L_PLX_{u}')
def wave0_begin():
    uid[0] += 1
    a(f's_cmp_lg_u32 s{S_WAVE}, 0')
    a(f's_cbranch_scc1 L_W0_{uid[0]}')
    return uid[0]
def wave0_end(u):
    a.label(f'L_W0_{u}')

def wo_dma():
    uid[0] += 1; u = uid[0]
    a(f's_cmp_ge_u32 s{S_WORK}, 28')
    a(f's_cbranch_scc1 L_NOWO_{u}')
    a('v_lshrrev_b32 v3, 3, v0')
    a('v_and_b32 v5, 7, v0')
    a('v_and_b32 v6, 6, v3')
    a('v_xor_b32 v5, v5, v6')
    a('v_lshlrev_b32 v5, 4, v5')
    a('v_mul_u32_u24 v3, 896, v3')
    a('v_add_u32 v3, v3, v5')
    a(f's_mul_i32 s53, s{S_WAVE}, 50176')
    a(f's_lshl_b32 s54, s{S_NB}, 7')
    a('s_add_u32 s53, s53, s54')
    a(f's_mul_i32 s54, s{S_WAVE}, 7168')
    for br in range(2):
        for n in range(7):
            a(f's_add_u32 m0, s54, {br*57344 + n*1024}')
            a(f's_add_u32 s62, s53, {n*7168}')
            a(f'buffer_load_dwordx4 v3, {R(SWOA if br == 0 else SWOB)}, s62 offen lds')
    a.label(f'L_NOWO_{u}')

a(f's_lshl_b32 s53, s{S_HP}, 1')
a(f's_add_u32 s53, s53, s{S_J}')
a('s_mul_i32 s53, s53, 1568')
a('v_mul_u32_u24 v5, 224, v2')
a('v_lshl_add_u32 v3, v1, 1, v5')
a('v_add_u32 v6, 16, v1')
a('v_min_u32 v6, 27, v6')
a('v_lshl_add_u32 v6, v6, 1, v5')
a(f's_lshl_b32 s58, s{S_WAVE}, 11')
a(f's_lshl_b32 s59, s{S_WAVE}, 10')
a('s_add_u32 s59, s59, 16384')
a(f's_mov_b32 s60, s{S_ROT}')
def grpB1(): return dma_groups(False, (1, 2), 58, None, 59)
def grpB2(): return dma_groups(False, (0,), 58, None, 59)
def issue(G):
    for g in G:
        for i in g: a(i)
def issueB1(): issue(grpB1())
def issueB2(): issue(grpB2())
for ft, vo in ((0, 3), (1, 6)):
    for j in range(8):
        d = j if j < 4 else 16 + (j - 4)
        a(f'buffer_load_ushort v{116+ft*8+j}, v{vo}, {R(SPHI)}, s53 offen offset:{d*56}')
a(f's_cmp_lg_u32 s{S_WAVE}, 7')
a('s_cbranch_scc1 L_B_NOGATE')
a('v_lshlrev_b32 v3, 4, v0')
a(f's_mov_b32 m0, {L_GATE}')
a(f'buffer_load_dwordx4 v3, {R(SGATE)}, 0 offen lds')
a.label('L_B_NOGATE')
for c in range(3):
    a(f's_mov_b32 s61, {c*SLOT_B}')
    issueB1()
a(f's_lshl_b32 s53, s{S_PI}, 13')
a(f's_lshl_b32 s54, s{S_HH}, 12')
a('s_add_u32 s53, s53, s54')
a('v_add_u32 v4, s53, v4')
a('v_xor_b32 v5, 64, v4')
a('v_add_u32 v8, 16384, v8')
a('v_add_u32 v9, 16384, v9')
BF0, BF1, BACC = 20, 52, 84
for r in range(BACC, BACC + 32): a(f'v_mov_b32 v{r}, 0')
def readsB1(F, ks):
    L = [f'ds_read_b128 {vr(F+4*t,4)}, v{4+ks} offset:{t*2048}' for t in range(2)]
    for b in range(2):
        for dt in range(2):
            for h2 in range(2):
                L.append(f'ds_read_b64_tr_b16 {vr(F+12+(b*2+dt)*4+h2*2,2)}, v{8+dt} offset:{b*8192+(32*ks+4*h2)*128}')
    return L
def mfmasB1(F):
    L = []
    for t in range(2):
        for dt in range(2):
            c = vr(BACC + (t * 2 + dt) * 4, 4); L.append(f'v_mfma_f32_16x16x32_bf16 {c}, {vr(F+12+dt*4,4)}, {vr(F+4*t,4)}, {c}')
    for t in range(2):
        for dt in range(2):
            c = vr(BACC + 16 + (t * 2 + dt) * 4, 4); L.append(f'v_mfma_f32_16x16x32_bf16 {c}, {vr(F+4*t,4)}, {vr(F+12+(2+dt)*4,4)}, {c}')
    return L
main_loop('B1', SLOT_B, grpB1, readsB1, mfmasB1, (4, 5, 8, 9), BF0, BF1)
stamp(1)
for r in (4, 5, 8, 9): a(f'v_subrev_u32 v{r}, {SLOT_B}, v{r}')
a(f's_mov_b32 s60, s{S_ROT}')
for c in range(3):
    a(f's_mov_b32 s61, {c*SLOT_B}')
    issueB2()
WP = 132
for ft in range(2):
    for jj in range(4):
        a(f'v_lshl_or_b32 v{WP+ft*4+jj}, v{116+ft*8+2*jj+1}, 16, v{116+ft*8+2*jj}')
    zero_pad(WP + ft * 4)
a('v_cmp_eq_u32 s[86:87], 12, v1')
a('v_mov_b32 v10, 0xff800000')
a(f's_mov_b32 s90, {f2u(LOG2E):#x}')
ONES = 12
for r in range(4): a(f'v_mov_b32 v{ONES+r}, 0x3f803f80')
XP_, PK, ST, E, EP, SUM = 140, 148, 164, 172, 204, 220
def hedgehog(accbase):
    for t in range(2):
        cvt4(XP_ + 4 * t, accbase + t * 8, accbase + t * 8 + 4)
    for t in range(2):
        for ft in range(2):
            a(f'v_mfma_f32_16x16x32_bf16 {vr(PK+8*t+4*ft,4)}, {vr(WP+4*ft,4)}, {vr(XP_+4*t,4)}, 0')
    for t in range(2):
        s = PK + 8 * t
        for n, d in (('', ST + t), ('-', ST + 2 + t)):
            a(f'v_max3_f32 v{d}, {n}v{s}, {n}v{s+1}, {n}v{s+2}')
            a(f'v_max3_f32 v{d}, v{d}, {n}v{s+3}, {n}v{s+4}')
            a(f'v_max3_f32 v{d}, v{d}, {n}v{s+5}, {n}v{s+6}')
            a(f'v_max_f32_e64 v{d}, v{d}, {n}v{s+7}')
    xlane4('v_max_f32', [ST, ST + 1, ST + 2, ST + 3])
    for q in range(4):
        a(f'v_mul_f32_e64 v{ST+q}, -s90, v{ST+q}')
        a(f'v_cndmask_b32_e64 v{ST+4+q}, v{ST+q}, v10, s[{M48}:{M48+1}]')
    for sg in range(2):
        for t in range(2):
            for ft in range(2):
                for r in range(4):
                    p = PK + 8 * t + 4 * ft + r
                    a(f'v_fma_f32 v{E+16*sg+8*t+4*ft+r}, {"-" if sg else ""}v{p}, s90, v{ST+4*ft+2*sg+t}')
            for r in range(8):
                a(f'v_exp_f32 v{E+16*sg+8*t+r}, v{E+16*sg+8*t+r}')
    for q in range(4):
        cvt4(EP + 4 * q, E + 8 * q, E + 8 * q + 4)
    for q in range(4):
        a(f'v_mfma_f32_16x16x32_bf16 {vr(SUM+4*q,4)}, {vr(ONES,4)}, {vr(EP+4*q,4)}, 0')
    for q in range(4):
        a(f'v_rcp_f32 v{SUM+4*q}, v{SUM+4*q}')
    for q in range(4):
        for r in range(0, 8, 2):
            a(f'v_pk_mul_f32 {vr(E+8*q+r,2)}, {vr(E+8*q+r,2)}, {vr(SUM+4*q,2)} op_sel_hi:[1,0]')
        cvt4(EP + 4 * q, E + 8 * q, E + 8 * q + 4)
VB = 116
for dt in range(2):
    cvt4(VB + 4 * dt, BACC + 16 + dt * 4, BACC + 16 + (2 + dt) * 4)
for r in range(4):
    a(f'v_cndmask_b32_e64 v{VB+4+r}, v{VB+4+r}, v{ONES}, s[86:87]')
a(f's_lshr_b32 s53, s{S_WAVE}, 1')
a(f's_lshl_b32 s54, s{S_J}, 13')
a('s_lshl_b32 s62, s53, 11')
a('s_add_u32 s54, s54, s62')
a(f's_add_u32 s54, s54, {L_VF}')
a('v_lshlrev_b32 v11, 4, v0')
a('v_add_u32 v3, s54, v11')
for dt in range(2):
    a(f'ds_write_b128 v3, {vr(VB+4*dt,4)} offset:{dt*1024}')
hedgehog(BACC)
a(f's_mul_i32 s54, s{S_J}, 17408')
a(f's_add_u32 s54, s54, {L_PT}')
a('s_mul_i32 s62, s53, 4352')
a('s_add_u32 s62, s62, s54')
a('v_mul_u32_u24 v3, 136, v1')
a('v_lshl_add_u32 v3, v2, 3, v3')
a('v_add_u32 v3, s62, v3')
for sg in range(2):
    for t in range(2):
        for ft in range(2):
            a(f'ds_write_b64 v3, {vr(EP+(sg*2+t)*4+2*ft,2)} offset:{t*16*136 + sg*64 + ft*32}')
a('v_lshrrev_b32 v6, 2, v1')
a('v_lshl_add_u32 v6, v2, 2, v6')
a('v_mul_u32_u24 v6, 136, v6')
a('v_and_b32 v7, 3, v0')
a('v_lshl_add_u32 v6, v7, 3, v6')
a('s_lshl_b32 s62, s53, 5')
a('s_add_u32 s62, s62, s54')
a('v_add_u32 v6, s62, v6')
a(f's_lshl_b32 s54, s{S_J}, 13')
a(f's_add_u32 s54, s54, {L_VF}')
a('v_add_u32 v7, s54, v11')
a('s_waitcnt lgkmcnt(0)')
a('s_barrier')
ET, VG, KV = 140, 156, 188
for u in range(4):
    for hh in range(2):
        a(f'ds_read_b64_tr_b16 {vr(ET+4*u+2*hh,2)}, v6 offset:{(u*32+hh*16)*136}')
    for dt in range(2):
        a(f'ds_read_b128 {vr(VG+(u*2+dt)*4,4)}, v7 offset:{(u*2+dt)*1024}')
a('s_waitcnt lgkmcnt(0)')
for u in range(4):
    for dt in range(2):
        c = vr(KV + 4 * dt, 4)
        a(f'v_mfma_f32_16x16x32_bf16 {c}, {vr(ET+4*u,4)}, {vr(VG+(u*2+dt)*4,4)}, {c if u else 0}')
cvt4(196, KV, KV + 4)
a(f's_lshl_b32 s53, s{S_HP}, 4')
a(f's_add_u32 s53, s53, s{S_RB}')
a('s_lshl_b32 s53, s53, 3')
a(f's_add_u32 s53, s53, s{S_WAVE}')
a('s_lshl_b32 s53, s53, 10')
a(f's_add_u32 s53, s53, {WS_KVP}')
a(f'buffer_store_dwordx4 v[196:199], v11, {R(SWS)}, s53 offen sc1')
a('s_waitcnt vmcnt(0)')
a('s_barrier')
u0 = wave0_begin()
get_nonce()
a(f's_lshl_b32 s53, s{S_HP}, 8')
a(f's_lshl_b32 s54, s{S_RB}, 2')
a('s_add_u32 s53, s53, s54')
a(f's_add_u32 s62, s53, {WS_FL}')
set_flag(62)
wave0_end(u0)
stamp(2)
for r in range(BACC, BACC + 24): a(f'v_mov_b32 v{r}, 0')
a(f's_lshl_b32 s53, s{S_ROT}, 7')
a(f's_add_u32 s53, s53, {L_GATE}')
a('v_lshlrev_b32 v6, 4, v2')
a('v_add_u32 v6, s53, v6')
a(f's_mov_b32 s71, s{S_ROT}')
def readsB2(F, ks):
    L = [f'ds_read_b128 {vr(F+4*t,4)}, v{4+ks} offset:{t*2048}' for t in range(2)]
    L.append(f'ds_read_b128 {vr(F+8,4)}, v6 offset:{ks*64}')
    for dt in range(2):
        for h2 in range(2):
            L.append(f'ds_read_b64_tr_b16 {vr(F+12+dt*4+h2*2,2)}, v{8+dt} offset:{(32*ks+4*h2)*128}')
    return L
def mfmasB2(F):
    L = []
    for t in range(2):
        for dt in range(2):
            c = vr(BACC + (t * 2 + dt) * 4, 4); L.append(f'v_mfma_f32_16x16x32_bf16 {c}, {vr(F+12+dt*4,4)}, {vr(F+4*t,4)}, {c}')
    for t in range(2):
        c = vr(BACC + 16 + t * 4, 4); L.append(f'v_mfma_f32_16x16x32_bf16 {c}, {vr(F+8,4)}, {vr(F+4*t,4)}, {c}')
    return L
def advB2():
    a('s_add_u32 s71, s71, 1')
    a('s_cmp_eq_u32 s71, 7')
    a('s_movk_i32 s53, 128')
    a('s_movk_i32 s54, -768')
    a('s_cselect_b32 s53, s54, s53')
    a('s_cselect_b32 s71, 0, s71')
    a('v_add_u32 v6, s53, v6')
main_loop('B2', SLOT_B, grpB2, readsB2, mfmasB2, (4, 5, 8, 9), BF0, BF1, advB2)
stamp(3)
wo_dma()
hedgehog(BACC)
GS = BACC + 16
for t in range(2):
    a(f'v_mul_f32 v{GS+4*t}, s90, v{GS+4*t}')
    a(f'v_exp_f32 v{GS+4*t}, -v{GS+4*t}')
    a(f'v_add_f32 v{GS+4*t}, 1.0, v{GS+4*t}')
    a(f'v_rcp_f32 v{GS+4*t}, v{GS+4*t}')
    a(f'v_sub_f32 v{GS+4*t+1}, 1.0, v{GS+4*t}')
a(f's_lshl_b32 s63, s{S_RB}, 1')
a(f's_add_u32 s63, s63, s{S_PI}')
a('s_lshl_b32 s63, s63, 2')
a(f's_lshl_b32 s53, s{S_HH}, 1')
a('s_add_u32 s63, s63, s53')
a(f's_lshl_b32 s64, s{S_HP}, 1')
a(f's_add_u32 s64, s64, s{S_J}')
a('s_cmp_lg_u32 s64, 0')
a('s_cbranch_scc1 L_B_NOG')
a('s_lshl_b32 s53, s63, 8')
a(f's_add_u32 s53, s53, {WS_G}')
a('v_lshlrev_b32 v3, 2, v0')
for t in range(2):
    a(f'buffer_store_dword v{GS+4*t}, v3, {R(SWS)}, s53 offen offset:{t*256} sc1')
a.label('L_B_NOG')
u0 = wave0_begin()
a(f's_lshl_b32 s62, s{S_HP}, 8')
a(f's_add_u32 s62, s62, {WS_FL}')
poll(62, 16)
wave0_end(u0)
a('s_barrier')
stamp(4)
a(f's_lshl_b32 s53, s{S_HP}, 17')
a(f's_lshl_b32 s54, s{S_WAVE}, 10')
a('s_add_u32 s53, s53, s54')
a(f's_add_u32 s53, s53, {WS_KVP}')
PL = 20
for p in range(16):
    a(f'buffer_load_dwordx4 {vr(PL+4*p,4)}, v11, {R(SWS)}, s53 offen sc1')
    a('s_add_u32 s53, s53, 8192')
a('v_mov_b32 v116, 0x3f80')
a('v_mov_b32 v117, 0x3f800000')
RS = 140
for r in range(8): a(f'v_mov_b32 v{RS+r}, 0')
for p in range(16):
    a(f's_waitcnt vmcnt({15-p})')
    for d in range(4):
        a(f'v_dot2_f32_bf16 v{RS+2*d}, v{PL+4*p+d}, v116, v{RS+2*d}')
        a(f'v_dot2_f32_bf16 v{RS+2*d+1}, v{PL+4*p+d}, v117, v{RS+2*d+1}')
a('s_nop 2')
cvt4(148, RS, RS + 4)
a(f's_lshr_b32 s53, s{S_WAVE}, 1')
a('s_lshr_b32 s54, s53, 1')
a('s_lshl_b32 s54, s54, 11')
a('s_and_b32 s53, s53, 1')
a('s_lshl_b32 s53, s53, 3')
a('s_add_u32 s53, s53, s54')
a(f's_lshl_b32 s54, s{S_J}, 12')
a(f's_add_u32 s54, s54, {L_KVL}')
a('s_add_u32 s53, s53, s54')
a('v_add_u32 v3, s53, v11')
a('ds_write_b64 v3, v[148:149]')
a('ds_write_b64 v3, v[150:151] offset:1024')
a('v_add_u32 v3, s54, v11')
a('s_waitcnt lgkmcnt(0)')
a('s_barrier')
KF = 152
for q in range(4):
    a(f'ds_read_b128 {vr(KF+4*q,4)}, v3 offset:{q*1024}')
a('s_waitcnt lgkmcnt(0)')
OB = 168
for t in range(2):
    for dt in range(2):
        c = vr(OB + (t * 2 + dt) * 4, 4)
        a(f'v_mfma_f32_16x16x32_bf16 {c}, {vr(KF+dt*4,4)}, {vr(EP+t*4,4)}, 0')
for t in range(2):
    for dt in range(2):
        c = vr(OB + (t * 2 + dt) * 4, 4)
        a(f'v_mfma_f32_16x16x32_bf16 {c}, {vr(KF+(2+dt)*4,4)}, {vr(EP+(2+t)*4,4)}, {c}')
a(f's_mov_b32 s91, {f2u(1e-6):#x}')
a('s_lshl_b32 s53, s63, 4')
a('s_add_u32 s53, s53, s64')
a('s_lshl_b32 s53, s53, 10')
a(f's_add_u32 s53, s53, {WS_OB}')
a(f'v_mov_b32 v184, v{OB+4}')
a(f'v_mov_b32 v185, v{OB+12}')
a('v_permlane32_swap_b32 v184, v185')
a('v_mov_b32 v184, v185')
a('v_permlane16_swap_b32 v185, v184')
a('v_add_f32 v184, s91, v184')
a('v_rcp_f32 v184, v184')
a('v_mov_b32 v185, v184')
a('v_permlane32_swap_b32 v184, v185')
for t in range(2):
    o = OB + 8 * t
    a(f'v_mul_f32 v{184+t}, v{184+t}, v{GS+4*t+1}')
    for r in range(8): a(f'v_mul_f32 v{o+r}, v{o+r}, v{184+t}')
    cvt4(188 + 4 * t, o, o + 4)
    zero_pad(188 + 4 * t)
    a(f'buffer_store_dwordx4 {vr(188+4*t,4)}, v11, {R(SWS)}, s53 offen sc1')
    a('s_add_u32 s53, s53, 16384')
a('s_waitcnt vmcnt(0)')
a('s_barrier')
u0 = wave0_begin()
a(f's_add_u32 s53, s{S_RB}, 24')
a('s_lshl_b32 s53, s53, 8')
a(f's_lshl_b32 s54, s{S_HP}, 2')
a('s_add_u32 s53, s53, s54')
a(f's_add_u32 s62, s53, {WS_FL}')
set_flag(62)
wave0_end(u0)
stamp(5)
a('s_branch L_P2')

a.label('L_A')
a('s_cmp_lg_u32 s2, 128')
a('s_cbranch_scc1 L_A_NOSCAN')
a(f's_cmp_lg_u32 s{S_WAVE}, 0')
a('s_cbranch_scc1 L_A_NOSCAN')
a('v_lshlrev_b32 v3, 8, v2')
a('v_lshl_add_u32 v3, v1, 2, v3')
a(f's_mov_b32 s53, {WS_FL}')
for n in range(10):
    a(f'buffer_load_dword v{200+n}, v3, {R(SWS)}, s53 offen sc1')
    a('s_add_u32 s53, s53, 1024')
a('s_memrealtime s[88:89]')
a('s_waitcnt vmcnt(0) lgkmcnt(0)')
a('s_or_b32 s88, s88, 1')
a.label('L_A_SCAN')
a('s_mov_b64 s[86:87], 0')
for n in range(10):
    a(f'v_cmp_eq_u32 vcc, s88, v{200+n}')
    a('s_or_b64 s[86:87], s[86:87], vcc')
a('s_cmp_eq_u64 s[86:87], 0')
a('s_cbranch_scc1 L_A_SCANOK')
a('s_add_u32 s88, s88, 2')
a('s_branch L_A_SCAN')
a.label('L_A_SCANOK')
a('v_mov_b32 v3, 0')
a('v_mov_b32 v5, s88')
a('s_mov_b64 exec, 1')
a(f'buffer_store_dword v5, v3, {R(SDBG)}, 0 offen sc1')
a('s_mov_b64 exec, -1')
a.label('L_A_NOSCAN')
a(f's_mul_i32 s58, s{S_HH}, 9216')
a(f's_and_b32 s54, s{S_WAVE}, 3')
a('s_lshl_b32 s71, s54, 8')
a('s_add_u32 s71, s71, s58')
a('s_lshl_b32 s53, s54, 11')
a('s_add_u32 s58, s58, s53')
a('s_add_u32 s58, s58, 1024')
a(f's_lshl_b32 s59, s{S_WAVE}, 10')
a('s_add_u32 s59, s59, 18432')
a(f's_mov_b32 s60, s{S_ROT}')
def grpA(): return dma_groups(True, (0, 1, 2), 58, 71, 59)
def issueA(): issue(grpA())
for c in range(3):
    a(f's_mov_b32 s61, {c*SLOT_A}')
    issueA()
a('v_or_b32 v3, 8, v1')
a('v_lshrrev_b32 v6, 1, v3')
a('v_xor_b32 v6, v2, v6')
a('v_lshlrev_b32 v6, 4, v6')
a('v_and_b32 v3, 7, v3')
a('v_lshl_add_u32 v6, v3, 7, v6')
a('v_add_u32 v7, 3072, v4')
a(f's_cmp_eq_u32 s{S_HH}, 1')
a('s_cselect_b64 s[86:87], -1, 0')
a('v_cndmask_b32_e64 v6, v6, v7, s[86:87]')
a(f's_mul_i32 s53, s{S_PI}, 9216')
a('v_add_u32 v6, s53, v6')
a('v_xor_b32 v7, 64, v6')
a(f's_lshl_b32 s54, s{S_HH}, 12')
a('s_add_u32 s53, s53, s54')
a('s_add_u32 s53, s53, 1024')
a('v_add_u32 v4, s53, v4')
a('v_xor_b32 v5, 64, v4')
a('v_add_u32 v8, 18432, v8')
a('v_add_u32 v9, 18432, v9')
AF0, AF1, AACC = 20, 56, 92
for r in range(AACC, AACC + 64): a(f'v_mov_b32 v{r}, 0')
def readsA(F, ks):
    L = [f'ds_read_b128 {vr(F+4+4*t,4)}, v{4+ks} offset:{t*2048}' for t in range(2)]
    L.append(f'ds_read_b128 {vr(F,4)}, v{6+ks}')
    for b in range(3):
        for dt in range(2):
            for h2 in range(2):
                L.append(f'ds_read_b64_tr_b16 {vr(F+12+(b*2+dt)*4+h2*2,2)}, v{8+dt} offset:{b*8192+(32*ks+4*h2)*128}')
    return L
def mfmasA(F):
    L = []
    X = lambda t: vr(F + 4 * t, 4)
    W = lambda b, dt: vr(F + 12 + (b * 2 + dt) * 4, 4)
    for t in range(2):
        for dt in range(2):
            c = vr(AACC + (t * 2 + dt) * 4, 4); L.append(f'v_mfma_f32_16x16x32_bf16 {c}, {W(0,dt)}, {X(t+1)}, {c}')
    for t in range(3):
        for dt in range(2):
            c = vr(AACC + 16 + (t * 2 + dt) * 4, 4); L.append(f'v_mfma_f32_16x16x32_bf16 {c}, {W(1,dt)}, {X(t)}, {c}')
    for t in range(3):
        for dt in range(2):
            c = vr(AACC + 40 + (t * 2 + dt) * 4, 4); L.append(f'v_mfma_f32_16x16x32_bf16 {c}, {X(t)}, {W(2,dt)}, {c}')
    return L
main_loop('A', SLOT_A, grpA, readsA, mfmasA, (4, 5, 6, 7, 8, 9), AF0, AF1)
stamp(1)
a('v_lshlrev_b32 v3, 2, v2')
a('v_add_u32 v5, 9, v1')
for r in range(4):
    a(f'v_add_u32 v4, {r}, v3')
    a(f'v_cmp_ge_u32 s[{56+2*r}:{57+2*r}], v4, v5')
    a('v_sub_u32 v6, v1, v4')
    a(f'v_cmp_gt_u32 s[{64+2*r}:{65+2*r}], 8, v6')
a(f's_or_b32 s53, s{S_RB}, s{S_HH}')
a('s_cmp_eq_u32 s53, 0')
for r in range(4):
    a(f's_cselect_b64 s[{88+2*r}:{89+2*r}], 0, s[{56+2*r}:{57+2*r}]')
QP, KP, VP = 20, 28, 40
for t in range(2):
    cvt4(QP + 4 * t, AACC + t * 8, AACC + t * 8 + 4)
    zero_pad(QP + 4 * t)
for t in range(3):
    cvt4(KP + 4 * t, AACC + 16 + t * 8, AACC + 16 + t * 8 + 4)
for t in range(3):
    for dt in range(2):
        s = AACC + 40 + (t * 2 + dt) * 4
        a(f'v_cvt_pk_bf16_f32 v{VP+dt*6+2*t}, v{s}, v{s+1}')
        a(f'v_cvt_pk_bf16_f32 v{VP+dt*6+2*t+1}, v{s+2}, v{s+3}')
SC = 56
for t in range(2):
    a(f'v_mfma_f32_16x16x32_bf16 {vr(SC+8*t,4)}, {vr(KP+4*t,4)}, {vr(QP+4*t,4)}, 0')
    a(f'v_mfma_f32_16x16x32_bf16 {vr(SC+8*t+4,4)}, {vr(KP+4*(t+1),4)}, {vr(QP+4*t,4)}, 0')
a('v_mov_b32 v10, 0xff800000')
AONES = 52
for r in range(4): a(f'v_mov_b32 v{AONES+r}, 0x3f803f80')
MX = 72
for t in range(2):
    for r in range(4):
        mp = (88 if t == 0 else 56) + 2 * r
        a(f'v_cndmask_b32_e64 v{SC+8*t+r}, v10, v{SC+8*t+r}, s[{mp}:{mp+1}]')
        a(f'v_cndmask_b32_e64 v{SC+8*t+4+r}, v10, v{SC+8*t+4+r}, s[{64+2*r}:{65+2*r}]')
    s = SC + 8 * t
    a(f'v_max3_f32 v{MX+t}, v{s}, v{s+1}, v{s+2}')
    a(f'v_max3_f32 v{MX+t}, v{MX+t}, v{s+3}, v{s+4}')
    a(f'v_max3_f32 v{MX+t}, v{MX+t}, v{s+5}, v{s+6}')
    a(f'v_max_f32 v{MX+t}, v{MX+t}, v{s+7}')
xlane2('v_max_f32', MX, MX + 1)
a(f's_mov_b32 s96, {f2u(28 ** -0.5 * LOG2E):#x}')
PP = 76
for t in range(2):
    a(f'v_mul_f32 v{MX+t}, s96, v{MX+t}')
    for r in range(8):
        a(f'v_fma_f32 v{SC+8*t+r}, v{SC+8*t+r}, s96, -v{MX+t}')
    for r in range(8):
        a(f'v_exp_f32 v{SC+8*t+r}, v{SC+8*t+r}')
    cvt4(PP + 4 * t, SC + 8 * t, SC + 8 * t + 4)
OO = AACC
for t in range(2):
    for dt in range(2):
        a(f'v_mfma_f32_16x16x32_bf16 {vr(OO+12*t+4*dt,4)}, {vr(VP+dt*6+2*t,4)}, {vr(PP+4*t,4)}, 0')
    a(f'v_mfma_f32_16x16x32_bf16 {vr(OO+12*t+8,4)}, {vr(AONES,4)}, {vr(PP+4*t,4)}, 0')
a(f's_lshl_b32 s53, s{S_RB}, 1')
a(f's_add_u32 s53, s53, s{S_PI}')
a('s_lshl_b32 s53, s53, 2')
a(f's_lshl_b32 s54, s{S_HH}, 1')
a('s_add_u32 s53, s53, s54')
a('s_lshl_b32 s53, s53, 4')
a(f's_lshl_b32 s54, s{S_HP}, 1')
a('s_add_u32 s53, s53, s54')
a(f's_add_u32 s53, s53, s{S_J}')
a('s_lshl_b32 s53, s53, 10')
a('v_lshlrev_b32 v11, 4, v0')
for t in range(2):
    o = OO + 12 * t
    a(f'v_rcp_f32 v{o+8}, v{o+8}')
    for r in range(8):
        a(f'v_mul_f32 v{o+r}, v{o+r}, v{o+8}')
    cvt4(QP + 4 * t, o, o + 4)
    zero_pad(QP + 4 * t)
    a(f'buffer_store_dwordx4 {vr(QP+4*t,4)}, v11, {R(SWS)}, s53 offen sc1')
    a('s_add_u32 s53, s53, 16384')
a('s_waitcnt vmcnt(0)')
a('s_barrier')
u0 = wave0_begin()
get_nonce()
a(f's_add_u32 s53, s{S_RB}, 8')
a('s_lshl_b32 s53, s53, 8')
a(f's_lshl_b32 s54, s{S_HP}, 2')
a('s_add_u32 s53, s53, s54')
a(f's_add_u32 s62, s53, {WS_FL}')
set_flag(62)
wave0_end(u0)
stamp(2)
wo_dma()

a.label('L_P2')
a(f's_cmp_ge_u32 s{S_WORK}, 28')
a('s_cbranch_scc1 L_END')
a('v_lshrrev_b32 v3, 2, v1')
a('v_and_b32 v4, 3, v0')
a('v_lshl_add_u32 v5, v2, 2, v3')
a('v_lshlrev_b32 v5, 7, v5')
a('v_lshl_add_u32 v5, v4, 3, v5')
a(f's_mul_i32 s53, s{S_HH}, 28672')
a('v_add_u32 v5, s53, v5')
a('v_mov_b32 v7, 2048')
a(f'v_cndmask_b32_e64 v7, v7, 0, s[{M48}:{M48+1}]')
a('v_lshrrev_b32 v6, 1, v3')
a('v_lshl_add_u32 v6, v2, 1, v6')
for par in range(2):
    a(f'v_add_u32 v8, {2*par}, v6')
    a('v_and_b32 v8, 3, v8')
    for T in range(4):
        a(f'v_xor_b32 v9, {T}, v8')
        a(f'v_lshl_add_u32 v{16+par*8+T}, v9, 5, v5')
        a(f'v_add_u32 v{16+par*8+4+T}, v{16+par*8+T}, v7')
PA, PB, OF, WB = 32, 48, 64, 96
a('v_lshlrev_b32 v11, 4, v0')
a(f's_and_b32 s54, s{S_WAVE}, 3')
a(f's_lshl_b32 s63, s{S_PT}, 2')
a('s_add_u32 s63, s63, s54')
a('s_lshl_b32 s64, s63, 14')
a(f's_lshl_b32 s53, s{S_HH}, 13')
a('s_add_u32 s64, s64, s53')
a('s_waitcnt vmcnt(0)')
a('s_barrier')
def wfrags():
    for h in range(8):
        for T in range(4):
            for sec in range(2):
                a(f'ds_read_b64_tr_b16 {vr(WB+(h*4+T)*4+2*sec,2)}, v{16+(h&1)*8+sec*4+T} offset:{h*3584}')
def half(br, acc):
    u0 = wave0_begin()
    a(f's_lshr_b32 s62, s{S_PT}, 1')
    a(f's_add_u32 s62, s62, {8 + 16*br}')
    a('s_lshl_b32 s62, s62, 8')
    a(f's_add_u32 s62, s62, {WS_FL}')
    poll(62, 8)
    wave0_end(u0)
    a('s_barrier')
    stamp(6 + 2 * br)
    a(f's_add_u32 s53, s64, {br*WS_OB}')
    for h in range(8):
        if h == 4: a('s_add_u32 s53, s53, 4096')
        a(f'buffer_load_dwordx4 {vr(OF+4*h,4)}, v11, {R(SWS)}, s53 offen offset:{(h%4)*1024} sc1')
    if br:
        a('s_lshl_b32 s53, s63, 8')
        a(f's_add_u32 s53, s53, {WS_G}')
        a('v_lshlrev_b32 v12, 2, v0')
        a(f'buffer_load_dword v13, v12, {R(SWS)}, s53 offen sc1')
    a('s_waitcnt lgkmcnt(0)')
    for h in range(8):
        a(f's_waitcnt vmcnt({7-h+br})')
        for T in range(4):
            c = vr(acc + 4 * T, 4)
            a(f'v_mfma_f32_16x16x32_bf16 {c}, {vr(WB+(h*4+T)*4,4)}, {vr(OF+4*h,4)}, {c if h else 0}')
wfrags()
half(0, PA)
stamp(7)
for r in range(16, 32): a(f'v_add_u32 v{r}, 57344, v{r}')
a('s_nop 7')
wfrags()
half(1, PB)
a('s_waitcnt vmcnt(0)')
for r in range(16):
    a(f'v_fma_f32 v{PB+r}, v{PA+r}, v13, v{PB+r}')
a('s_lshl_b32 s53, s54, 12')
a(f's_add_u32 s53, s53, {L_RED}')
a('v_add_u32 v3, s53, v11')
a(f's_cmp_eq_u32 s{S_HH}, 0')
a('s_cbranch_scc1 L_P2_K0')
a(f'ds_write_b128 v3, {vr(PB,4)}')
a(f'ds_write_b128 v3, {vr(PB+4,4)} offset:1024')
a('s_waitcnt lgkmcnt(0)')
a('s_barrier')
a(f'ds_read_b128 {vr(PA,4)}, v3 offset:2048')
a(f'ds_read_b128 {vr(PA+4,4)}, v3 offset:3072')
for r in range(8): a(f'v_mov_b32 v{PB+r}, v{PB+8+r}')
a('s_branch L_P2_ST')
a.label('L_P2_K0')
a(f'ds_write_b128 v3, {vr(PB+8,4)} offset:2048')
a(f'ds_write_b128 v3, {vr(PB+12,4)} offset:3072')
a('s_waitcnt lgkmcnt(0)')
a('s_barrier')
a(f'ds_read_b128 {vr(PA,4)}, v3')
a(f'ds_read_b128 {vr(PA+4,4)}, v3 offset:1024')
a.label('L_P2_ST')
a(f's_lshr_b32 s53, s{S_PT}, 1')
a('s_lshl_b32 s53, s53, 7')
a(f's_and_b32 s62, s{S_PT}, 1')
a('s_add_u32 s53, s53, s62')
a('s_lshl_b32 s62, s54, 5')
a('s_add_u32 s53, s53, s62')
a('s_mul_i32 s53, s53, 896')
a(f's_lshl_b32 s62, s{S_NB}, 7')
a('s_add_u32 s53, s53, s62')
a(f's_lshl_b32 s62, s{S_HH}, 6')
a('s_add_u32 s53, s53, s62')
a('v_mul_u32_u24 v5, 1792, v1')
a('v_lshl_add_u32 v5, v2, 3, v5')
a('s_waitcnt lgkmcnt(0)')
for r in range(8): a(f'v_add_f32 v{PB+r}, v{PB+r}, v{PA+r}')
for T in range(2):
    a(f'v_cvt_pk_bf16_f32 v{PA+8+2*T}, v{PB+4*T}, v{PB+4*T+1}')
    a(f'v_cvt_pk_bf16_f32 v{PA+9+2*T}, v{PB+4*T+2}, v{PB+4*T+3}')
    a(f'buffer_store_dwordx2 {vr(PA+8+2*T,2)}, v5, {R(SOUT)}, s53 offen offset:{32*T}')
a.label('L_END')
if STAMP:
    a('s_waitcnt vmcnt(0)')
    stamp(9)
    a('s_lshl_b32 s3, s2, 3')
    a(f's_add_u32 s3, s3, s{S_WAVE}')
    a('s_lshl_b32 s3, s3, 6')
    a(f's_add_u32 s3, s3, {WS_ST}')
    a('v_lshlrev_b32 v3, 2, v0')
    a('s_mov_b64 exec, 0xffff')
    a(f'buffer_store_dword v250, v3, {R(SWS)}, s3 offen')
    a('s_waitcnt vmcnt(0)')
a.label('L_EXIT')
a('s_endpgm')

a.raw('.section .rodata,"a"')
a.raw('.p2align 6')
a.raw(f'.amdhsa_kernel {KN}')
a.raw('  .amdhsa_next_free_vgpr 256')
a.raw('  .amdhsa_next_free_sgpr 102')
a.raw('  .amdhsa_accum_offset 256')
a.raw('  .amdhsa_group_segment_fixed_size 0')
a.raw('  .amdhsa_kernarg_size 88')
a.raw('  .amdhsa_user_sgpr_count 2')
a.raw('  .amdhsa_user_sgpr_kernarg_segment_ptr 1')
a.raw('  .amdhsa_system_sgpr_workgroup_id_x 1')
a.raw('.end_amdhsa_kernel')
sys.stdout.write(a.text())
```

```python
import sys, math, os, struct
from asmlib import *
STAMP = os.environ.get('STAMP') == '1'
SPIN = int(os.environ.get('SPIN', '200000'))

KN = 'gated_mix__sliding_local_dilated__linear_kernel_hedgehog__prompt_kernel'
WS_OA = 0
WS_OB = 2 << 20
WS_G = 4 << 20
WS_KVP = 5 << 20
WS_FL = 6 << 20
WS_ST = 7 << 20
WS_SIZE = 8 << 20
LOG2E = 1.4426950408889634
def f2u(x): return struct.unpack('<I', struct.pack('<f', x))[0]

SLOT_A = 18432 + 24576
SLOT_B = 32768
L_PT = 98304
L_VF = 133120
L_GATE = 149504
L_KVL = 150528
L_RED = 114688
LDS = 158720

a = Asm()
a.raw(f'; @launch grid=(256,1,1) block=(512,1,1) lds={LDS}')
a.raw('.amdgcn_target "amdgcn-amd-amdhsa--gfx950"')
a.raw('.text')
a.raw(f'.globl {KN}')
a.raw('.p2align 8')
a.raw(f'.type {KN},@function')
a.label(KN, pad=False)

SX, SW, SWS, SPHI, SGATE, SDBG, SWOA, SWOB, SOUT = 8, 12, 16, 20, 24, 28, 72, 76, 80
S_RB, S_HP, S_BR, S_WAVE, S_ROT, S_NONCE = 32, 33, 34, 35, 48, 49
S_J, S_PI, S_HH = 50, 51, 52
S_PT, S_NB, S_WORK = 46, 47, 45
M48 = 84
VT0, VT1, VNON = 248, 249, 247

def srd(dst, lo, size):
    a(f's_mov_b32 s{dst}, s{lo}')
    a(f's_and_b32 s{dst+1}, s{lo+1}, 0xffff')
    a(f's_mov_b32 s{dst+2}, {size}')
    a(f's_mov_b32 s{dst+3}, 0x00020000')
def R(s): return f's[{s}:{s+3}]'

def dstamp():
    if STAMP:
        a('s_memtime s[98:99]' if os.environ.get('CYC') else 's_memrealtime s[98:99]')
        a('s_waitcnt lgkmcnt(0)')
        a('v_cmp_eq_u32 vcc, s97, v0')
        a('v_mov_b32 v251, s98')
        a('v_cndmask_b32 v250, v250, v251, vcc')
        a('s_add_u32 s97, s97, 1')
def stamp(n):
    if STAMP:
        a('s_memrealtime s[98:99]')
        a('s_waitcnt lgkmcnt(0)')
        a(f'v_writelane_b32 v250, s98, {n}')

a('s_cmp_ge_u32 s2, 256')
a('s_cbranch_scc1 L_EXIT')
a('s_load_dwordx8 s[36:43], s[0:1], 0')
a('s_load_dwordx8 s[56:63], s[0:1], 32')
a('s_load_dwordx4 s[64:67], s[0:1], 64')
a('s_load_dwordx2 s[44:45], s[0:1], 80')
if STAMP:
    a('v_mov_b32 v250, 0')
    a('s_mov_b32 s97, 16')
    a('s_memrealtime s[98:99]')
a('v_lshrrev_b32 v1, 6, v0')
a('v_and_b32 v0, 63, v0')
a(f'v_readfirstlane_b32 s{S_WAVE}, v1')
a('s_and_b32 s3, s2, 7')
a('s_lshr_b32 s7, s2, 3')
a('s_and_b32 s4, s7, 15')
a(f's_lshr_b32 s{S_BR}, s2, 7')
a('s_and_b32 s5, s3, 3')
a('s_lshl_b32 s5, s5, 2')
a('s_and_b32 s6, s4, 3')
a(f's_add_u32 s{S_RB}, s5, s6')
a('s_lshr_b32 s5, s3, 2')
a('s_lshl_b32 s5, s5, 2')
a('s_lshr_b32 s6, s4, 2')
a(f's_add_u32 s{S_HP}, s5, s6')
a(f's_mul_i32 s5, s{S_HP}, 3')
a(f's_add_u32 s5, s5, s{S_RB}')
a(f's_mul_i32 s6, s{S_BR}, 5')
a('s_add_u32 s5, s5, s6')
a('s_mul_i32 s6, s5, 37')
a('s_lshr_b32 s6, s6, 8')
a('s_mul_i32 s6, s6, 7')
a(f's_sub_u32 s{S_ROT}, s5, s6')
a('s_xor_b32 s7, s7, 16')
a('s_mul_i32 s5, s7, 37')
a('s_lshr_b32 s5, s5, 8')
a('s_mul_i32 s6, s5, 7')
a(f's_sub_u32 s{S_NB}, s7, s6')
a('s_lshl_b32 s3, s3, 2')
a(f's_add_u32 s{S_PT}, s3, s5')
a(f's_and_b32 s{S_J}, s{S_WAVE}, 1')
a(f's_lshr_b32 s{S_PI}, s{S_WAVE}, 1')
a(f's_and_b32 s{S_PI}, s{S_PI}, 1')
a(f's_lshr_b32 s{S_HH}, s{S_WAVE}, 2')
a('v_lshrrev_b32 v3, 3, v0')
a('v_and_b32 v4, 7, v0')
a('v_lshrrev_b32 v5, 1, v3')
a('v_xor_b32 v16, v4, v5')
a('v_lshlrev_b32 v16, 4, v16')
a('v_mul_u32_u24 v6, 1792, v3')
a('v_xor_b32 v17, 64, v16')
a('v_add_u32 v16, v16, v6')
a('v_add_u32 v17, v17, v6')
a('v_add_u32 v17, 14336, v17')
a('v_and_b32 v7, 1, v5')
a('v_lshlrev_b32 v7, 1, v7')
a(f's_lshl_b32 s53, s{S_J}, 2')
a('v_add_u32 v7, s53, v7')
a('v_xor_b32 v18, v4, v7')
a('v_min_u32 v18, 6, v18')
a('v_lshlrev_b32 v18, 4, v18')
a(f's_lshl_b32 s53, s{S_WAVE}, 3')
a('v_add_u32 v7, s53, v3')
a('v_mul_u32_u24 v7, 2688, v7')
a('v_add_u32 v18, v18, v7')
a(f's_and_b32 s54, s{S_WAVE}, 3')
a('s_add_u32 s53, s54, 4')
a('v_xor_b32 v19, s53, v4')
a('v_lshlrev_b32 v19, 4, v19')
a('v_add_u32 v19, v19, v6')
a('s_lshl_b32 s53, s54, 1')
a('s_add_u32 s53, s53, 8')
a('s_mul_i32 s53, s53, 1792')
a('v_add_u32 v19, s53, v19')
a(f's_lshl_b32 s55, s{S_RB}, 7')
a('s_max_u32 s86, s55, 32')
a('s_sub_u32 s86, s86, 32')
a(f's_add_u32 s86, s86, s{S_HH}')
a('s_mul_i32 s86, s86, 896')
a('s_lshl_b32 s53, s54, 5')
a('s_add_u32 s55, s55, s53')
a(f's_add_u32 s55, s55, s{S_HH}')
a('s_mul_i32 s55, s55, 896')
a(f's_mul_i32 s87, s{S_HP}, 112')
a('v_and_b32 v1, 15, v0')
a('v_lshrrev_b32 v2, 4, v0')
a('s_waitcnt lgkmcnt(0)')
if STAMP: a('v_writelane_b32 v250, s98, 0')
srd(SX, 36, 2048 * 896)
a(f's_cmp_eq_u32 s{S_BR}, 1')
a('s_cselect_b32 s4, s38, s56')
a('s_cselect_b32 s5, s39, s57')
srd(SW, 4, 448 * 2688)
srd(SWS, 44, WS_SIZE)
srd(SPHI, 58, 16 * 28 * 28 * 2)
srd(SGATE, 62, 896)
srd(SDBG, 66, 256)
srd(SWOA, 40, 448 * 896)
srd(SWOB, 60, 448 * 896)
srd(SOUT, 64, 2048 * 896)
a(f's_mov_b32 s{S_WORK}, s7')
a(f's_mov_b32 s60, s{S_ROT}')
a(f's_cmp_eq_u32 s{S_BR}, 1')
a('s_cbranch_scc1 L_A')

def frag_addr_setup():
    a(f'v_cmp_le_u32 s[{M48}:{M48+1}], 48, v0')
    a('v_lshrrev_b32 v3, 2, v1')
    a('v_and_b32 v10, 3, v0')
    a('v_lshl_add_u32 v11, v2, 3, v3')
    a('v_lshlrev_b32 v11, 7, v11')
    a('v_lshrrev_b32 v12, 1, v3')
    a('v_lshlrev_b32 v12, 1, v12')
    a('v_and_b32 v13, 1, v2')
    a('v_lshl_add_u32 v12, v13, 2, v12')
    a(f's_mul_i32 s53, s{S_J}, 56')
    a('v_lshlrev_b32 v13, 3, v10')
    a('v_add_u32 v13, s53, v13')
    for dt in range(2):
        if dt: a('v_add_u32 v13, 32, v13')
        a('v_lshrrev_b32 v14, 4, v13')
        a('v_xor_b32 v14, v14, v12')
        a('v_lshlrev_b32 v14, 4, v14')
        a('v_and_b32 v15, 8, v13')
        a(f'v_add3_u32 v{8+dt}, v11, v14, v15')
    a('v_lshrrev_b32 v3, 1, v1')
    a('v_xor_b32 v4, v2, v3')
    a('v_lshlrev_b32 v4, 4, v4')
    a('v_lshl_add_u32 v4, v1, 7, v4')

def dma_groups(halo, wblocks, XDST, HDST, WDST):
    G = []
    g = ['s_lshl_b32 s62, s60, 7']
    if halo: g.append('s_add_u32 s63, s62, s86')
    g += ['s_add_u32 s62, s62, s55', 's_mul_i32 s64, s60, 172032', 's_add_u32 s64, s64, s87', 's_add_u32 s60, s60, 1',
          's_cmp_eq_u32 s60, 7', 's_cselect_b32 s60, 0, s60', f's_add_u32 s65, s{XDST}, s61', f's_add_u32 s94, s{WDST}, s61']
    if halo: g.append(f's_add_u32 s95, s{HDST}, s61')
    g += ['s_add_u32 s61, s61, s68', 's_cmp_eq_u32 s61, s69', 's_cselect_b32 s61, 0, s61']
    g += ['s_mov_b32 m0, s65', f'buffer_load_dwordx4 v16, {R(SX)}, s62 offen lds']
    G.append(g)
    G.append(['s_add_u32 m0, s65, 1024', f'buffer_load_dwordx4 v17, {R(SX)}, s62 offen lds'])
    if halo:
        G.append(['s_mov_b32 m0, s95', 's_mov_b64 exec, 0xffff', f'buffer_load_dwordx4 v19, {R(SX)}, s63 offen lds', 's_mov_b64 exec, -1'])
    for n, b in enumerate(wblocks):
        g = []
        if b: g.append(f's_add_u32 s66, s64, {b*896}')
        g += [f's_add_u32 m0, s94, {n*8192}', f'buffer_load_dwordx4 v18, {R(SW)}, s{66 if b else 64} offen lds']
        G.append(g)
    return G
def issue(G):
    for g in G:
        for i in g: a(i)
def ring_init(SLOT):
    a(f's_mov_b32 s68, {SLOT}')
    a(f's_mov_b32 s69, {3*SLOT}')
    a('s_mov_b32 s61, 0')

def emit_mix(M, Rr, G):
    nr = (len(Rr) + 1) // 2
    rest = max(len(M) - nr, 1)
    for n, m in enumerate(M):
        a(m)
        for r in Rr[2 * n:2 * n + 2]: a(r)
        if n >= len(M) - rest:
            k = n - (len(M) - rest)
            for g in G[(k * len(G)) // rest:((k + 1) * len(G)) // rest]:
                for i in g: a(i)
    for r in Rr[2 * len(M):]: a(r)

def main_loop(tag, SLOT, groups, reads, mfmas, addr_regs, F0, F1, extra_adv=None):
    nops = len(groups())
    dstamp()
    a(f's_waitcnt vmcnt({nops})')
    a('s_barrier')
    dstamp()
    for r in reads(F0): a(r)
    issue(groups())
    a('s_mov_b32 s67, 0')
    a('s_mov_b32 s70, 0')
    def body(cur, nxt, wait_n, G, last=False):
        a('s_add_u32 s70, s70, s68')
        a('s_cmp_eq_u32 s70, s69')
        a('s_cselect_b32 s70, 0, s70')
        a(f's_cselect_b32 s53, {-2*SLOT & 0xffffffff}, s68')
        a('s_waitcnt lgkmcnt(0)')
        if not last:
            for r in addr_regs: a(f'v_add_u32 v{r}, s53, v{r}')
            if extra_adv: extra_adv()
        if wait_n is not None: a(f's_waitcnt vmcnt({wait_n})')
        a('s_barrier')
        dstamp()
        emit_mix(mfmas(cur), [] if last else reads(nxt), G)
    a.label(f'L_LOOP_{tag}')
    body(F0, F1, nops, groups())
    body(F1, F0, nops, groups())
    a('s_add_u32 s67, s67, 1')
    a('s_cmp_lt_u32 s67, 2')
    a(f's_cbranch_scc1 L_LOOP_{tag}')
    body(F0, F1, nops, [])
    body(F1, F0, 0, [])
    body(F0, F1, None, [], last=True)

def xlane4(op, m):
    m0, m1, m2, m3 = m
    a(f'v_permlane32_swap_b32 v{m0}, v{m1}')
    a(f'v_permlane32_swap_b32 v{m2}, v{m3}')
    a(f'{op} v{m0}, v{m0}, v{m1}')
    a(f'{op} v{m2}, v{m2}, v{m3}')
    a(f'v_permlane16_swap_b32 v{m0}, v{m2}')
    a(f'{op} v{m0}, v{m0}, v{m2}')
    a(f'v_mov_b32 v{m2}, v{m0}')
    a(f'v_permlane16_swap_b32 v{m0}, v{m2}')
    a(f'v_mov_b32 v{m1}, v{m0}')
    a(f'v_mov_b32 v{m3}, v{m2}')
    a(f'v_permlane32_swap_b32 v{m0}, v{m1}')
    a(f'v_permlane32_swap_b32 v{m2}, v{m3}')
def xlane2(op, m0, m1):
    a(f'v_permlane32_swap_b32 v{m0}, v{m1}')
    a(f'{op} v{m0}, v{m0}, v{m1}')
    a(f'v_mov_b32 v{m1}, v{m0}')
    a(f'v_permlane16_swap_b32 v{m0}, v{m1}')
    a(f'{op} v{m0}, v{m0}, v{m1}')
    a(f'v_mov_b32 v{m1}, v{m0}')
    a(f'v_permlane32_swap_b32 v{m0}, v{m1}')
def cvt4(dst, s0, s1):
    a(f'v_cvt_pk_bf16_f32 v{dst}, v{s0}, v{s0+1}')
    a(f'v_cvt_pk_bf16_f32 v{dst+1}, v{s0+2}, v{s0+3}')
    a(f'v_cvt_pk_bf16_f32 v{dst+2}, v{s1}, v{s1+1}')
    a(f'v_cvt_pk_bf16_f32 v{dst+3}, v{s1+2}, v{s1+3}')
def zero_pad(r):
    a(f'v_cndmask_b32_e64 v{r+2}, v{r+2}, 0, s[{M48}:{M48+1}]')
    a(f'v_cndmask_b32_e64 v{r+3}, v{r+3}, 0, s[{M48}:{M48+1}]')

uid = [0]
def nonce_prefetch():
    a(f'v_mov_b32 v{VT0}, 0')
    a(f'buffer_load_dword v{VNON}, v{VT0}, {R(SDBG)}, 0 offen sc1')
def nonce_resolve():
    uid[0] += 1; u = uid[0]
    a('s_mov_b32 s92, 0')
    a.label(f'L_GN_{u}')
    a(f'v_readfirstlane_b32 s{S_NONCE}, v{VNON}')
    a(f's_cmp_lg_u32 s{S_NONCE}, 0')
    a(f's_cbranch_scc1 L_GNX_{u}')
    a('s_sleep 2')
    nonce_prefetch()
    a('s_waitcnt vmcnt(0)')
    a('s_add_u32 s92, s92, 1')
    a(f's_cmp_lt_u32 s92, {SPIN}')
    a(f's_cbranch_scc1 L_GN_{u}')
    a.label(f'L_GNX_{u}')
def set_flag(off_sgpr):
    a(f'v_mov_b32 v{VT0}, 0')
    a(f'v_mov_b32 v{VT1}, s{S_NONCE}')
    a('s_mov_b64 exec, 1')
    a(f'buffer_store_dword v{VT1}, v{VT0}, {R(SWS)}, s{off_sgpr} offen sc1')
    a('s_mov_b64 exec, -1')
def poll(off_sgpr, mask):
    uid[0] += 1; u = uid[0]
    a(f'v_lshlrev_b32 v{VT0}, 2, v1')
    a('s_mov_b32 s92, 0')
    a.label(f'L_PL_{u}')
    a(f'buffer_load_dword v{VT1}, v{VT0}, {R(SWS)}, s{off_sgpr} offen sc1')
    a('s_waitcnt vmcnt(0)')
    a(f'v_cmp_eq_u32 vcc, s{S_NONCE}, v{VT1}')
    a(f's_and_b32 s93, vcc_lo, {mask}')
    a(f's_cmp_eq_u32 s93, {mask}')
    a(f's_cbranch_scc1 L_PLX_{u}')
    a('s_sleep 1')
    a('s_add_u32 s92, s92, 1')
    a(f's_cmp_lt_u32 s92, {SPIN}')
    a(f's_cbranch_scc1 L_PL_{u}')
    a.label(f'L_PLX_{u}')

def wo_dma():
    uid[0] += 1; u = uid[0]
    a(f's_cmp_ge_u32 s{S_WORK}, 28')
    a(f's_cbranch_scc1 L_NOWO_{u}')
    a(f'v_lshrrev_b32 v{VT0}, 3, v0')
    a(f'v_and_b32 v{VT1}, 7, v0')
    a(f'v_and_b32 v246, 6, v{VT0}')
    a(f'v_xor_b32 v{VT1}, v{VT1}, v246')
    a(f'v_lshlrev_b32 v{VT1}, 4, v{VT1}')
    a(f'v_mul_u32_u24 v{VT0}, 896, v{VT0}')
    a(f'v_add_u32 v{VT0}, v{VT0}, v{VT1}')
    a(f's_mul_i32 s53, s{S_WAVE}, 50176')
    a(f's_lshl_b32 s54, s{S_NB}, 7')
    a('s_add_u32 s53, s53, s54')
    a(f's_mul_i32 s54, s{S_WAVE}, 7168')
    for br in range(2):
        for n in range(7):
            a(f's_add_u32 m0, s54, {br*57344 + n*1024}')
            a(f's_add_u32 s62, s53, {n*7168}')
            a(f'buffer_load_dwordx4 v{VT0}, {R(SWOA if br == 0 else SWOB)}, s62 offen lds')
    a.label(f'L_NOWO_{u}')

def oflag_offset(base_group, dst):
    a(f's_lshl_b32 s{dst}, s{S_RB}, 1')
    a(f's_add_u32 s{dst}, s{dst}, s{S_PI}')
    a(f's_lshl_b32 s{dst}, s{dst}, 1')
    a(f's_add_u32 s{dst}, s{dst}, s{S_HH}')
    a(f's_lshl_b32 s{dst}, s{dst}, 8')
    a(f's_lshl_b32 s53, s{S_HP}, 3')
    a(f's_add_u32 s{dst}, s{dst}, s53')
    a(f's_lshl_b32 s53, s{S_J}, 2')
    a(f's_add_u32 s{dst}, s{dst}, s53')
    a(f's_add_u32 s{dst}, s{dst}, {WS_FL + base_group*256}')

a(f's_lshl_b32 s58, s{S_WAVE}, 11')
a(f's_lshl_b32 s59, s{S_WAVE}, 10')
a('s_add_u32 s59, s59, 16384')
def grpB1(): return dma_groups(False, (1, 2), 58, None, 59)
def grpB2(): return dma_groups(False, (0,), 58, None, 59)
ring_init(SLOT_B)
issue(grpB1())
PHL = 200
a(f's_lshl_b32 s53, s{S_HP}, 1')
a(f's_add_u32 s53, s53, s{S_J}')
a('s_mul_i32 s53, s53, 1568')
a('v_mul_u32_u24 v5, 224, v2')
a('v_lshl_add_u32 v3, v1, 1, v5')
a('v_add_u32 v6, 16, v1')
a('v_min_u32 v6, 27, v6')
a('v_lshl_add_u32 v6, v6, 1, v5')
issue(grpB1())
frag_addr_setup_done = False
BF0, BF1, BACC = 20, 68, 116
for ft, vo in ((0, 3), (1, 6)):
    for j in range(8):
        d = j if j < 4 else 16 + (j - 4)
        a(f'buffer_load_ushort v{PHL+ft*8+j}, v{vo}, {R(SPHI)}, s53 offen offset:{d*56}')
a(f's_cmp_lg_u32 s{S_WAVE}, 7')
a('s_cbranch_scc1 L_B_NOGATE')
a('v_lshlrev_b32 v3, 4, v0')
a(f's_mov_b32 m0, {L_GATE}')
a(f'buffer_load_dwordx4 v3, {R(SGATE)}, 0 offen lds')
a.label('L_B_NOGATE')
frag_addr_setup()
a(f's_lshl_b32 s53, s{S_PI}, 13')
a(f's_lshl_b32 s54, s{S_HH}, 12')
a('s_add_u32 s53, s53, s54')
a('v_add_u32 v4, s53, v4')
a('v_xor_b32 v5, 64, v4')
a('v_add_u32 v8, 16384, v8')
a('v_add_u32 v9, 16384, v9')
for r in range(BACC, BACC + 32): a(f'v_mov_b32 v{r}, 0')
def readsB1(F):
    L = []
    for ks in range(2):
        Fk = F + 24 * ks
        L += [f'ds_read_b128 {vr(Fk+4*t,4)}, v{4+ks} offset:{t*2048}' for t in range(2)]
        for b in range(2):
            for dt in range(2):
                for h2 in range(2):
                    L.append(f'ds_read_b64_tr_b16 {vr(Fk+8+(b*2+dt)*4+h2*2,2)}, v{8+dt} offset:{b*8192+(32*ks+4*h2)*128}')
    return L
def mfmasB1(F):
    L = []
    for ks in range(2):
        Fk = F + 24 * ks
        for t in range(2):
            for dt in range(2):
                c = vr(BACC + (t * 2 + dt) * 4, 4); L.append(f'v_mfma_f32_16x16x32_bf16 {c}, {vr(Fk+8+dt*4,4)}, {vr(Fk+4*t,4)}, {c}')
        for t in range(2):
            for dt in range(2):
                c = vr(BACC + 16 + (t * 2 + dt) * 4, 4); L.append(f'v_mfma_f32_16x16x32_bf16 {c}, {vr(Fk+4*t,4)}, {vr(Fk+8+(2+dt)*4,4)}, {c}')
    return L
B0_RELAX = 4 + 16
_orig_a = a
main_loop_first_wait = [None]
def main_loop_B1():
    nops = 4
    pass
mark = len(a.lines)
main_loop('B1', SLOT_B, grpB1, readsB1, mfmasB1, (4, 5, 8, 9), BF0, BF1)
for i in range(mark, len(a.lines)):
    if a.lines[i].strip() == 's_waitcnt vmcnt(4)':
        a.lines[i] = f'    s_waitcnt vmcnt({B0_RELAX})'
        break
stamp(1)
a(f's_mov_b32 s60, s{S_ROT}')
a('s_mov_b32 s61, 0')
nonce_prefetch()
issue(grpB2())
issue(grpB2())
WP = 216
for ft in range(2):
    for jj in range(4):
        a(f'v_lshl_or_b32 v{WP+ft*4+jj}, v{PHL+ft*8+2*jj+1}, 16, v{PHL+ft*8+2*jj}')
    zero_pad(WP + ft * 4)
a('v_cmp_eq_u32 s[88:89], 12, v1')
a('v_mov_b32 v10, 0xff800000')
a(f's_mov_b32 s90, {f2u(LOG2E):#x}')
ONES = 12
for r in range(4): a(f'v_mov_b32 v{ONES+r}, 0x3f803f80')
XP_, PK, ST, E, EP, SUM = 148, 156, 172, 20, 224, 180
def hedgehog(accbase):
    for t in range(2):
        cvt4(XP_ + 4 * t, accbase + t * 8, accbase + t * 8 + 4)
    for t in range(2):
        for ft in range(2):
            a(f'v_mfma_f32_16x16x32_bf16 {vr(PK+8*t+4*ft,4)}, {vr(WP+4*ft,4)}, {vr(XP_+4*t,4)}, 0')
    for t in range(2):
        s = PK + 8 * t
        for n, d in (('', ST + t), ('-', ST + 2 + t)):
            a(f'v_max3_f32 v{d}, {n}v{s}, {n}v{s+1}, {n}v{s+2}')
            a(f'v_max3_f32 v{d}, v{d}, {n}v{s+3}, {n}v{s+4}')
            a(f'v_max3_f32 v{d}, v{d}, {n}v{s+5}, {n}v{s+6}')
            a(f'v_max_f32_e64 v{d}, v{d}, {n}v{s+7}')
    xlane4('v_max_f32', [ST, ST + 1, ST + 2, ST + 3])
    for q in range(4):
        a(f'v_mul_f32_e64 v{ST+q}, -s90, v{ST+q}')
        a(f'v_cndmask_b32_e64 v{ST+4+q}, v{ST+q}, v10, s[{M48}:{M48+1}]')
    for sg in range(2):
        for t in range(2):
            for ft in range(2):
                for r in range(4):
                    p = PK + 8 * t + 4 * ft + r
                    a(f'v_fma_f32 v{E+16*sg+8*t+4*ft+r}, {"-" if sg else ""}v{p}, s90, v{ST+4*ft+2*sg+t}')
            for r in range(8):
                a(f'v_exp_f32 v{E+16*sg+8*t+r}, v{E+16*sg+8*t+r}')
            q = 2 * sg + t
            cvt4(EP + 4 * q, E + 8 * q, E + 8 * q + 4)
            a(f'v_mfma_f32_16x16x32_bf16 {vr(SUM+4*q,4)}, {vr(ONES,4)}, {vr(EP+4*q,4)}, 0')
    for q in range(4):
        a(f'v_rcp_f32 v{SUM+4*q}, v{SUM+4*q}')
    for q in range(4):
        for r in range(0, 8, 2):
            a(f'v_pk_mul_f32 {vr(E+8*q+r,2)}, {vr(E+8*q+r,2)}, {vr(SUM+4*q,2)} op_sel_hi:[1,0]')
        cvt4(EP + 4 * q, E + 8 * q, E + 8 * q + 4)
VB = 200
for dt in range(2):
    cvt4(VB + 4 * dt, BACC + 16 + dt * 4, BACC + 16 + (2 + dt) * 4)
for r in range(4):
    a(f'v_cndmask_b32_e64 v{VB+4+r}, v{VB+4+r}, v{ONES}, s[88:89]')
a(f's_lshr_b32 s53, s{S_WAVE}, 1')
a(f's_lshl_b32 s54, s{S_J}, 13')
a('s_lshl_b32 s62, s53, 11')
a('s_add_u32 s54, s54, s62')
a(f's_add_u32 s54, s54, {L_VF}')
a('v_lshlrev_b32 v11, 4, v0')
a('v_add_u32 v3, s54, v11')
for dt in range(2):
    a(f'ds_write_b128 v3, {vr(VB+4*dt,4)} offset:{dt*1024}')
hedgehog(BACC)
a(f's_mul_i32 s54, s{S_J}, 17408')
a(f's_add_u32 s54, s54, {L_PT}')
a('s_mul_i32 s62, s53, 4352')
a('s_add_u32 s62, s62, s54')
a('v_mul_u32_u24 v3, 136, v1')
a('v_lshl_add_u32 v3, v2, 3, v3')
a('v_add_u32 v3, s62, v3')
for sg in range(2):
    for t in range(2):
        for ft in range(2):
            a(f'ds_write_b64 v3, {vr(EP+(sg*2+t)*4+2*ft,2)} offset:{t*16*136 + sg*64 + ft*32}')
a('v_lshrrev_b32 v6, 2, v1')
a('v_lshl_add_u32 v6, v2, 2, v6')
a('v_mul_u32_u24 v6, 136, v6')
a('v_and_b32 v7, 3, v0')
a('v_lshl_add_u32 v6, v7, 3, v6')
a('s_lshl_b32 s62, s53, 5')
a('s_add_u32 s62, s62, s54')
a('v_add_u32 v6, s62, v6')
a(f's_lshl_b32 s54, s{S_J}, 13')
a(f's_add_u32 s54, s54, {L_VF}')
a('v_add_u32 v7, s54, v11')
a('s_waitcnt lgkmcnt(0)')
a('s_barrier')
ET, VG, KV = 20, 36, 68
for u in range(4):
    for hh in range(2):
        a(f'ds_read_b64_tr_b16 {vr(ET+4*u+2*hh,2)}, v6 offset:{(u*32+hh*16)*136}')
    for dt in range(2):
        a(f'ds_read_b128 {vr(VG+(u*2+dt)*4,4)}, v7 offset:{(u*2+dt)*1024}')
a(f's_lshl_b32 s53, s{S_HP}, 4')
a(f's_add_u32 s53, s53, s{S_RB}')
a('s_lshl_b32 s53, s53, 3')
a(f's_add_u32 s53, s53, s{S_WAVE}')
a('s_lshl_b32 s53, s53, 10')
a(f's_add_u32 s53, s53, {WS_KVP}')
for u in range(4):
    a(f's_waitcnt lgkmcnt({4*(3-u)})')
    for dt in range(2):
        c = vr(KV + 4 * dt, 4)
        a(f'v_mfma_f32_16x16x32_bf16 {c}, {vr(ET+4*u,4)}, {vr(VG+(u*2+dt)*4,4)}, {c if u else 0}')
cvt4(76, KV, KV + 4)
a(f'buffer_store_dwordx4 v[76:79], v11, {R(SWS)}, s53 offen sc1')
a(f's_lshl_b32 s91, s{S_HP}, 3')
a(f's_add_u32 s91, s91, s{S_WAVE}')
a('s_lshl_b32 s91, s91, 8')
a(f's_add_u32 s91, s91, {WS_FL}')
a(f's_lshl_b32 s54, s{S_RB}, 2')
a('s_add_u32 s62, s91, s54')
for r in range(BACC, BACC + 24): a(f'v_mov_b32 v{r}, 0')
a(f's_lshl_b32 s53, s{S_ROT}, 7')
a(f's_add_u32 s53, s53, {L_GATE}')
a('v_lshlrev_b32 v6, 4, v2')
a('v_add_u32 v6, s53, v6')
a(f's_mov_b32 s71, s{S_ROT}')
a('s_waitcnt vmcnt(0)')
nonce_resolve()
set_flag(62)
stamp(2)
def readsB2(F):
    L = []
    for ks in range(2):
        Fk = F + 24 * ks
        L += [f'ds_read_b128 {vr(Fk+4*t,4)}, v{4+ks} offset:{t*2048}' for t in range(2)]
        for dt in range(2):
            for h2 in range(2):
                L.append(f'ds_read_b64_tr_b16 {vr(Fk+8+dt*4+h2*2,2)}, v{8+dt} offset:{(32*ks+4*h2)*128}')
        L.append(f'ds_read_b128 {vr(Fk+16,4)}, v6 offset:{ks*64}')
    return L
def mfmasB2(F):
    L = []
    for ks in range(2):
        Fk = F + 24 * ks
        for t in range(2):
            for dt in range(2):
                c = vr(BACC + (t * 2 + dt) * 4, 4); L.append(f'v_mfma_f32_16x16x32_bf16 {c}, {vr(Fk+8+dt*4,4)}, {vr(Fk+4*t,4)}, {c}')
        for t in range(2):
            c = vr(BACC + 16 + t * 4, 4); L.append(f'v_mfma_f32_16x16x32_bf16 {c}, {vr(Fk+16,4)}, {vr(Fk+4*t,4)}, {c}')
    return L
def advB2():
    a('s_add_u32 s71, s71, 1')
    a('s_cmp_eq_u32 s71, 7')
    a('s_movk_i32 s53, 128')
    a('s_movk_i32 s54, -768')
    a('s_cselect_b32 s53, s54, s53')
    a('s_cselect_b32 s71, 0, s71')
    a('v_add_u32 v6, s53, v6')
main_loop('B2', SLOT_B, grpB2, readsB2, mfmasB2, (4, 5, 8, 9), BF0, BF1, advB2)
stamp(3)
wo_dma()
hedgehog(BACC)
GS = BACC + 16
for t in range(2):
    a(f'v_mul_f32 v{GS+4*t}, s90, v{GS+4*t}')
    a(f'v_exp_f32 v{GS+4*t}, -v{GS+4*t}')
    a(f'v_add_f32 v{GS+4*t}, 1.0, v{GS+4*t}')
    a(f'v_rcp_f32 v{GS+4*t}, v{GS+4*t}')
    a(f'v_sub_f32 v{GS+4*t+1}, 1.0, v{GS+4*t}')
a(f's_lshl_b32 s63, s{S_RB}, 1')
a(f's_add_u32 s63, s63, s{S_PI}')
a('s_lshl_b32 s63, s63, 2')
a(f's_lshl_b32 s53, s{S_HH}, 1')
a('s_add_u32 s63, s63, s53')
a(f's_lshl_b32 s64, s{S_HP}, 1')
a(f's_add_u32 s64, s64, s{S_J}')
a('s_cmp_lg_u32 s64, 0')
a('s_cbranch_scc1 L_B_NOG')
a('s_lshl_b32 s53, s63, 8')
a(f's_add_u32 s53, s53, {WS_G}')
a('v_lshlrev_b32 v3, 2, v0')
for t in range(2):
    a(f'buffer_store_dword v{GS+4*t}, v3, {R(SWS)}, s53 offen offset:{t*256} sc1')
a.label('L_B_NOG')
poll(91, '0xffff')
stamp(4)
a(f's_lshl_b32 s53, s{S_HP}, 17')
a(f's_lshl_b32 s54, s{S_WAVE}, 10')
a('s_add_u32 s53, s53, s54')
a(f's_add_u32 s53, s53, {WS_KVP}')
PL = 20
for p in range(16):
    a(f'buffer_load_dwordx4 {vr(PL+4*p,4)}, v11, {R(SWS)}, s53 offen sc1')
    a('s_add_u32 s53, s53, 8192')
a('v_mov_b32 v84, 0x3f80')
a('v_mov_b32 v85, 0x3f800000')
RS = 148
for r in range(8): a(f'v_mov_b32 v{RS+r}, 0')
a(f's_lshr_b32 s53, s{S_WAVE}, 1')
a('s_lshr_b32 s54, s53, 1')
a('s_lshl_b32 s54, s54, 11')
a('s_and_b32 s53, s53, 1')
a('s_lshl_b32 s53, s53, 3')
a('s_add_u32 s53, s53, s54')
a(f's_lshl_b32 s54, s{S_J}, 12')
a(f's_add_u32 s54, s54, {L_KVL}')
a('s_add_u32 s53, s53, s54')
a('v_add_u32 v3, s53, v11')
a('v_add_u32 v5, s54, v11')
for p in range(16):
    a(f's_waitcnt vmcnt({15-p})')
    for d in range(4):
        a(f'v_dot2_f32_bf16 v{RS+2*d}, v{PL+4*p+d}, v84, v{RS+2*d}')
        a(f'v_dot2_f32_bf16 v{RS+2*d+1}, v{PL+4*p+d}, v85, v{RS+2*d+1}')
a('s_nop 2')
cvt4(156, RS, RS + 4)
a('ds_write_b64 v3, v[156:157]')
a('ds_write_b64 v3, v[158:159] offset:1024')
a('s_waitcnt lgkmcnt(0)')
a('s_barrier')
KF = 160
for q in range(4):
    a(f'ds_read_b128 {vr(KF+4*q,4)}, v5 offset:{q*1024}')
a(f's_mov_b32 s91, {f2u(1e-6):#x}')
a('s_lshl_b32 s65, s63, 4')
a('s_add_u32 s65, s65, s64')
a('s_lshl_b32 s65, s65, 10')
a(f's_add_u32 s65, s65, {WS_OB}')
oflag_offset(128, 62)
a('s_waitcnt lgkmcnt(0)')
OB = 176
for t in range(2):
    for dt in range(2):
        c = vr(OB + (t * 2 + dt) * 4, 4)
        a(f'v_mfma_f32_16x16x32_bf16 {c}, {vr(KF+dt*4,4)}, {vr(EP+t*4,4)}, 0')
for t in range(2):
    for dt in range(2):
        c = vr(OB + (t * 2 + dt) * 4, 4)
        a(f'v_mfma_f32_16x16x32_bf16 {c}, {vr(KF+(2+dt)*4,4)}, {vr(EP+(2+t)*4,4)}, {c}')
a(f'v_mov_b32 v192, v{OB+4}')
a(f'v_mov_b32 v193, v{OB+12}')
a('v_permlane32_swap_b32 v192, v193')
a('v_mov_b32 v192, v193')
a('v_permlane16_swap_b32 v193, v192')
a('v_add_f32 v192, s91, v192')
a('v_rcp_f32 v192, v192')
a('v_mov_b32 v193, v192')
a('v_permlane32_swap_b32 v192, v193')
for t in range(2):
    o = OB + 8 * t
    a(f'v_mul_f32 v{192+t}, v{192+t}, v{GS+4*t+1}')
    for r in range(8): a(f'v_mul_f32 v{o+r}, v{o+r}, v{192+t}')
    cvt4(196 + 4 * t, o, o + 4)
    zero_pad(196 + 4 * t)
    a(f'buffer_store_dwordx4 {vr(196+4*t,4)}, v11, {R(SWS)}, s65 offen sc1')
    a('s_add_u32 s65, s65, 16384')
a('s_waitcnt vmcnt(0)')
set_flag(62)
stamp(5)
a('s_branch L_P2')

a.label('L_A')
a('s_cmp_lg_u32 s2, 255')
a('s_cbranch_scc1 L_A_NOSCAN')
a(f's_cmp_lg_u32 s{S_WAVE}, 7')
a('s_cbranch_scc1 L_A_NOSCAN')
a('v_lshrrev_b32 v3, 2, v0')
a('v_lshlrev_b32 v3, 8, v3')
a('v_and_b32 v4, 3, v0')
a('v_lshl_add_u32 v3, v4, 4, v3')
a(f's_mov_b32 s53, {WS_FL}')
for n in range(12):
    a(f'buffer_load_dwordx4 {vr(100+4*n,4)}, v3, {R(SWS)}, s53 offen sc1')
    a('s_add_u32 s53, s53, 4096')
a('s_memrealtime s[88:89]')
a('s_waitcnt vmcnt(0) lgkmcnt(0)')
a('s_or_b32 s88, s88, 1')
a.label('L_A_SCAN')
a('s_mov_b64 s[90:91], 0')
for n in range(48):
    a(f'v_cmp_eq_u32 vcc, s88, v{100+n}')
    a('s_or_b64 s[90:91], s[90:91], vcc')
a('s_cmp_eq_u64 s[90:91], 0')
a('s_cbranch_scc1 L_A_SCANOK')
a('s_add_u32 s88, s88, 2')
a('s_branch L_A_SCAN')
a.label('L_A_SCANOK')
a('v_mov_b32 v3, 0')
a('v_mov_b32 v5, s88')
a('s_mov_b64 exec, 1')
a(f'buffer_store_dword v5, v3, {R(SDBG)}, 0 offen sc1')
a('s_mov_b64 exec, -1')
a.label('L_A_NOSCAN')
a(f's_mul_i32 s58, s{S_HH}, 9216')
a(f's_and_b32 s54, s{S_WAVE}, 3')
a('s_lshl_b32 s71, s54, 8')
a('s_add_u32 s71, s71, s58')
a('s_lshl_b32 s53, s54, 11')
a('s_add_u32 s58, s58, s53')
a('s_add_u32 s58, s58, 1024')
a(f's_lshl_b32 s59, s{S_WAVE}, 10')
a('s_add_u32 s59, s59, 18432')
def grpA(): return dma_groups(True, (0, 1, 2), 58, 71, 59)
ring_init(SLOT_A)
issue(grpA())
issue(grpA())
frag_addr_setup()
a('v_or_b32 v3, 8, v1')
a('v_lshrrev_b32 v6, 1, v3')
a('v_xor_b32 v6, v2, v6')
a('v_lshlrev_b32 v6, 4, v6')
a('v_and_b32 v3, 7, v3')
a('v_lshl_add_u32 v6, v3, 7, v6')
a('v_add_u32 v7, 3072, v4')
a(f's_cmp_eq_u32 s{S_HH}, 1')
a('s_cselect_b64 s[88:89], -1, 0')
a('v_cndmask_b32_e64 v6, v6, v7, s[88:89]')
a(f's_mul_i32 s53, s{S_PI}, 9216')
a('v_add_u32 v6, s53, v6')
a('v_xor_b32 v7, 64, v6')
a(f's_lshl_b32 s54, s{S_HH}, 12')
a('s_add_u32 s53, s53, s54')
a('s_add_u32 s53, s53, 1024')
a('v_add_u32 v4, s53, v4')
a('v_xor_b32 v5, 64, v4')
a('v_add_u32 v8, 18432, v8')
a('v_add_u32 v9, 18432, v9')
AF0, AF1, AACC = 20, 92, 164
for r in range(AACC, AACC + 64): a(f'v_mov_b32 v{r}, 0')
def readsA(F):
    L = []
    for ks in range(2):
        Fk = F + 36 * ks
        L += [f'ds_read_b128 {vr(Fk+4+4*t,4)}, v{4+ks} offset:{t*2048}' for t in range(2)]
        L.append(f'ds_read_b128 {vr(Fk,4)}, v{6+ks}')
        for b in range(3):
            for dt in range(2):
                for h2 in range(2):
                    L.append(f'ds_read_b64_tr_b16 {vr(Fk+12+(b*2+dt)*4+h2*2,2)}, v{8+dt} offset:{b*8192+(32*ks+4*h2)*128}')
    return L
def mfmasA(F):
    L = []
    for ks in range(2):
        Fk = F + 36 * ks
        X = lambda t: vr(Fk + 4 * t, 4)
        W = lambda b, dt: vr(Fk + 12 + (b * 2 + dt) * 4, 4)
        for t in range(2):
            for dt in range(2):
                c = vr(AACC + (t * 2 + dt) * 4, 4); L.append(f'v_mfma_f32_16x16x32_bf16 {c}, {W(0,dt)}, {X(t+1)}, {c}')
        for t in range(3):
            for dt in range(2):
                c = vr(AACC + 16 + (t * 2 + dt) * 4, 4); L.append(f'v_mfma_f32_16x16x32_bf16 {c}, {W(1,dt)}, {X(t)}, {c}')
        for t in range(3):
            for dt in range(2):
                c = vr(AACC + 40 + (t * 2 + dt) * 4, 4); L.append(f'v_mfma_f32_16x16x32_bf16 {c}, {X(t)}, {W(2,dt)}, {c}')
    return L
main_loop('A', SLOT_A, grpA, readsA, mfmasA, (4, 5, 6, 7, 8, 9), AF0, AF1)
stamp(1)
nonce_prefetch()
a('v_lshlrev_b32 v3, 2, v2')
a('v_add_u32 v5, 9, v1')
for r in range(4):
    a(f'v_add_u32 v4, {r}, v3')
    a(f'v_cmp_ge_u32 s[{56+2*r}:{57+2*r}], v4, v5')
    a('v_sub_u32 v6, v1, v4')
    a(f'v_cmp_gt_u32 s[{64+2*r}:{65+2*r}], 8, v6')
a(f's_or_b32 s53, s{S_RB}, s{S_HH}')
a('s_cmp_eq_u32 s53, 0')
for r in range(4):
    a(f's_cselect_b64 s[{88+2*r}:{89+2*r}], 0, s[{56+2*r}:{57+2*r}]')
QP, KP, VP = 100, 108, 120
for t in range(2):
    cvt4(QP + 4 * t, AACC + t * 8, AACC + t * 8 + 4)
    zero_pad(QP + 4 * t)
for t in range(3):
    cvt4(KP + 4 * t, AACC + 16 + t * 8, AACC + 16 + t * 8 + 4)
SC = 136
for t in range(2):
    a(f'v_mfma_f32_16x16x32_bf16 {vr(SC+8*t,4)}, {vr(KP+4*t,4)}, {vr(QP+4*t,4)}, 0')
    a(f'v_mfma_f32_16x16x32_bf16 {vr(SC+8*t+4,4)}, {vr(KP+4*(t+1),4)}, {vr(QP+4*t,4)}, 0')
for t in range(3):
    for dt in range(2):
        s = AACC + 40 + (t * 2 + dt) * 4
        a(f'v_cvt_pk_bf16_f32 v{VP+dt*6+2*t}, v{s}, v{s+1}')
        a(f'v_cvt_pk_bf16_f32 v{VP+dt*6+2*t+1}, v{s+2}, v{s+3}')
a('v_mov_b32 v10, 0xff800000')
AONES = 132
for r in range(4): a(f'v_mov_b32 v{AONES+r}, 0x3f803f80')
MX = 152
for t in range(2):
    for r in range(4):
        mp = (88 if t == 0 else 56) + 2 * r
        a(f'v_cndmask_b32_e64 v{SC+8*t+r}, v10, v{SC+8*t+r}, s[{mp}:{mp+1}]')
        a(f'v_cndmask_b32_e64 v{SC+8*t+4+r}, v10, v{SC+8*t+4+r}, s[{64+2*r}:{65+2*r}]')
    s = SC + 8 * t
    a(f'v_max3_f32 v{MX+t}, v{s}, v{s+1}, v{s+2}')
    a(f'v_max3_f32 v{MX+t}, v{MX+t}, v{s+3}, v{s+4}')
    a(f'v_max3_f32 v{MX+t}, v{MX+t}, v{s+5}, v{s+6}')
    a(f'v_max_f32 v{MX+t}, v{MX+t}, v{s+7}')
xlane2('v_max_f32', MX, MX + 1)
a(f's_mov_b32 s96, {f2u(28 ** -0.5 * LOG2E):#x}')
PP = 156
OO = AACC
for t in range(2):
    a(f'v_mul_f32 v{MX+t}, s96, v{MX+t}')
    for r in range(8):
        a(f'v_fma_f32 v{SC+8*t+r}, v{SC+8*t+r}, s96, -v{MX+t}')
    for r in range(8):
        a(f'v_exp_f32 v{SC+8*t+r}, v{SC+8*t+r}')
    cvt4(PP + 4 * t, SC + 8 * t, SC + 8 * t + 4)
    for dt in range(2):
        a(f'v_mfma_f32_16x16x32_bf16 {vr(OO+12*t+4*dt,4)}, {vr(VP+dt*6+2*t,4)}, {vr(PP+4*t,4)}, 0')
    a(f'v_mfma_f32_16x16x32_bf16 {vr(OO+12*t+8,4)}, {vr(AONES,4)}, {vr(PP+4*t,4)}, 0')
a(f's_lshl_b32 s65, s{S_RB}, 1')
a(f's_add_u32 s65, s65, s{S_PI}')
a('s_lshl_b32 s65, s65, 2')
a(f's_lshl_b32 s54, s{S_HH}, 1')
a('s_add_u32 s65, s65, s54')
a('s_lshl_b32 s65, s65, 4')
a(f's_lshl_b32 s54, s{S_HP}, 1')
a('s_add_u32 s65, s65, s54')
a(f's_add_u32 s65, s65, s{S_J}')
a('s_lshl_b32 s65, s65, 10')
oflag_offset(64, 62)
a('v_lshlrev_b32 v11, 4, v0')
for t in range(2):
    o = OO + 12 * t
    a(f'v_rcp_f32 v{o+8}, v{o+8}')
    for r in range(8):
        a(f'v_mul_f32 v{o+r}, v{o+r}, v{o+8}')
    cvt4(QP + 4 * t, o, o + 4)
    zero_pad(QP + 4 * t)
    a(f'buffer_store_dwordx4 {vr(QP+4*t,4)}, v11, {R(SWS)}, s65 offen sc1')
    a('s_add_u32 s65, s65, 16384')
a('s_waitcnt vmcnt(0)')
nonce_resolve()
set_flag(62)
stamp(2)
wo_dma()

a.label('L_P2')
a(f's_cmp_ge_u32 s{S_WORK}, 28')
a('s_cbranch_scc1 L_END')
a('v_lshrrev_b32 v3, 2, v1')
a('v_and_b32 v4, 3, v0')
a('v_lshl_add_u32 v5, v2, 2, v3')
a('v_lshlrev_b32 v5, 7, v5')
a('v_lshl_add_u32 v5, v4, 3, v5')
a(f's_mul_i32 s53, s{S_HH}, 28672')
a('v_add_u32 v5, s53, v5')
a('v_mov_b32 v7, 2048')
a(f'v_cndmask_b32_e64 v7, v7, 0, s[{M48}:{M48+1}]')
a('v_lshrrev_b32 v6, 1, v3')
a('v_lshl_add_u32 v6, v2, 1, v6')
for par in range(2):
    a(f'v_add_u32 v8, {2*par}, v6')
    a('v_and_b32 v8, 3, v8')
    for T in range(4):
        a(f'v_xor_b32 v9, {T}, v8')
        a(f'v_lshl_add_u32 v{16+par*8+T}, v9, 5, v5')
        a(f'v_add_u32 v{16+par*8+4+T}, v{16+par*8+T}, v7')
PA, PB, OF, WB = 32, 48, 64, 96
a('v_lshlrev_b32 v11, 4, v0')
a(f's_and_b32 s54, s{S_WAVE}, 3')
a(f's_lshl_b32 s63, s{S_PT}, 2')
a('s_add_u32 s63, s63, s54')
a('s_lshl_b32 s64, s63, 14')
a(f's_lshl_b32 s53, s{S_HH}, 13')
a('s_add_u32 s64, s64, s53')
a('s_lshr_b32 s65, s63, 1')
a('s_lshl_b32 s65, s65, 8')
a(f's_add_u32 s65, s65, {WS_FL + 64*256}')
a(f's_lshl_b32 s53, s{S_HH}, 3')
a('s_lshl_b32 s66, 0xff, s53')
a('s_or_b32 s67, s66, 1')
a('s_waitcnt vmcnt(0)')
a('s_barrier')
def wfrags():
    for h in range(8):
        for T in range(4):
            for sec in range(2):
                a(f'ds_read_b64_tr_b16 {vr(WB+(h*4+T)*4+2*sec,2)}, v{16+(h&1)*8+sec*4+T} offset:{h*3584}')
def half(br, acc):
    poll(65, 's67' if br else 's66')
    stamp(6 + 2 * br)
    a(f's_add_u32 s53, s64, {br*WS_OB}')
    for h in range(8):
        if h == 4: a('s_add_u32 s53, s53, 4096')
        a(f'buffer_load_dwordx4 {vr(OF+4*h,4)}, v11, {R(SWS)}, s53 offen offset:{(h%4)*1024} sc1')
    if br:
        a('s_lshl_b32 s53, s63, 8')
        a(f's_add_u32 s53, s53, {WS_G}')
        a('v_lshlrev_b32 v12, 2, v0')
        a(f'buffer_load_dword v13, v12, {R(SWS)}, s53 offen sc1')
    a('s_waitcnt lgkmcnt(0)')
    for h in range(8):
        a(f's_waitcnt vmcnt({7-h+br})')
        for T in range(4):
            c = vr(acc + 4 * T, 4)
            a(f'v_mfma_f32_16x16x32_bf16 {c}, {vr(WB+(h*4+T)*4,4)}, {vr(OF+4*h,4)}, {c if h else 0}')
wfrags()
half(0, PA)
stamp(7)
for r in range(16, 32): a(f'v_add_u32 v{r}, 57344, v{r}')
a('s_add_u32 s65, s65, 16384')
wfrags()
half(1, PB)
a('s_lshl_b32 s53, s54, 12')
a(f's_add_u32 s53, s53, {L_RED}')
a('v_add_u32 v3, s53, v11')
a('s_waitcnt vmcnt(0)')
for r in range(16):
    a(f'v_fma_f32 v{PB+r}, v{PA+r}, v13, v{PB+r}')
a(f's_cmp_eq_u32 s{S_HH}, 0')
a('s_cbranch_scc1 L_P2_K0')
a(f'ds_write_b128 v3, {vr(PB,4)}')
a(f'ds_write_b128 v3, {vr(PB+4,4)} offset:1024')
a('s_waitcnt lgkmcnt(0)')
a('s_barrier')
a(f'ds_read_b128 {vr(PA,4)}, v3 offset:2048')
a(f'ds_read_b128 {vr(PA+4,4)}, v3 offset:3072')
for r in range(8): a(f'v_mov_b32 v{PB+r}, v{PB+8+r}')
a('s_branch L_P2_ST')
a.label('L_P2_K0')
a(f'ds_write_b128 v3, {vr(PB+8,4)} offset:2048')
a(f'ds_write_b128 v3, {vr(PB+12,4)} offset:3072')
a('s_waitcnt lgkmcnt(0)')
a('s_barrier')
a(f'ds_read_b128 {vr(PA,4)}, v3')
a(f'ds_read_b128 {vr(PA+4,4)}, v3 offset:1024')
a.label('L_P2_ST')
a(f's_lshr_b32 s53, s{S_PT}, 1')
a('s_lshl_b32 s53, s53, 7')
a(f's_and_b32 s62, s{S_PT}, 1')
a('s_add_u32 s53, s53, s62')
a('s_lshl_b32 s62, s54, 5')
a('s_add_u32 s53, s53, s62')
a('s_mul_i32 s53, s53, 896')
a(f's_lshl_b32 s62, s{S_NB}, 7')
a('s_add_u32 s53, s53, s62')
a(f's_lshl_b32 s62, s{S_HH}, 6')
a('s_add_u32 s53, s53, s62')
a('v_mul_u32_u24 v5, 1792, v1')
a('v_lshl_add_u32 v5, v2, 3, v5')
a('s_waitcnt lgkmcnt(0)')
for r in range(8): a(f'v_add_f32 v{PB+r}, v{PB+r}, v{PA+r}')
for T in range(2):
    a(f'v_cvt_pk_bf16_f32 v{PA+8+2*T}, v{PB+4*T}, v{PB+4*T+1}')
    a(f'v_cvt_pk_bf16_f32 v{PA+9+2*T}, v{PB+4*T+2}, v{PB+4*T+3}')
    a(f'buffer_store_dwordx2 {vr(PA+8+2*T,2)}, v5, {R(SOUT)}, s53 offen offset:{32*T}')
a.label('L_END')
if STAMP:
    a('s_waitcnt vmcnt(0)')
    stamp(9)
    a('s_lshl_b32 s3, s2, 3')
    a(f's_add_u32 s3, s3, s{S_WAVE}')
    a('s_lshl_b32 s3, s3, 8')
    a(f's_add_u32 s3, s3, {WS_ST}')
    a('v_lshlrev_b32 v3, 2, v0')
    a(f'buffer_store_dword v250, v3, {R(SWS)}, s3 offen')
    a('s_waitcnt vmcnt(0)')
a.label('L_EXIT')
a('s_endpgm')

a.raw('.section .rodata,"a"')
a.raw('.p2align 6')
a.raw(f'.amdhsa_kernel {KN}')
a.raw('  .amdhsa_next_free_vgpr 256')
a.raw('  .amdhsa_next_free_sgpr 102')
a.raw('  .amdhsa_accum_offset 256')
a.raw('  .amdhsa_group_segment_fixed_size 0')
a.raw('  .amdhsa_kernarg_size 88')
a.raw('  .amdhsa_user_sgpr_count 2')
a.raw('  .amdhsa_user_sgpr_kernarg_segment_ptr 1')
a.raw('  .amdhsa_system_sgpr_workgroup_id_x 1')
a.raw('.end_amdhsa_kernel')
sys.stdout.write(a.text())
```

```python
import sys, math, os, struct
from asmlib import *
STAMP = os.environ.get('STAMP') == '1'
SPIN = int(os.environ.get('SPIN', '200000'))

KN = 'gated_mix__sliding_local_dilated__linear_kernel_hedgehog__prompt_kernel'
WS_OA = 0
WS_OB = 2 << 20
WS_G = 4 << 20
WS_KVP = 5 << 20
WS_FL = 6 << 20
WS_ST = 7 << 20
WS_SIZE = 8 << 20
LOG2E = 1.4426950408889634
def f2u(x): return struct.unpack('<I', struct.pack('<f', x))[0]

SLOT_A = 18432 + 24576
SLOT_B = 16384 + 24576
L_GATE = 3 * SLOT_B
L_PT = 0
L_VF = 32768
L_WO = 49152
L_XCH = 131072
L_KVL = 16384
L_RED = 0
LDS = 163840

a = Asm()
a.raw(f'; @launch grid=(256,1,1) block=(512,1,1) lds={LDS}')
a.raw('.amdgcn_target "amdgcn-amd-amdhsa--gfx950"')
a.raw('.text')
a.raw(f'.globl {KN}')
a.raw('.p2align 8')
a.raw(f'.type {KN},@function')
a.label(KN, pad=False)

SX, SW, SWS, SPHI, SGATE, SDBG, SWOA, SWOB, SOUT = 8, 12, 16, 20, 24, 28, 72, 76, 80
S_RB, S_HP, S_BR, S_WAVE, S_ROT, S_NONCE = 32, 33, 34, 35, 48, 49
S_J, S_PI, S_HH = 50, 51, 52
S_PT, S_NB, S_WORK = 46, 47, 45
M48 = 84
VT0, VT1, VNON, VT2 = 252, 253, 254, 255

def srd(dst, lo, size):
    a(f's_mov_b32 s{dst}, s{lo}')
    a(f's_and_b32 s{dst+1}, s{lo+1}, 0xffff')
    a(f's_mov_b32 s{dst+2}, {size}')
    a(f's_mov_b32 s{dst+3}, 0x00020000')
def R(s): return f's[{s}:{s+3}]'
def stamp(n):
    if STAMP:
        a('s_memrealtime s[98:99]')
        a('s_waitcnt lgkmcnt(0)')
        a(f'v_writelane_b32 v250, s98, {n}')

a('s_cmp_ge_u32 s2, 256')
a('s_cbranch_scc1 L_EXIT')
a('s_load_dwordx8 s[36:43], s[0:1], 0')
a('s_load_dwordx8 s[56:63], s[0:1], 32')
a('s_load_dwordx4 s[64:67], s[0:1], 64')
a('s_load_dwordx2 s[44:45], s[0:1], 80')
if STAMP:
    a('v_mov_b32 v250, 0')
    a('s_memrealtime s[98:99]')
a('v_lshrrev_b32 v1, 6, v0')
a('v_and_b32 v0, 63, v0')
a(f'v_readfirstlane_b32 s{S_WAVE}, v1')
a('s_and_b32 s3, s2, 7')
a('s_lshr_b32 s7, s2, 3')
a('s_and_b32 s4, s7, 15')
a(f's_lshr_b32 s{S_BR}, s2, 7')
a('s_and_b32 s5, s3, 3')
a('s_lshl_b32 s5, s5, 2')
a('s_and_b32 s6, s4, 3')
a(f's_add_u32 s{S_RB}, s5, s6')
a('s_lshr_b32 s5, s3, 2')
a('s_lshl_b32 s5, s5, 2')
a('s_lshr_b32 s6, s4, 2')
a(f's_add_u32 s{S_HP}, s5, s6')
a(f's_mul_i32 s5, s{S_HP}, 3')
a(f's_add_u32 s5, s5, s{S_RB}')
a(f's_mul_i32 s6, s{S_BR}, 5')
a('s_add_u32 s5, s5, s6')
a('s_mul_i32 s6, s5, 37')
a('s_lshr_b32 s6, s6, 8')
a('s_mul_i32 s6, s6, 7')
a(f's_sub_u32 s{S_ROT}, s5, s6')
a('s_xor_b32 s7, s7, 16')
a('s_mul_i32 s5, s7, 37')
a('s_lshr_b32 s5, s5, 8')
a('s_mul_i32 s6, s5, 7')
a(f's_sub_u32 s{S_NB}, s7, s6')
a('s_lshl_b32 s3, s3, 2')
a(f's_add_u32 s{S_PT}, s3, s5')
a(f's_and_b32 s{S_J}, s{S_WAVE}, 1')
a(f's_lshr_b32 s{S_PI}, s{S_WAVE}, 1')
a(f's_and_b32 s{S_PI}, s{S_PI}, 1')
a(f's_lshr_b32 s{S_HH}, s{S_WAVE}, 2')
a('v_lshrrev_b32 v3, 3, v0')
a('v_and_b32 v4, 7, v0')
a('v_lshrrev_b32 v5, 1, v3')
a('v_xor_b32 v16, v4, v5')
a('v_lshlrev_b32 v16, 4, v16')
a('v_mul_u32_u24 v6, 1792, v3')
a('v_xor_b32 v17, 64, v16')
a('v_add_u32 v16, v16, v6')
a('v_add_u32 v17, v17, v6')
a('v_add_u32 v17, 14336, v17')
a('v_add_u32 v18, 28672, v16')
a('v_add_u32 v19, 28672, v17')
a('v_and_b32 v7, 1, v5')
a('v_lshlrev_b32 v7, 1, v7')
a('v_xor_b32 v20, v4, v7')
a('v_xor_b32 v21, 4, v20')
a('v_min_u32 v20, 6, v20')
a('v_min_u32 v21, 6, v21')
a('v_lshlrev_b32 v20, 4, v20')
a('v_lshlrev_b32 v21, 4, v21')
a(f's_and_b32 s54, s{S_WAVE}, 3')
a('s_lshl_b32 s53, s54, 4')
a('v_add_u32 v7, s53, v3')
a('v_mul_u32_u24 v7, 2688, v7')
a('v_add_u32 v20, v20, v7')
a('v_add_u32 v21, v21, v7')
a('v_add_u32 v21, 21504, v21')
a(f's_lshl_b32 s53, s{S_J}, 1')
a('s_add_u32 s53, s53, 4')
a('v_add_u32 v22, s53, v5')
a('v_xor_b32 v22, v4, v22')
a('v_lshlrev_b32 v22, 4, v22')
a('v_add_u32 v22, v22, v6')
a(f's_lshl_b32 s53, s{S_J}, 2')
a('s_add_u32 s53, s53, 8')
a('s_mul_i32 s53, s53, 1792')
a('v_add_u32 v22, s53, v22')
a(f's_lshl_b32 s55, s{S_RB}, 7')
a('s_max_u32 s86, s55, 32')
a('s_sub_u32 s86, s86, 32')
a(f's_add_u32 s86, s86, s{S_PI}')
a('s_mul_i32 s86, s86, 896')
a(f's_lshl_b32 s53, s{S_J}, 6')
a('s_add_u32 s55, s55, s53')
a(f's_add_u32 s55, s55, s{S_PI}')
a('s_mul_i32 s55, s55, 896')
a(f's_mul_i32 s87, s{S_HP}, 112')
a('v_and_b32 v1, 15, v0')
a('v_lshrrev_b32 v2, 4, v0')
a('s_waitcnt lgkmcnt(0)')
if STAMP: a('v_writelane_b32 v250, s98, 0')
srd(SX, 36, 2048 * 896)
a(f's_cmp_eq_u32 s{S_BR}, 1')
a('s_cselect_b32 s4, s38, s56')
a('s_cselect_b32 s5, s39, s57')
srd(SW, 4, 448 * 2688)
srd(SWS, 44, WS_SIZE)
srd(SPHI, 58, 16 * 28 * 28 * 2)
srd(SGATE, 62, 896)
srd(SDBG, 66, 256)
srd(SWOA, 40, 448 * 896)
srd(SWOB, 60, 448 * 896)
srd(SOUT, 64, 2048 * 896)
a(f's_mov_b32 s{S_WORK}, s7')
a(f's_mov_b32 s60, s{S_ROT}')
a(f's_cmp_eq_u32 s{S_BR}, 1')
a('s_cbranch_scc1 L_A')

ONES = 12
def common_consts():
    a(f'v_cmp_le_u32 s[{M48}:{M48+1}], 48, v0')
    a('v_lshlrev_b32 v11, 4, v0')
    a('v_mov_b32 v10, 0xff800000')
    for r in range(4): a(f'v_mov_b32 v{ONES+r}, 0x3f803f80')
    a(f's_and_b32 s53, s{S_WAVE}, 3')
    a('s_lshl_b32 s53, s53, 13')
    a(f's_add_u32 s53, s53, {L_XCH}')
    a('v_add_u32 v251, s53, v11')
def frag_addr_setup(WOFF, XP, XH):
    a('v_lshrrev_b32 v3, 2, v1')
    a('v_and_b32 v16, 3, v0')
    a('v_lshl_add_u32 v17, v2, 3, v3')
    a('v_lshlrev_b32 v17, 7, v17')
    a('v_lshrrev_b32 v18, 1, v3')
    a('v_lshlrev_b32 v18, 1, v18')
    a('v_and_b32 v19, 1, v2')
    a('v_lshl_add_u32 v18, v19, 2, v18')
    a(f's_mul_i32 s53, s{S_J}, 56')
    a('v_lshlrev_b32 v19, 3, v16')
    a('v_add_u32 v19, s53, v19')
    for dt in range(2):
        if dt: a('v_add_u32 v19, 32, v19')
        a('v_lshrrev_b32 v20, 4, v19')
        a('v_xor_b32 v20, v20, v18')
        a('v_lshlrev_b32 v20, 4, v20')
        a('v_and_b32 v21, 8, v19')
        a(f'v_add3_u32 v{8+dt}, v17, v20, v21')
        a(f'v_add_u32 v{8+dt}, {WOFF}, v{8+dt}')
    a('v_lshrrev_b32 v3, 1, v1')
    a('v_xor_b32 v4, v2, v3')
    a('v_lshlrev_b32 v4, 4, v4')
    a('v_lshl_add_u32 v4, v1, 7, v4')
    a(f's_mul_i32 s53, s{S_PI}, {XP}')
    a('v_add_u32 v4, s53, v4')
    a('v_xor_b32 v5, 64, v4')

def loader_loop(tag, isA, SLOT, pre=None, post=None, nextra=0, mid=None):
    XP = 9216 if isA else 8192
    XH = 1024 if isA else 0
    WOFF = 18432 if isA else 16384
    nops = 11 if isA else 10
    a(f's_mul_i32 s58, s{S_PI}, {XP}')
    if isA:
        a(f's_lshl_b32 s71, s{S_J}, 9')
        a('s_add_u32 s71, s71, s58')
    a(f's_lshl_b32 s53, s{S_J}, 12')
    a('s_add_u32 s58, s58, s53')
    if XH: a(f's_add_u32 s58, s58, {XH}')
    a(f's_and_b32 s59, s{S_WAVE}, 3')
    a('s_lshl_b32 s59, s59, 11')
    a(f's_add_u32 s59, s59, {WOFF}')
    a(f's_mov_b32 s68, {SLOT}')
    a(f's_mov_b32 s69, {3*SLOT}')
    a('s_mov_b32 s61, 0')
    def issue():
        a('s_lshl_b32 s62, s60, 7')
        if isA: a('s_add_u32 s63, s62, s86')
        a('s_add_u32 s62, s62, s55')
        a('s_mul_i32 s64, s60, 172032')
        a('s_add_u32 s64, s64, s87')
        a('s_add_u32 s60, s60, 1')
        a('s_cmp_eq_u32 s60, 7')
        a('s_cselect_b32 s60, 0, s60')
        a('s_add_u32 s65, s58, s61')
        a('s_add_u32 s56, s59, s61')
        for n in range(4):
            a(f's_add_u32 m0, s65, {n*1024}')
            a(f'buffer_load_dwordx4 v{16+n}, {R(SX)}, s62 offen lds')
        if isA:
            a('s_add_u32 m0, s71, s61')
            a('s_mov_b32 exec_hi, 0')
            a(f'buffer_load_dwordx4 v22, {R(SX)}, s63 offen lds')
            a('s_mov_b32 exec_hi, -1')
        for b in range(3):
            if b: a(f's_add_u32 s66, s64, {b*896}')
            for h in range(2):
                a(f's_add_u32 m0, s56, {b*8192 + h*1024}')
                a(f'buffer_load_dwordx4 v{20+h}, {R(SW)}, s{66 if b else 64} offen lds')
        a('s_add_u32 s61, s61, s68')
        a('s_cmp_eq_u32 s61, s69')
        a('s_cselect_b32 s61, 0, s61')
    if pre: pre()
    issue()
    issue()
    a('s_mov_b32 s67, 0')
    a.label(f'L_LD_{tag}')
    a(f's_waitcnt vmcnt({nops})')
    a('s_barrier')
    issue()
    a('s_add_u32 s67, s67, 1')
    a('s_cmp_lt_u32 s67, 5')
    a(f's_cbranch_scc1 L_LD_{tag}')
    if post: post()
    a(f's_waitcnt vmcnt({nops + nextra})')
    a('s_barrier')
    a(f's_waitcnt vmcnt({nextra})')
    a('s_barrier')
    if mid: mid()
    a('s_barrier')

F0, F1, ACC = 24, 68, 112
def compute_loop(tag, isA, SLOT):
    XH = 1024 if isA else 0
    for r in range(ACC, ACC + 112): a(f'v_mov_b32 v{r}, 0')
    def reads(F, ks):
        L = []
        for t in range(4):
            L.append(f'ds_read_b128 {vr(F+4*t,4)}, v{4+ks} offset:{XH + t*2048}')
        if isA: L.append(f'ds_read_b128 {vr(F+16,4)}, v{6+ks}')
        else: L.append(f'ds_read_b128 {vr(F+16,4)}, v6 offset:{ks*64}')
        for b in range(3):
            for dt in range(2):
                for h2 in range(2):
                    L.append(f'ds_read_b64_tr_b16 {vr(F+20+(b*2+dt)*4+h2*2,2)}, v{8+dt} offset:{b*8192+(32*ks+4*h2)*128}')
        return L
    def mfmas(F):
        L = []
        X = lambda t: vr(F + 4 * t, 4) if t >= 0 else vr(F + 16, 4)
        W = lambda b, dt: vr(F + 20 + (b * 2 + dt) * 4, 4)
        if isA:
            for t in range(4):
                for dt in range(2):
                    c = vr(ACC + (t * 2 + dt) * 4, 4); L.append(f'v_mfma_f32_16x16x32_bf16 {c}, {W(0,dt)}, {X(t)}, {c}')
            for t in range(-1, 4):
                for dt in range(2):
                    c = vr(ACC + 32 + ((t + 1) * 2 + dt) * 4, 4); L.append(f'v_mfma_f32_16x16x32_bf16 {c}, {W(1,dt)}, {X(t)}, {c}')
            for t in range(-1, 4):
                for dt in range(2):
                    c = vr(ACC + 72 + ((t + 1) * 2 + dt) * 4, 4); L.append(f'v_mfma_f32_16x16x32_bf16 {c}, {X(t)}, {W(2,dt)}, {c}')
        else:
            for t in (2, 3, 0, 1):
                for dt in range(2):
                    c = vr(ACC + 32 + (t * 2 + dt) * 4, 4); L.append(f'v_mfma_f32_16x16x32_bf16 {c}, {W(1,dt)}, {X(t)}, {c}')
            for t in range(4):
                for dt in range(2):
                    c = vr(ACC + 64 + (t * 2 + dt) * 4, 4); L.append(f'v_mfma_f32_16x16x32_bf16 {c}, {X(t)}, {W(2,dt)}, {c}')
            for t in (2, 3, 0, 1):
                for dt in range(2):
                    c = vr(ACC + (t * 2 + dt) * 4, 4); L.append(f'v_mfma_f32_16x16x32_bf16 {c}, {W(0,dt)}, {X(t)}, {c}')
            for t in range(4):
                c = vr(ACC + 96 + t * 4, 4); L.append(f'v_mfma_f32_16x16x32_bf16 {c}, {X(-1)}, {X(t)}, {c}')
        return L
    def interleave(M, Rr):
        for n, m in enumerate(M):
            a(m)
            if n < len(Rr): a(Rr[n])
    a(f's_mov_b32 s68, {SLOT}')
    a(f's_mov_b32 s69, {-2*SLOT & 0xffffffff}')
    a('s_movk_i32 s60, 128')
    a('s_movk_i32 s61, -768')
    a('s_mov_b32 s67, 0')
    a('s_mov_b32 s70, 0')
    a('s_barrier')
    for r in reads(F0, 0): a(r)
    a.label(f'L_CP_{tag}')
    a('s_waitcnt lgkmcnt(0)')
    interleave(mfmas(F0), reads(F1, 1))
    a('s_add_u32 s70, s70, 1')
    a('s_cmp_eq_u32 s70, 3')
    a('s_cselect_b32 s53, s69, s68')
    a('s_cselect_b32 s70, 0, s70')
    a('s_waitcnt lgkmcnt(0)')
    for r in ((4, 5, 6, 7, 8, 9) if isA else (4, 5, 8, 9)):
        a(f'v_add_u32 v{r}, s53, v{r}')
    if not isA:
        a('s_add_u32 s71, s71, 1')
        a('s_cmp_eq_u32 s71, 7')
        a('s_cselect_b32 s53, s61, s60')
        a('s_cselect_b32 s71, 0, s71')
        a('v_add_u32 v6, s53, v6')
    a('s_barrier')
    interleave(mfmas(F1), reads(F0, 0))
    a('s_add_u32 s67, s67, 1')
    a('s_cmp_lt_u32 s67, 7')
    a(f's_cbranch_scc1 L_CP_{tag}')
    a('s_waitcnt lgkmcnt(0)')

def xlane4(op, m):
    m0, m1, m2, m3 = m
    a(f'v_permlane32_swap_b32 v{m0}, v{m1}')
    a(f'v_permlane32_swap_b32 v{m2}, v{m3}')
    a(f'{op} v{m0}, v{m0}, v{m1}')
    a(f'{op} v{m2}, v{m2}, v{m3}')
    a(f'v_permlane16_swap_b32 v{m0}, v{m2}')
    a(f'{op} v{m0}, v{m0}, v{m2}')
    a(f'v_mov_b32 v{m2}, v{m0}')
    a(f'v_permlane16_swap_b32 v{m0}, v{m2}')
    a(f'v_mov_b32 v{m1}, v{m0}')
    a(f'v_mov_b32 v{m3}, v{m2}')
    a(f'v_permlane32_swap_b32 v{m0}, v{m1}')
    a(f'v_permlane32_swap_b32 v{m2}, v{m3}')
def xlane2(op, m0, m1):
    a(f'v_permlane32_swap_b32 v{m0}, v{m1}')
    a(f'{op} v{m0}, v{m0}, v{m1}')
    a(f'v_mov_b32 v{m1}, v{m0}')
    a(f'v_permlane16_swap_b32 v{m0}, v{m1}')
    a(f'{op} v{m0}, v{m0}, v{m1}')
    a(f'v_mov_b32 v{m1}, v{m0}')
    a(f'v_permlane32_swap_b32 v{m0}, v{m1}')
def cvt4(dst, s0, s1):
    a(f'v_cvt_pk_bf16_f32 v{dst}, v{s0}, v{s0+1}')
    a(f'v_cvt_pk_bf16_f32 v{dst+1}, v{s0+2}, v{s0+3}')
    a(f'v_cvt_pk_bf16_f32 v{dst+2}, v{s1}, v{s1+1}')
    a(f'v_cvt_pk_bf16_f32 v{dst+3}, v{s1+2}, v{s1+3}')
def zero_pad(r):
    a(f'v_cndmask_b32_e64 v{r+2}, v{r+2}, 0, s[{M48}:{M48+1}]')
    a(f'v_cndmask_b32_e64 v{r+3}, v{r+3}, 0, s[{M48}:{M48+1}]')

uid = [0]
def nonce_prefetch():
    a(f'v_mov_b32 v{VT0}, 0')
    a(f'buffer_load_dword v{VNON}, v{VT0}, {R(SDBG)}, 0 offen sc1')
def nonce_resolve():
    uid[0] += 1; u = uid[0]
    a('s_mov_b32 s3, 0')
    a.label(f'L_GN_{u}')
    a(f'v_readfirstlane_b32 s{S_NONCE}, v{VNON}')
    a(f's_cmp_lg_u32 s{S_NONCE}, 0')
    a(f's_cbranch_scc1 L_GNX_{u}')
    a('s_sleep 2')
    nonce_prefetch()
    a('s_waitcnt vmcnt(0)')
    a('s_add_u32 s3, s3, 1')
    a(f's_cmp_lt_u32 s3, {SPIN}')
    a(f's_cbranch_scc1 L_GN_{u}')
    a.label(f'L_GNX_{u}')
def set_flag(off_sgpr):
    a(f'v_mov_b32 v{VT0}, 0')
    a(f'v_mov_b32 v{VT1}, s{S_NONCE}')
    a('s_mov_b64 exec, 1')
    a(f'buffer_store_dword v{VT1}, v{VT0}, {R(SWS)}, s{off_sgpr} offen sc1')
    a('s_mov_b64 exec, -1')
def poll(off_sgpr, mask):
    uid[0] += 1; u = uid[0]
    a(f'v_lshlrev_b32 v{VT0}, 2, v1')
    a('s_mov_b32 s3, 0')
    a.label(f'L_PL_{u}')
    a(f'buffer_load_dword v{VT1}, v{VT0}, {R(SWS)}, s{off_sgpr} offen sc1')
    a('s_waitcnt vmcnt(0)')
    a(f'v_cmp_eq_u32 vcc, s{S_NONCE}, v{VT1}')
    a(f's_and_b32 s4, vcc_lo, {mask}')
    a(f's_cmp_eq_u32 s4, {mask}')
    a(f's_cbranch_scc1 L_PLX_{u}')
    a('s_sleep 1')
    a('s_add_u32 s3, s3, 1')
    a(f's_cmp_lt_u32 s3, {SPIN}')
    a(f's_cbranch_scc1 L_PL_{u}')
    a.label(f'L_PLX_{u}')
def gather(off_sgpr, n, shift_sgpr, load):
    uid[0] += 1; u = uid[0]
    full = (1 << n) - 1
    a(f'v_lshlrev_b32 v{VT0}, 2, v1')
    a('s_mov_b32 s3, 0')
    a('s_mov_b32 s5, 0')
    a.label(f'L_GA_{u}')
    a(f'buffer_load_dword v{VT1}, v{VT0}, {R(SWS)}, s{off_sgpr} offen sc1')
    a('s_waitcnt vmcnt(0)')
    a(f'v_cmp_eq_u32 vcc, s{S_NONCE}, v{VT1}')
    if shift_sgpr is not None: a(f's_lshr_b32 s4, vcc_lo, s{shift_sgpr}')
    else: a('s_mov_b32 s4, vcc_lo')
    a(f's_and_b32 s4, s4, {full}')
    a('s_andn2_b32 s6, s4, s5')
    a('s_or_b32 s5, s5, s4')
    a('s_cmp_eq_u32 s6, 0')
    a(f's_cbranch_scc1 L_GAS_{u}')
    for p in range(n):
        a(f's_bitcmp1_b32 s6, {p}')
        a(f's_cbranch_scc0 L_GK_{u}_{p}')
        load(p)
        a.label(f'L_GK_{u}_{p}')
    a(f's_cmp_eq_u32 s5, {full}')
    a(f's_cbranch_scc1 L_GAX_{u}')
    a.label(f'L_GAS_{u}')
    a('s_sleep 1')
    a('s_add_u32 s3, s3, 1')
    a(f's_cmp_lt_u32 s3, {SPIN}')
    a(f's_cbranch_scc1 L_GA_{u}')
    a.label(f'L_GAX_{u}')

def wo_dma():
    uid[0] += 1; u = uid[0]
    a(f's_cmp_ge_u32 s{S_WORK}, 28')
    a(f's_cbranch_scc1 L_NOWO_{u}')
    a(f'v_lshrrev_b32 v{VT0}, 3, v0')
    a(f'v_and_b32 v{VT1}, 7, v0')
    a(f'v_and_b32 v{VT2}, 6, v{VT0}')
    a(f'v_xor_b32 v{VT1}, v{VT1}, v{VT2}')
    a(f'v_lshlrev_b32 v{VT1}, 4, v{VT1}')
    a(f'v_mul_u32_u24 v{VT0}, 896, v{VT0}')
    a(f'v_add_u32 v{VT0}, v{VT0}, v{VT1}')
    a(f's_mul_i32 s53, s{S_WAVE}, 50176')
    a(f's_lshl_b32 s6, s{S_NB}, 7')
    a('s_add_u32 s53, s53, s6')
    a(f's_mul_i32 s6, s{S_WAVE}, 7168')
    for br in range(2):
        for n in range(7):
            a(f's_add_u32 m0, s6, {L_WO + br*57344 + n*1024}')
            a(f's_add_u32 s5, s53, {n*7168}')
            a(f'buffer_load_dwordx4 v{VT0}, {R(SWOA if br == 0 else SWOB)}, s5 offen lds')
    a.label(f'L_NOWO_{u}')

def o_offsets(wsbase, base_group, dst_o, dst_f):
    a(f's_lshl_b32 s53, s{S_RB}, 1')
    a(f's_add_u32 s53, s53, s{S_PI}')
    a('s_lshl_b32 s53, s53, 1')
    a(f's_add_u32 s53, s53, s{S_HH}')
    a(f's_lshl_b32 s54, s{S_HP}, 1')
    a(f's_add_u32 s54, s54, s{S_J}')
    a(f's_lshl_b32 s{dst_o}, s53, 5')
    a(f's_add_u32 s{dst_o}, s{dst_o}, s54')
    a(f's_lshl_b32 s{dst_o}, s{dst_o}, 10')
    if wsbase: a(f's_add_u32 s{dst_o}, s{dst_o}, {wsbase}')
    a(f's_lshl_b32 s{dst_f}, s53, 8')
    a('s_lshl_b32 s54, s54, 2')
    a(f's_add_u32 s{dst_f}, s{dst_f}, s54')
    a(f's_add_u32 s{dst_f}, s{dst_f}, {WS_FL + base_group*256}')

PA, PB, OF, WB = 32, 48, 64, 96
def p2_setup():
    a('v_lshrrev_b32 v3, 2, v1')
    a('v_and_b32 v4, 3, v0')
    a('v_lshl_add_u32 v5, v2, 2, v3')
    a('v_lshlrev_b32 v5, 7, v5')
    a('v_lshl_add_u32 v5, v4, 3, v5')
    a(f's_mul_i32 s53, s{S_HH}, 28672')
    a(f's_add_u32 s53, s53, {L_WO}')
    a('v_add_u32 v5, s53, v5')
    a('v_mov_b32 v7, 2048')
    a(f'v_cndmask_b32_e64 v7, v7, 0, s[{M48}:{M48+1}]')
    a('v_lshrrev_b32 v6, 1, v3')
    a('v_lshl_add_u32 v6, v2, 1, v6')
    for par in range(2):
        a(f'v_add_u32 v8, {2*par}, v6')
        a('v_and_b32 v8, 3, v8')
        for T in range(4):
            a(f'v_xor_b32 v9, {T}, v8')
            a(f'v_lshl_add_u32 v{16+par*8+T}, v9, 5, v5')
            a(f'v_add_u32 v{16+par*8+4+T}, v{16+par*8+T}, v7')
    a(f's_and_b32 s54, s{S_WAVE}, 3')
    a(f's_lshl_b32 s63, s{S_PT}, 2')
    a('s_add_u32 s63, s63, s54')
    a('s_lshl_b32 s64, s63, 14')
    a(f's_lshl_b32 s53, s{S_HH}, 13')
    a('s_add_u32 s64, s64, s53')
    a('s_lshr_b32 s65, s63, 1')
    a('s_lshl_b32 s65, s65, 8')
    a(f's_add_u32 s65, s65, {WS_FL + 64*256}')
    a(f's_lshl_b32 s53, s{S_HH}, 3')
    a('s_lshl_b32 s66, 0xff, s53')
    a('s_or_b32 s67, s66, 1')
def wfrags():
    for h in range(8):
        for T in range(4):
            for sec in range(2):
                a(f'ds_read_b64_tr_b16 {vr(WB+(h*4+T)*4+2*sec,2)}, v{16+(h&1)*8+sec*4+T} offset:{h*3584}')

PHL, WP = 228, 240
KXP, QXP, GSV = 24, 32, 40
def b_setup():
    a(f's_lshl_b32 s53, s{S_HP}, 1')
    a(f's_add_u32 s53, s53, s{S_J}')
    a('s_mul_i32 s53, s53, 1568')
    a('v_mul_u32_u24 v5, 224, v2')
    a('v_lshl_add_u32 v3, v1, 1, v5')
    a('v_add_u32 v6, 16, v1')
    a('v_min_u32 v6, 27, v6')
    a('v_lshl_add_u32 v6, v6, 1, v5')
    for ft, vo in ((0, 3), (1, 6)):
        for j in range(8):
            d = j if j < 4 else 16 + (j - 4)
            a(f'buffer_load_ushort v{224+ft*8+j}, v{vo}, {R(SPHI)}, s53 offen offset:{d*56}')
    common_consts()
    a('v_cmp_eq_u32 s[88:89], 12, v1')
    a(f's_mov_b32 s90, {f2u(LOG2E):#x}')
    a(f's_lshl_b32 s36, s{S_HP}, 4')
    a(f's_add_u32 s36, s36, s{S_RB}')
    a('s_lshl_b32 s36, s36, 3')
    a(f's_add_u32 s36, s36, s{S_WAVE}')
    a('s_lshl_b32 s36, s36, 10')
    a(f's_add_u32 s36, s36, {WS_KVP}')
    a(f's_lshl_b32 s38, s{S_HP}, 3')
    a(f's_add_u32 s38, s38, s{S_WAVE}')
    a('s_lshl_b32 s38, s38, 8')
    a(f's_add_u32 s38, s38, {WS_FL}')
    a(f's_lshl_b32 s54, s{S_RB}, 2')
    a('s_add_u32 s37, s38, s54')
    a(f's_lshl_b32 s39, s{S_HP}, 17')
    a(f's_lshl_b32 s54, s{S_WAVE}, 10')
    a('s_add_u32 s39, s39, s54')
    a(f's_add_u32 s39, s39, {WS_KVP}')
    o_offsets(WS_OB, 128, 40, 41)
def b_late():
    a('s_waitcnt vmcnt(0)')
    for ft in range(2):
        for jj in range(4):
            a(f'v_lshl_or_b32 v{WP+ft*4+jj}, v{224+ft*8+2*jj+1}, 16, v{224+ft*8+2*jj}')
        zero_pad(WP + ft * 4)
    a(f's_lshr_b32 s53, s{S_WAVE}, 1')
    a(f's_lshl_b32 s54, s{S_J}, 13')
    a(f's_add_u32 s54, s54, {L_VF}')
    a('v_add_u32 v21, s54, v11')
    a(f's_lshl_b32 s62, s{S_PI}, 11')
    a('v_add_u32 v22, s62, v21')
    a('v_lshrrev_b32 v3, 1, v1')
    a('v_and_b32 v3, 3, v3')
    a('v_lshlrev_b32 v3, 5, v3')
    a('v_lshl_add_u32 v3, v2, 3, v3')
    a('v_lshl_add_u32 v16, v1, 7, v3')
    a(f's_lshl_b32 s54, s{S_J}, 14')
    a('s_lshl_b32 s62, s53, 12')
    a('s_add_u32 s62, s62, s54')
    a('v_add_u32 v16, s62, v16')
    for Ft in range(1, 4):
        a(f'v_xor_b32 v{16+Ft}, {Ft*32}, v16')
    a('v_lshrrev_b32 v3, 2, v1')
    a('v_lshl_add_u32 v3, v2, 2, v3')
    a('v_lshrrev_b32 v7, 1, v3')
    a('v_and_b32 v7, 3, v7')
    a('v_xor_b32 v7, s53, v7')
    a('v_lshlrev_b32 v7, 5, v7')
    a('v_lshl_add_u32 v20, v3, 7, v7')
    a('v_and_b32 v7, 3, v0')
    a('v_lshl_add_u32 v20, v7, 3, v20')
    a('v_add_u32 v20, s54, v20')

a(f's_cmp_eq_u32 s{S_HH}, 0')
a('s_cbranch_scc1 L_B_COMP')
def gate_dma():
    a(f's_cmp_lg_u32 s{S_WAVE}, 7')
    a('s_cbranch_scc1 L_B_NOGATE')
    a('v_lshlrev_b32 v3, 4, v0')
    a(f's_mov_b32 m0, {L_GATE}')
    a(f'buffer_load_dwordx4 v3, {R(SGATE)}, 0 offen lds')
    a.label('L_B_NOGATE')
def bl_mid():
    b_late()
    nonce_prefetch()
loader_loop('B', False, SLOT_B, gate_dma, b_setup, 16, bl_mid)
a('s_barrier')
a(f'ds_read_b128 {vr(KXP,4)}, v251')
a(f'ds_read_b128 {vr(KXP+4,4)}, v251 offset:1024')
a(f'ds_read_b128 {vr(QXP,4)}, v251 offset:2048')
a(f'ds_read_b128 {vr(QXP+4,4)}, v251 offset:3072')
a(f'ds_read_b64 {vr(GSV,2)}, v251 offset:4096')
a('s_waitcnt lgkmcnt(0)')
a('s_branch L_B_EPI')
a.label('L_B_COMP')
b_setup()
frag_addr_setup(16384, 8192, 0)
a(f's_lshl_b32 s53, s{S_ROT}, 7')
a(f's_add_u32 s53, s53, {L_GATE}')
a('v_lshlrev_b32 v6, 4, v2')
a('v_add_u32 v6, s53, v6')
a(f's_mov_b32 s71, s{S_ROT}')
b_late()
compute_loop('B', False, SLOT_B)
stamp(1)
nonce_prefetch()
for t in range(2):
    cvt4(44 + 4 * t, ACC + 32 + (2 + t) * 8, ACC + 32 + (2 + t) * 8 + 4)
    a(f'ds_write_b128 v251, {vr(44+4*t,4)} offset:{t*1024}')
for t in range(2):
    cvt4(52 + 4 * t, ACC + (2 + t) * 8, ACC + (2 + t) * 8 + 4)
    a(f'ds_write_b128 v251, {vr(52+4*t,4)} offset:{2048+t*1024}')
a(f'v_mov_b32 v60, v{ACC+96+8}')
a(f'v_mov_b32 v61, v{ACC+96+12}')
a('ds_write_b64 v251, v[60:61] offset:4096')
for t in range(2):
    cvt4(KXP + 4 * t, ACC + 32 + t * 8, ACC + 32 + t * 8 + 4)
a('s_waitcnt lgkmcnt(0)')
a('s_barrier')
for t in range(2):
    cvt4(QXP + 4 * t, ACC + t * 8, ACC + t * 8 + 4)
a(f'v_mov_b32 v{GSV}, v{ACC+96}')
a(f'v_mov_b32 v{GSV+1}, v{ACC+96+4}')
for hh in range(2):
    for dt in range(2):
        d = 44 + (hh * 2 + dt) * 4
        cvt4(d, ACC + 64 + ((2 * hh) * 2 + dt) * 4, ACC + 64 + ((2 * hh + 1) * 2 + dt) * 4)
        if dt:
            for r in range(4):
                a(f'v_cndmask_b32_e64 v{d+r}, v{d+r}, v{ONES}, s[88:89]')
        a(f'ds_write_b128 v22, {vr(d,4)} offset:{hh*4096 + dt*1024}')
a.label('L_B_EPI')
PK, ST, SUM, E, EP = 64, 80, 88, 104, 224
def hedgehog(xp, mid=None):
    for t in range(2):
        for ft in range(2):
            a(f'v_mfma_f32_16x16x32_bf16 {vr(PK+8*t+4*ft,4)}, {vr(WP+4*ft,4)}, {vr(xp+4*t,4)}, 0')
    for t in range(2):
        s = PK + 8 * t
        for n, d in (('', ST + t), ('-', ST + 2 + t)):
            a(f'v_max3_f32 v{d}, {n}v{s}, {n}v{s+1}, {n}v{s+2}')
            a(f'v_max3_f32 v{d}, v{d}, {n}v{s+3}, {n}v{s+4}')
            a(f'v_max3_f32 v{d}, v{d}, {n}v{s+5}, {n}v{s+6}')
            a(f'v_max_f32_e64 v{d}, v{d}, {n}v{s+7}')
    xlane4('v_max_f32', [ST, ST + 1, ST + 2, ST + 3])
    for q in range(4):
        a(f'v_mul_f32_e64 v{ST+q}, -s90, v{ST+q}')
        a(f'v_cndmask_b32_e64 v{ST+4+q}, v{ST+q}, v10, s[{M48}:{M48+1}]')
    for sg in range(2):
        for t in range(2):
            for ft in range(2):
                for r in range(4):
                    p = PK + 8 * t + 4 * ft + r
                    a(f'v_fma_f32 v{E+16*sg+8*t+4*ft+r}, {"-" if sg else ""}v{p}, s90, v{ST+4*ft+2*sg+t}')
            for r in range(8):
                a(f'v_exp_f32 v{E+16*sg+8*t+r}, v{E+16*sg+8*t+r}')
            q = 2 * sg + t
            cvt4(EP + 4 * q, E + 8 * q, E + 8 * q + 4)
            a(f'v_mfma_f32_16x16x32_bf16 {vr(SUM+4*q,4)}, {vr(ONES,4)}, {vr(EP+4*q,4)}, 0')
        if mid and (1 + sg) in mid: mid[1 + sg]()
    for q in range(4):
        a(f'v_rcp_f32 v{SUM+4*q}, v{SUM+4*q}')
    for q in range(4):
        for r in range(0, 8, 2):
            a(f'v_pk_mul_f32 {vr(E+8*q+r,2)}, {vr(E+8*q+r,2)}, {vr(SUM+4*q,2)} op_sel_hi:[1,0]')
        cvt4(EP + 4 * q, E + 8 * q, E + 8 * q + 4)
        if mid and 3 in mid: mid[3](q)
def ptwrite(q):
    sg, t = q >> 1, q & 1
    for ft in range(2):
        a(f'ds_write_b64 v{16+sg*2+ft}, {vr(EP+q*4+2*ft,2)} offset:{t*2048}')
hedgehog(KXP, {3: ptwrite})
stamp(10)
a('s_waitcnt lgkmcnt(0)')
a('s_barrier')
stamp(11)
ET, VG, KV = 136, 152, 184
for u in range(4):
    for hh in range(2):
        a(f'ds_read_b64_tr_b16 {vr(ET+4*u+2*hh,2)}, v20 offset:{(u*32+hh*16)*128}')
    for dt in range(2):
        a(f'ds_read_b128 {vr(VG+(u*2+dt)*4,4)}, v21 offset:{(u*2+dt)*1024}')
for u in range(4):
    a(f's_waitcnt lgkmcnt({4*(3-u)})')
    for dt in range(2):
        c = vr(KV + 4 * dt, 4)
        a(f'v_mfma_f32_16x16x32_bf16 {c}, {vr(ET+4*u,4)}, {vr(VG+(u*2+dt)*4,4)}, {c if u else 0}')
cvt4(192, KV, KV + 4)
a(f'buffer_store_dwordx4 v[192:195], v11, {R(SWS)}, s36 offen sc1')
stamp(12)
def kvflag():
    stamp(13)
    a('s_waitcnt vmcnt(0)')
    nonce_resolve()
    set_flag(37)
    stamp(2)
    wo_dma()
hedgehog(QXP, {1: kvflag})
for t in range(2):
    a(f'v_mul_f32 v{GSV+t}, s90, v{GSV+t}')
    a(f'v_exp_f32 v{GSV+t}, -v{GSV+t}')
    a(f'v_add_f32 v{GSV+t}, 1.0, v{GSV+t}')
    a(f'v_rcp_f32 v{GSV+t}, v{GSV+t}')
    a(f'v_sub_f32 v{248+t}, 1.0, v{GSV+t}')
a(f's_or_b32 s53, s{S_HP}, s{S_J}')
a('s_cmp_lg_u32 s53, 0')
a('s_cbranch_scc1 L_B_NOG')
a(f's_sub_u32 s53, s40, {WS_OB}')
a('s_lshr_b32 s53, s53, 6')
a(f's_add_u32 s53, s53, {WS_G}')
a('v_lshlrev_b32 v3, 2, v0')
for t in range(2):
    a(f'buffer_store_dword v{GSV+t}, v3, {R(SWS)}, s53 offen offset:{t*256} sc1')
a.label('L_B_NOG')
stamp(3)
p2_setup()
a(f's_lshr_b32 s53, s{S_WAVE}, 1')
a('s_lshr_b32 s5, s53, 1')
a('s_lshl_b32 s5, s5, 11')
a('s_and_b32 s53, s53, 1')
a('s_lshl_b32 s53, s53, 3')
a('s_add_u32 s53, s53, s5')
a(f's_lshl_b32 s5, s{S_J}, 12')
a(f's_add_u32 s5, s5, {L_KVL}')
a('s_add_u32 s53, s53, s5')
a('v_add_u32 v3, s53, v11')
a('v_add_u32 v5, s5, v11')
a('v_mov_b32 v6, 0x3f80')
a('v_mov_b32 v7, 0x3f800000')
RS = 240
for r in range(8): a(f'v_mov_b32 v{RS+r}, 0')
a('s_waitcnt vmcnt(0)')
a('s_barrier')
a(f's_cmp_ge_u32 s{S_WORK}, 28')
a('s_cbranch_scc1 L_B_NOWF')
wfrags()
a.label('L_B_NOWF')
PL = 32
def kvload(p):
    a(f's_add_u32 s53, s39, {p*8192}')
    a(f'buffer_load_dwordx4 {vr(PL+4*p,4)}, v11, {R(SWS)}, s53 offen sc1')
gather(38, 16, None, kvload)
stamp(4)
a('s_waitcnt vmcnt(0)')
for p in range(16):
    for d in range(4):
        a(f'v_dot2_f32_bf16 v{RS+2*d}, v{PL+4*p+d}, v6, v{RS+2*d}')
        a(f'v_dot2_f32_bf16 v{RS+2*d+1}, v{PL+4*p+d}, v7, v{RS+2*d+1}')
a('s_nop 2')
stamp(14)
cvt4(32, RS, RS + 4)
a('ds_write_b64 v3, v[32:33]')
a('ds_write_b64 v3, v[34:35] offset:1024')
a('s_waitcnt lgkmcnt(0)')
a('s_barrier')
KF = 36
for q in range(4):
    a(f'ds_read_b128 {vr(KF+4*q,4)}, v5 offset:{q*1024}')
a(f's_mov_b32 s91, {f2u(1e-6):#x}')
OB = 52
a('s_waitcnt lgkmcnt(2)')
for t in range(2):
    for dt in range(2):
        c = vr(OB + (t * 2 + dt) * 4, 4)
        a(f'v_mfma_f32_16x16x32_bf16 {c}, {vr(KF+dt*4,4)}, {vr(EP+t*4,4)}, 0')
a('s_waitcnt lgkmcnt(0)')
for t in range(2):
    for dt in (1, 0):
        c = vr(OB + (t * 2 + dt) * 4, 4)
        a(f'v_mfma_f32_16x16x32_bf16 {c}, {vr(KF+(2+dt)*4,4)}, {vr(EP+(2+t)*4,4)}, {c}')
a(f'v_mov_b32 v68, v{OB+4}')
a(f'v_mov_b32 v69, v{OB+12}')
a('v_permlane32_swap_b32 v68, v69')
a('v_mov_b32 v68, v69')
a('v_permlane16_swap_b32 v69, v68')
a('v_add_f32 v68, s91, v68')
a('v_rcp_f32 v68, v68')
a('v_mov_b32 v69, v68')
a('v_permlane32_swap_b32 v68, v69')
for t in range(2):
    o = OB + 8 * t
    a(f'v_mul_f32 v{70+2*t}, v{68+t}, v{248+t}')
    for r in range(0, 8, 2): a(f'v_pk_mul_f32 {vr(o+r,2)}, {vr(o+r,2)}, {vr(70+2*t,2)} op_sel_hi:[1,0]')
    cvt4(76 + 4 * t, o, o + 4)
    zero_pad(76 + 4 * t)
    a(f'buffer_store_dwordx4 {vr(76+4*t,4)}, v11, {R(SWS)}, s40 offen sc1')
    a('s_add_u32 s40, s40, 16384')
stamp(15)
a('s_waitcnt vmcnt(0)')
set_flag(41)
stamp(5)
a(f's_cmp_ge_u32 s{S_WORK}, 28')
a('s_cbranch_scc1 L_END')
a('s_branch L_P2')

a.label('L_A')
QP, KP, VP = 24, 32, 44
def a_setup():
    common_consts()
    a('v_lshlrev_b32 v3, 2, v2')
    a('v_add_u32 v228, 9, v1')
    for r in range(4):
        a(f'v_add_u32 v229, {r}, v3')
        a(f'v_cmp_ge_u32 s[{36+2*r}:{37+2*r}], v229, v228')
        a('v_sub_u32 v230, v1, v229')
        a(f'v_cmp_gt_u32 s[{88+2*r}:{89+2*r}], 8, v230')
    o_offsets(WS_OA, 64, 96, 97)
a(f's_cmp_eq_u32 s{S_HH}, 0')
a('s_cbranch_scc1 L_A_COMP')
loader_loop('A', True, SLOT_A, None, a_setup, 0, nonce_prefetch)
a('s_barrier')
for n in range(8):
    a(f'ds_read_b128 {vr(QP+4*n,4)}, v251 offset:{n*1024}')
a('s_waitcnt lgkmcnt(0)')
a('s_branch L_A_EPI')
a.label('L_A_COMP')
a('s_cmp_lg_u32 s2, 255')
a('s_cbranch_scc1 L_A_NOSCAN')
a(f's_cmp_lg_u32 s{S_WAVE}, 3')
a('s_cbranch_scc1 L_A_NOSCAN')
a('v_lshrrev_b32 v3, 2, v0')
a('v_lshlrev_b32 v3, 8, v3')
a('v_and_b32 v4, 3, v0')
a('v_lshl_add_u32 v3, v4, 4, v3')
a(f's_mov_b32 s53, {WS_FL}')
for n in range(12):
    a(f'buffer_load_dwordx4 {vr(100+4*n,4)}, v3, {R(SWS)}, s53 offen sc1')
    a('s_add_u32 s53, s53, 4096')
a('s_memrealtime s[88:89]')
a('s_waitcnt vmcnt(0) lgkmcnt(0)')
a('s_or_b32 s88, s88, 1')
a.label('L_A_SCAN')
a('s_mov_b64 s[90:91], 0')
for n in range(48):
    a(f'v_cmp_eq_u32 vcc, s88, v{100+n}')
    a('s_or_b64 s[90:91], s[90:91], vcc')
a('s_cmp_eq_u64 s[90:91], 0')
a('s_cbranch_scc1 L_A_SCANOK')
a('s_add_u32 s88, s88, 2')
a('s_branch L_A_SCAN')
a.label('L_A_SCANOK')
a('v_mov_b32 v3, 0')
a('v_mov_b32 v5, s88')
a('s_mov_b64 exec, 1')
a(f'buffer_store_dword v5, v3, {R(SDBG)}, 0 offen sc1')
a('s_mov_b64 exec, -1')
a.label('L_A_NOSCAN')
a_setup()
frag_addr_setup(18432, 9216, 1024)
a('v_or_b32 v3, 8, v1')
a('v_lshrrev_b32 v6, 1, v3')
a('v_xor_b32 v6, v2, v6')
a('v_lshlrev_b32 v6, 4, v6')
a('v_and_b32 v3, 7, v3')
a('v_lshl_add_u32 v6, v3, 7, v6')
a(f's_mul_i32 s53, s{S_PI}, 9216')
a('v_add_u32 v6, s53, v6')
a('v_xor_b32 v7, 64, v6')
compute_loop('A', True, SLOT_A)
stamp(1)
nonce_prefetch()
XQ, XK, XV = 56, 64, 76
def packA(q, k, v, t0):
    for t in range(2):
        cvt4(q + 4 * t, ACC + (t0 + t) * 8, ACC + (t0 + t) * 8 + 4)
        zero_pad(q + 4 * t)
    for t in range(3):
        cvt4(k + 4 * t, ACC + 32 + (t0 + t) * 8, ACC + 32 + (t0 + t) * 8 + 4)
    for t in range(3):
        for dt in range(2):
            s = ACC + 72 + ((t0 + t) * 2 + dt) * 4
            a(f'v_cvt_pk_bf16_f32 v{v+dt*6+2*t}, v{s}, v{s+1}')
            a(f'v_cvt_pk_bf16_f32 v{v+dt*6+2*t+1}, v{s+2}, v{s+3}')
packA(XQ, XK, XV, 2)
for n in range(8):
    a(f'ds_write_b128 v251, {vr(XQ+4*n,4)} offset:{n*1024}')
a('s_waitcnt lgkmcnt(0)')
a('s_barrier')
packA(QP, KP, VP, 0)
a.label('L_A_EPI')
a(f's_or_b32 s53, s{S_RB}, s{S_HH}')
a('s_cmp_eq_u32 s53, 0')
for r in range(4):
    a(f's_cselect_b64 s[{56+2*r}:{57+2*r}], 0, s[{36+2*r}:{37+2*r}]')
SC = 88
for t in range(2):
    a(f'v_mfma_f32_16x16x32_bf16 {vr(SC+8*t,4)}, {vr(KP+4*t,4)}, {vr(QP+4*t,4)}, 0')
    a(f'v_mfma_f32_16x16x32_bf16 {vr(SC+8*t+4,4)}, {vr(KP+4*(t+1),4)}, {vr(QP+4*t,4)}, 0')
MX = 104
for t in range(2):
    for r in range(4):
        mp = (56 if t == 0 else 36) + 2 * r
        a(f'v_cndmask_b32_e64 v{SC+8*t+r}, v10, v{SC+8*t+r}, s[{mp}:{mp+1}]')
        a(f'v_cndmask_b32_e64 v{SC+8*t+4+r}, v10, v{SC+8*t+4+r}, s[{88+2*r}:{89+2*r}]')
    s = SC + 8 * t
    a(f'v_max3_f32 v{MX+t}, v{s}, v{s+1}, v{s+2}')
    a(f'v_max3_f32 v{MX+t}, v{MX+t}, v{s+3}, v{s+4}')
    a(f'v_max3_f32 v{MX+t}, v{MX+t}, v{s+5}, v{s+6}')
    a(f'v_max_f32 v{MX+t}, v{MX+t}, v{s+7}')
xlane2('v_max_f32', MX, MX + 1)
a(f's_mov_b32 s64, {f2u(28 ** -0.5 * LOG2E):#x}')
PP = 108
OO = 116
for t in range(2):
    a(f'v_mul_f32 v{MX+t}, s64, v{MX+t}')
    for r in range(8):
        a(f'v_fma_f32 v{SC+8*t+r}, v{SC+8*t+r}, s64, -v{MX+t}')
    for r in range(8):
        a(f'v_exp_f32 v{SC+8*t+r}, v{SC+8*t+r}')
    cvt4(PP + 4 * t, SC + 8 * t, SC + 8 * t + 4)
    a(f'v_mfma_f32_16x16x32_bf16 {vr(OO+12*t+8,4)}, {vr(ONES,4)}, {vr(PP+4*t,4)}, 0')
    for dt in range(2):
        a(f'v_mfma_f32_16x16x32_bf16 {vr(OO+12*t+4*dt,4)}, {vr(VP+dt*6+2*t,4)}, {vr(PP+4*t,4)}, 0')
for t in range(2):
    o = OO + 12 * t
    a(f'v_rcp_f32 v{o+8}, v{o+8}')
    for r in range(0, 8, 2):
        a(f'v_pk_mul_f32 {vr(o+r,2)}, {vr(o+r,2)}, {vr(o+8,2)} op_sel_hi:[1,0]')
    cvt4(140 + 4 * t, o, o + 4)
    zero_pad(140 + 4 * t)
    a(f'buffer_store_dwordx4 {vr(140+4*t,4)}, v11, {R(SWS)}, s96 offen sc1')
    a('s_add_u32 s96, s96, 16384')
p2_setup()
a('s_waitcnt vmcnt(0)')
nonce_resolve()
set_flag(97)
stamp(2)
a('s_barrier')
wo_dma()
a('s_waitcnt vmcnt(0)')
a('s_barrier')
wfrags()

a.label('L_P2')
def half(br, acc):
    poll(65, 's67' if br else 's66')
    stamp(6 + 2 * br)
    a(f's_add_u32 s53, s64, {br*WS_OB}')
    for h in range(8):
        if h == 4: a('s_add_u32 s53, s53, 4096')
        a(f'buffer_load_dwordx4 {vr(OF+4*h,4)}, v11, {R(SWS)}, s53 offen offset:{(h%4)*1024} sc1')
    if br:
        a('s_lshl_b32 s53, s63, 8')
        a(f's_add_u32 s53, s53, {WS_G}')
        a('v_lshlrev_b32 v12, 2, v0')
        a(f'buffer_load_dword v13, v12, {R(SWS)}, s53 offen sc1')
    a('s_waitcnt lgkmcnt(0)')
    for h in range(8):
        a(f's_waitcnt vmcnt({7-h+br})')
        for T in range(4):
            c = vr(acc + 4 * T, 4)
            a(f'v_mfma_f32_16x16x32_bf16 {c}, {vr(WB+(h*4+T)*4,4)}, {vr(OF+4*h,4)}, {c if h else 0}')
half(0, PA)
stamp(7)
for r in range(16, 32): a(f'v_add_u32 v{r}, 57344, v{r}')
a('s_add_u32 s65, s65, 16384')
wfrags()
a('s_lshl_b32 s53, s54, 12')
if L_RED: a(f's_add_u32 s53, s53, {L_RED}')
a('v_add_u32 v3, s53, v11')
a(f's_lshr_b32 s62, s{S_PT}, 1')
a('s_lshl_b32 s62, s62, 7')
a(f's_and_b32 s53, s{S_PT}, 1')
a('s_add_u32 s62, s62, s53')
a('s_lshl_b32 s53, s54, 5')
a('s_add_u32 s62, s62, s53')
a('s_mul_i32 s62, s62, 896')
a(f's_lshl_b32 s53, s{S_NB}, 7')
a('s_add_u32 s62, s62, s53')
a(f's_lshl_b32 s53, s{S_HH}, 6')
a('s_add_u32 s62, s62, s53')
a('v_mul_u32_u24 v5, 1792, v1')
a('v_lshl_add_u32 v5, v2, 3, v5')
half(1, PB)
a('s_waitcnt vmcnt(0)')
for r in range(16):
    a(f'v_fma_f32 v{PB+r}, v{PA+r}, v13, v{PB+r}')
a(f's_cmp_eq_u32 s{S_HH}, 0')
a('s_cbranch_scc1 L_P2_K0')
a(f'ds_write_b128 v3, {vr(PB,4)}')
a(f'ds_write_b128 v3, {vr(PB+4,4)} offset:1024')
a('s_waitcnt lgkmcnt(0)')
a('s_barrier')
a(f'ds_read_b128 {vr(PA,4)}, v3 offset:2048')
a(f'ds_read_b128 {vr(PA+4,4)}, v3 offset:3072')
for r in range(8): a(f'v_mov_b32 v{PB+r}, v{PB+8+r}')
a('s_branch L_P2_ST')
a.label('L_P2_K0')
a(f'ds_write_b128 v3, {vr(PB+8,4)} offset:2048')
a(f'ds_write_b128 v3, {vr(PB+12,4)} offset:3072')
a('s_waitcnt lgkmcnt(0)')
a('s_barrier')
a(f'ds_read_b128 {vr(PA,4)}, v3')
a(f'ds_read_b128 {vr(PA+4,4)}, v3 offset:1024')
a.label('L_P2_ST')
a('s_waitcnt lgkmcnt(0)')
for r in range(8): a(f'v_add_f32 v{PB+r}, v{PB+r}, v{PA+r}')
for T in range(2):
    a(f'v_cvt_pk_bf16_f32 v{PA+8+2*T}, v{PB+4*T}, v{PB+4*T+1}')
    a(f'v_cvt_pk_bf16_f32 v{PA+9+2*T}, v{PB+4*T+2}, v{PB+4*T+3}')
    a(f'buffer_store_dwordx2 {vr(PA+8+2*T,2)}, v5, {R(SOUT)}, s62 offen offset:{32*T}')
a.label('L_END')
if STAMP:
    a('s_waitcnt vmcnt(0)')
    stamp(9)
    a('s_lshl_b32 s3, s2, 3')
    a(f's_add_u32 s3, s3, s{S_WAVE}')
    a('s_lshl_b32 s3, s3, 8')
    a(f's_add_u32 s3, s3, {WS_ST}')
    a('v_lshlrev_b32 v3, 2, v0')
    a(f'buffer_store_dword v250, v3, {R(SWS)}, s3 offen')
    a('s_waitcnt vmcnt(0)')
a.label('L_EXIT')
a('s_endpgm')

a.raw('.section .rodata,"a"')
a.raw('.p2align 6')
a.raw(f'.amdhsa_kernel {KN}')
a.raw('  .amdhsa_next_free_vgpr 256')
a.raw('  .amdhsa_next_free_sgpr 102')
a.raw('  .amdhsa_accum_offset 256')
a.raw('  .amdhsa_group_segment_fixed_size 0')
a.raw('  .amdhsa_kernarg_size 88')
a.raw('  .amdhsa_user_sgpr_count 2')
a.raw('  .amdhsa_user_sgpr_kernarg_segment_ptr 1')
a.raw('  .amdhsa_system_sgpr_workgroup_id_x 1')
a.raw('.end_amdhsa_kernel')
sys.stdout.write(a.text())
```

```python
import sys, math, os, struct
from asmlib import *
STAMP = os.environ.get('STAMP') == '1'
SPIN = int(os.environ.get('SPIN', '200000'))

KN = 'gated_mix__sliding_local_dilated__linear_kernel_hedgehog__prompt_kernel'
WS_OA = 0
WS_OB = 2 << 20
WS_KVP = 5 << 20
WS_FL = 6 << 20
WS_ST = 7 << 20
WS_SIZE = 8 << 20
LOG2E = 1.4426950408889634
def f2u(x): return struct.unpack('<I', struct.pack('<f', x))[0]

SLOT_A = 18432 + 24576
SLOT_B = 16384 + 24576
L_GATE = 129024
L_WO = 0
L_XA = 131072
L_XB = 0
L_XG = 116736
L_PT = 114688
L_VF = 147456
L_KVL = 114688
L_RED = 131072
LDS = 163840

a = Asm()
a.raw(f'; @launch grid=(256,1,1) block=(512,1,1) lds={LDS}')
a.raw('.amdgcn_target "amdgcn-amd-amdhsa--gfx950"')
a.raw('.text')
a.raw(f'.globl {KN}')
a.raw('.p2align 8')
a.raw(f'.type {KN},@function')
a.label(KN, pad=False)

SX, SW, SWS, SPHI, SGATE, SDBG, SWOA, SWOB, SOUT = 8, 12, 16, 20, 24, 28, 72, 76, 80
S_RB, S_HP, S_BR, S_WAVE, S_ROT, S_NONCE = 32, 33, 34, 35, 48, 49
S_J, S_PI, S_HH = 50, 51, 52
S_PT, S_NB, S_WORK = 46, 47, 45
M48 = 84
VT0, VT1, VNON, VT2 = 252, 253, 254, 255

def srd(dst, lo, size):
    a(f's_mov_b32 s{dst}, s{lo}')
    a(f's_and_b32 s{dst+1}, s{lo+1}, 0xffff')
    a(f's_mov_b32 s{dst+2}, {size}')
    a(f's_mov_b32 s{dst+3}, 0x00020000')
def R(s): return f's[{s}:{s+3}]'
def stamp(n):
    if STAMP:
        a('s_memrealtime s[98:99]')
        a('s_waitcnt lgkmcnt(0)')
        a(f'v_writelane_b32 v250, s98, {n}')

a('s_cmp_ge_u32 s2, 256')
a('s_cbranch_scc1 L_EXIT')
a('s_load_dwordx8 s[36:43], s[0:1], 0')
a('s_load_dwordx8 s[56:63], s[0:1], 32')
a('s_load_dwordx4 s[64:67], s[0:1], 64')
a('s_load_dwordx2 s[44:45], s[0:1], 80')
if STAMP:
    a('v_mov_b32 v250, 0')
    a('s_memrealtime s[98:99]')
a('v_lshrrev_b32 v1, 6, v0')
a('v_and_b32 v0, 63, v0')
a(f'v_readfirstlane_b32 s{S_WAVE}, v1')
a('s_and_b32 s3, s2, 7')
a('s_lshr_b32 s7, s2, 3')
a('s_and_b32 s4, s7, 15')
a(f's_lshr_b32 s{S_BR}, s2, 7')
a('s_and_b32 s5, s3, 3')
a('s_lshl_b32 s5, s5, 2')
a('s_and_b32 s6, s4, 3')
a(f's_add_u32 s{S_RB}, s5, s6')
a('s_lshr_b32 s5, s3, 2')
a('s_lshl_b32 s5, s5, 2')
a('s_lshr_b32 s6, s4, 2')
a(f's_add_u32 s{S_HP}, s5, s6')
a(f's_mul_i32 s5, s{S_HP}, 3')
a(f's_add_u32 s5, s5, s{S_RB}')
a(f's_mul_i32 s6, s{S_BR}, 5')
a('s_add_u32 s5, s5, s6')
a('s_mul_i32 s6, s5, 37')
a('s_lshr_b32 s6, s6, 8')
a('s_mul_i32 s6, s6, 7')
a(f's_sub_u32 s{S_ROT}, s5, s6')
a('s_xor_b32 s7, s7, 16')
a('s_mul_i32 s5, s7, 37')
a('s_lshr_b32 s5, s5, 8')
a('s_mul_i32 s6, s5, 7')
a(f's_sub_u32 s{S_NB}, s7, s6')
a('s_lshl_b32 s3, s3, 2')
a(f's_add_u32 s{S_PT}, s3, s5')
a(f's_and_b32 s{S_J}, s{S_WAVE}, 1')
a(f's_lshr_b32 s{S_PI}, s{S_WAVE}, 1')
a(f's_and_b32 s{S_PI}, s{S_PI}, 1')
a(f's_lshr_b32 s{S_HH}, s{S_WAVE}, 2')
a('v_lshrrev_b32 v3, 3, v0')
a('v_and_b32 v4, 7, v0')
a('v_lshrrev_b32 v5, 1, v3')
a('v_xor_b32 v16, v4, v5')
a('v_lshlrev_b32 v16, 4, v16')
a('v_mul_u32_u24 v6, 1792, v3')
a('v_xor_b32 v17, 64, v16')
a('v_add_u32 v16, v16, v6')
a('v_add_u32 v17, v17, v6')
a('v_add_u32 v17, 14336, v17')
a('v_add_u32 v18, 28672, v16')
a('v_add_u32 v19, 28672, v17')
a('v_and_b32 v7, 1, v5')
a('v_lshlrev_b32 v7, 1, v7')
a('v_xor_b32 v20, v4, v7')
a('v_xor_b32 v21, 4, v20')
a('v_min_u32 v20, 6, v20')
a('v_min_u32 v21, 6, v21')
a('v_lshlrev_b32 v20, 4, v20')
a('v_lshlrev_b32 v21, 4, v21')
a(f's_and_b32 s54, s{S_WAVE}, 3')
a('s_lshl_b32 s53, s54, 4')
a('v_add_u32 v7, s53, v3')
a('v_mul_u32_u24 v7, 2688, v7')
a('v_add_u32 v20, v20, v7')
a('v_add_u32 v21, v21, v7')
a('v_add_u32 v21, 21504, v21')
a(f's_lshl_b32 s53, s{S_J}, 1')
a('s_add_u32 s53, s53, 4')
a('v_add_u32 v22, s53, v5')
a('v_xor_b32 v22, v4, v22')
a('v_lshlrev_b32 v22, 4, v22')
a('v_add_u32 v22, v22, v6')
a(f's_lshl_b32 s53, s{S_J}, 2')
a('s_add_u32 s53, s53, 8')
a('s_mul_i32 s53, s53, 1792')
a('v_add_u32 v22, s53, v22')
a(f's_lshl_b32 s55, s{S_RB}, 7')
a('s_max_u32 s86, s55, 32')
a('s_sub_u32 s86, s86, 32')
a(f's_add_u32 s86, s86, s{S_PI}')
a('s_mul_i32 s86, s86, 896')
a(f's_lshl_b32 s53, s{S_J}, 6')
a('s_add_u32 s55, s55, s53')
a(f's_add_u32 s55, s55, s{S_PI}')
a('s_mul_i32 s55, s55, 896')
a(f's_mul_i32 s87, s{S_HP}, 112')
a('v_and_b32 v1, 15, v0')
a('v_lshrrev_b32 v2, 4, v0')
a('v_lshlrev_b32 v11, 4, v0')
a('s_waitcnt lgkmcnt(0)')
if STAMP: a('v_writelane_b32 v250, s98, 0')
srd(SX, 36, 2048 * 896)
a(f's_cmp_eq_u32 s{S_BR}, 1')
a('s_cselect_b32 s4, s38, s56')
a('s_cselect_b32 s5, s39, s57')
srd(SW, 4, 448 * 2688)
srd(SWS, 44, WS_SIZE)
srd(SPHI, 58, 16 * 28 * 28 * 2)
srd(SGATE, 62, 896)
srd(SDBG, 66, 256)
srd(SWOA, 40, 448 * 896)
srd(SWOB, 60, 448 * 896)
srd(SOUT, 64, 2048 * 896)
a(f's_mov_b32 s{S_WORK}, s7')
a(f's_mov_b32 s60, s{S_ROT}')
a(f's_cmp_eq_u32 s{S_BR}, 1')
a('s_cbranch_scc1 L_A')

uid = [0]
ONES = 12
def common_consts(xbase):
    a(f'v_lshrrev_b32 v248, 3, v0')
    a(f'v_and_b32 v{VT2}, 6, v248')
    a(f'v_mul_u32_u24 v248, 896, v248')
    a(f'v_xor_b32 v{VT2}, v0, v{VT2}')
    a(f'v_and_b32 v{VT2}, 7, v{VT2}')
    a(f'v_lshl_add_u32 v248, v{VT2}, 4, v248')
    a(f's_mul_i32 s53, s{S_WAVE}, {7*7168}')
    a(f's_lshl_b32 s54, s{S_NB}, 7')
    a('s_add_u32 s53, s53, s54')
    a('v_add_u32 v248, s53, v248')
    a(f's_mul_i32 s44, s{S_WAVE}, 7168')
    a(f'v_cmp_le_u32 s[{M48}:{M48+1}], 48, v0')
    a('v_mov_b32 v10, 0xff800000')
    for r in range(4): a(f'v_mov_b32 v{ONES+r}, 0x3f803f80')
    a(f's_and_b32 s53, s{S_WAVE}, 3')
    a('s_lshl_b32 s53, s53, 13')
    if xbase: a(f's_add_u32 s53, s53, {xbase}')
    a('v_add_u32 v251, s53, v11')
    a(f's_mov_b32 s90, {f2u(LOG2E):#x}')
def frag_addr_setup(WOFF, XP):
    a('v_lshrrev_b32 v3, 2, v1')
    a('v_and_b32 v16, 3, v0')
    a('v_lshl_add_u32 v17, v2, 3, v3')
    a('v_lshlrev_b32 v17, 7, v17')
    a('v_lshrrev_b32 v18, 1, v3')
    a('v_lshlrev_b32 v18, 1, v18')
    a('v_and_b32 v19, 1, v2')
    a('v_lshl_add_u32 v18, v19, 2, v18')
    a(f's_mul_i32 s53, s{S_J}, 56')
    a('v_lshlrev_b32 v19, 3, v16')
    a('v_add_u32 v19, s53, v19')
    for dt in range(2):
        if dt: a('v_add_u32 v19, 32, v19')
        a('v_lshrrev_b32 v20, 4, v19')
        a('v_xor_b32 v20, v20, v18')
        a('v_lshlrev_b32 v20, 4, v20')
        a('v_and_b32 v21, 8, v19')
        a(f'v_add3_u32 v{8+dt}, v17, v20, v21')
        a(f'v_add_u32 v{8+dt}, {WOFF}, v{8+dt}')
    a('v_lshrrev_b32 v3, 1, v1')
    a('v_xor_b32 v4, v2, v3')
    a('v_lshlrev_b32 v4, 4, v4')
    a('v_lshl_add_u32 v4, v1, 7, v4')
    a(f's_mul_i32 s53, s{S_PI}, {XP}')
    a('v_add_u32 v4, s53, v4')
    a('v_xor_b32 v5, 64, v4')
    a(f's_lshl_b32 s53, s{S_ROT}, 7')
    a(f's_add_u32 s53, s53, {L_GATE}')
    a('v_lshlrev_b32 v3, 4, v2')
    a('v_add_u32 v3, s53, v3')
    a(f's_mov_b32 s71, s{S_ROT}')

def loader_loop(tag, isA, SLOT, post=None, nextra=0, mid=None):
    XP = 9216 if isA else 8192
    XH = 1024 if isA else 0
    WOFF = 18432 if isA else 16384
    nops = 11 if isA else 10
    a(f's_mul_i32 s58, s{S_PI}, {XP}')
    if isA:
        a(f's_lshl_b32 s71, s{S_J}, 9')
        a('s_add_u32 s71, s71, s58')
    a(f's_lshl_b32 s53, s{S_J}, 12')
    a('s_add_u32 s58, s58, s53')
    if XH: a(f's_add_u32 s58, s58, {XH}')
    a(f's_and_b32 s59, s{S_WAVE}, 3')
    a('s_lshl_b32 s59, s59, 11')
    a(f's_add_u32 s59, s59, {WOFF}')
    a(f's_mov_b32 s68, {SLOT}')
    a(f's_mov_b32 s69, {3*SLOT}')
    a('s_mov_b32 s61, 0')
    def issue():
        a('s_lshl_b32 s62, s60, 7')
        if isA: a('s_add_u32 s63, s62, s86')
        a('s_add_u32 s62, s62, s55')
        a('s_mul_i32 s64, s60, 172032')
        a('s_add_u32 s64, s64, s87')
        a('s_add_u32 s60, s60, 1')
        a('s_cmp_eq_u32 s60, 7')
        a('s_cselect_b32 s60, 0, s60')
        a('s_add_u32 s65, s58, s61')
        a('s_add_u32 s56, s59, s61')
        for n in range(4):
            a(f's_add_u32 m0, s65, {n*1024}')
            a(f'buffer_load_dwordx4 v{16+n}, {R(SX)}, s62 offen lds')
        if isA:
            a('s_add_u32 m0, s71, s61')
            a('s_mov_b32 exec_hi, 0')
            a(f'buffer_load_dwordx4 v22, {R(SX)}, s63 offen lds')
            a('s_mov_b32 exec_hi, -1')
        for b in range(3):
            if b: a(f's_add_u32 s66, s64, {b*896}')
            for h in range(2):
                a(f's_add_u32 m0, s56, {b*8192 + h*1024}')
                a(f'buffer_load_dwordx4 v{20+h}, {R(SW)}, s{66 if b else 64} offen lds')
        a('s_add_u32 s61, s61, s68')
        a('s_cmp_eq_u32 s61, s69')
        a('s_cselect_b32 s61, 0, s61')
    a(f's_cmp_lg_u32 s{S_WAVE}, 7')
    a(f's_cbranch_scc1 L_NOGATE_{tag}')
    a(f's_mov_b32 m0, {L_GATE}')
    a(f'buffer_load_dwordx4 v11, {R(SGATE)}, 0 offen lds')
    a.label(f'L_NOGATE_{tag}')
    issue()
    issue()
    a('s_mov_b32 s67, 0')
    a.label(f'L_LD_{tag}')
    a(f's_waitcnt vmcnt({nops})')
    a('s_barrier')
    issue()
    a('s_add_u32 s67, s67, 1')
    a('s_cmp_lt_u32 s67, 5')
    a(f's_cbranch_scc1 L_LD_{tag}')
    if post: post()
    a(f's_waitcnt vmcnt({nops + nextra})')
    a('s_barrier')
    a(f's_waitcnt vmcnt({nextra})')
    a('s_barrier')
    if mid: mid()
    a('s_barrier')

def compute_loop(tag, SLOT, F0, F1, reads, mfmas, addr_regs):
    def interleave(M, Rr):
        for n, m in enumerate(M):
            a(m)
            if n < len(Rr): a(Rr[n])
    a(f's_mov_b32 s68, {SLOT}')
    a(f's_mov_b32 s69, {-2*SLOT & 0xffffffff}')
    a('s_movk_i32 s60, 128')
    a('s_movk_i32 s61, -768')
    a('s_mov_b32 s67, 0')
    a('s_mov_b32 s70, 0')
    a('s_barrier')
    for r in reads(F0, 0): a(r)
    a.label(f'L_CP_{tag}')
    a('s_waitcnt lgkmcnt(0)')
    interleave(mfmas(F0), reads(F1, 1))
    a('s_add_u32 s70, s70, 1')
    a('s_cmp_eq_u32 s70, 3')
    a('s_cselect_b32 s53, s69, s68')
    a('s_cselect_b32 s70, 0, s70')
    a('s_waitcnt lgkmcnt(0)')
    for r in addr_regs: a(f'v_add_u32 v{r}, s53, v{r}')
    a('s_add_u32 s71, s71, 1')
    a('s_cmp_eq_u32 s71, 7')
    a('s_cselect_b32 s53, s61, s60')
    a('s_cselect_b32 s71, 0, s71')
    a('v_add_u32 v3, s53, v3')
    a('s_barrier')
    interleave(mfmas(F1), reads(F0, 0))
    a('s_add_u32 s67, s67, 1')
    a('s_cmp_lt_u32 s67, 7')
    a(f's_cbranch_scc1 L_CP_{tag}')
    a('s_waitcnt lgkmcnt(0)')

def xlane4(op, m):
    m0, m1, m2, m3 = m
    a(f'v_permlane32_swap_b32 v{m0}, v{m1}')
    a(f'v_permlane32_swap_b32 v{m2}, v{m3}')
    a(f'{op} v{m0}, v{m0}, v{m1}')
    a(f'{op} v{m2}, v{m2}, v{m3}')
    a(f'v_permlane16_swap_b32 v{m0}, v{m2}')
    a(f'{op} v{m0}, v{m0}, v{m2}')
    a(f'v_mov_b32 v{m2}, v{m0}')
    a(f'v_permlane16_swap_b32 v{m0}, v{m2}')
    a(f'v_mov_b32 v{m1}, v{m0}')
    a(f'v_mov_b32 v{m3}, v{m2}')
    a(f'v_permlane32_swap_b32 v{m0}, v{m1}')
    a(f'v_permlane32_swap_b32 v{m2}, v{m3}')
def xlane2(op, m0, m1):
    a(f'v_permlane32_swap_b32 v{m0}, v{m1}')
    a(f'{op} v{m0}, v{m0}, v{m1}')
    a(f'v_mov_b32 v{m1}, v{m0}')
    a(f'v_permlane16_swap_b32 v{m0}, v{m1}')
    a(f'{op} v{m0}, v{m0}, v{m1}')
    a(f'v_mov_b32 v{m1}, v{m0}')
    a(f'v_permlane32_swap_b32 v{m0}, v{m1}')
def cvt4(dst, s0, s1):
    a(f'v_cvt_pk_bf16_f32 v{dst}, v{s0}, v{s0+1}')
    a(f'v_cvt_pk_bf16_f32 v{dst+1}, v{s0+2}, v{s0+3}')
    a(f'v_cvt_pk_bf16_f32 v{dst+2}, v{s1}, v{s1+1}')
    a(f'v_cvt_pk_bf16_f32 v{dst+3}, v{s1+2}, v{s1+3}')
def zero_pad(r):
    a(f'v_cndmask_b32_e64 v{r+2}, v{r+2}, 0, s[{M48}:{M48+1}]')
    a(f'v_cndmask_b32_e64 v{r+3}, v{r+3}, 0, s[{M48}:{M48+1}]')

def nonce_prefetch():
    a(f'v_mov_b32 v{VT0}, 0')
    a(f'buffer_load_dword v{VNON}, v{VT0}, {R(SDBG)}, 0 offen sc1')
def nonce_resolve():
    uid[0] += 1; u = uid[0]
    a('s_mov_b32 s3, 0')
    a.label(f'L_GN_{u}')
    a(f'v_readfirstlane_b32 s{S_NONCE}, v{VNON}')
    a(f's_cmp_lg_u32 s{S_NONCE}, 0')
    a(f's_cbranch_scc1 L_GNX_{u}')
    a('s_sleep 2')
    nonce_prefetch()
    a('s_waitcnt vmcnt(0)')
    a('s_add_u32 s3, s3, 1')
    a(f's_cmp_lt_u32 s3, {SPIN}')
    a(f's_cbranch_scc1 L_GN_{u}')
    a.label(f'L_GNX_{u}')
def set_flag(off_sgpr):
    a(f'v_mov_b32 v{VT0}, 0')
    a(f'v_mov_b32 v{VT1}, s{S_NONCE}')
    a('s_mov_b64 exec, 1')
    a(f'buffer_store_dword v{VT1}, v{VT0}, {R(SWS)}, s{off_sgpr} offen sc1')
    a('s_mov_b64 exec, -1')
def gather(vaddr, off_sgpr, extract, load, acc, n=16):
    uid[0] += 1; u = uid[0]
    full = (1 << n) - 1
    a('s_mov_b32 s3, 0')
    a('s_mov_b32 s42, 0')
    a('s_mov_b32 s43, 0')
    a.label(f'L_GA_{u}')
    a(f's_cmp_eq_u32 s42, {full}')
    a(f's_cbranch_scc1 L_GNP_{u}')
    a(f'buffer_load_dword v{VT1}, v{vaddr}, {R(SWS)}, s{off_sgpr} offen sc1')
    a.label(f'L_GNP_{u}')
    a('s_waitcnt vmcnt(0)')
    a(f'v_cmp_eq_u32 vcc, s{S_NONCE}, v{VT1}')
    extract()
    a('s_andn2_b32 s7, s4, s42')
    a('s_or_b32 s42, s42, s4')
    a('s_cmp_eq_u32 s7, 0')
    a(f's_cbranch_scc1 L_GNL_{u}')
    for p in range(n):
        a(f's_bitcmp1_b32 s7, {p}')
        a(f's_cbranch_scc0 L_GK_{u}_{p}')
        load(p)
        a.label(f'L_GK_{u}_{p}', pad=False)
    a.label(f'L_GNL_{u}')
    a('s_cmp_eq_u32 s43, 0')
    a(f's_cbranch_scc1 L_GNA_{u}')
    for p in range(n):
        a.raw(f'    s_bitcmp1_b32 s43, {p}')
        a.raw(f'    s_cbranch_scc0 L_GQ_{u}_{p}')
        acc(p)
        a.label(f'L_GQ_{u}_{p}', pad=False)
    a.label(f'L_GNA_{u}')
    a('s_mov_b32 s43, s7')
    a('s_cmp_lg_u32 s7, 0')
    a(f's_cbranch_scc1 L_GA_{u}')
    a(f's_cmp_eq_u32 s42, {full}')
    a(f's_cbranch_scc1 L_GAX_{u}')
    a('s_sleep 1')
    a('s_add_u32 s3, s3, 1')
    a(f's_cmp_lt_u32 s3, {SPIN}')
    a(f's_cbranch_scc1 L_GA_{u}')
    a.label(f'L_GAX_{u}')
    a('s_nop 7')

def wo_ops(br):
    return [[f's_add_u32 m0, s44, {L_WO + (1-br)*57344 + n*1024}', f's_mov_b32 s5, {n*7168}',
             f'buffer_load_dwordx4 v248, {R(SWOA if br == 0 else SWOB)}, s5 offen lds'] for n in range(7)]
class Spread:
    def __init__(self): self.fill = []; self.step = 1; self.cnt = 0
    def start(self, fill, step): self.fill = list(fill); self.step = step; self.cnt = 0
    def tick(self):
        if self.fill:
            self.cnt += 1
            if self.cnt >= self.step:
                self.cnt = 0
                for i in self.fill.pop(0): a(i)
    def finish(self):
        while self.fill:
            for i in self.fill.pop(0): a(i)
SP = Spread()
def av(t):
    a(t); SP.tick()

def o_offsets(wsbase, base_group, dst_o, dst_f):
    a(f's_lshl_b32 s53, s{S_RB}, 1')
    a(f's_add_u32 s53, s53, s{S_PI}')
    a('s_lshl_b32 s53, s53, 1')
    a(f's_add_u32 s53, s53, s{S_HH}')
    a(f's_lshl_b32 s54, s{S_HP}, 1')
    a(f's_add_u32 s54, s54, s{S_J}')
    a(f's_lshl_b32 s{dst_o}, s53, 5')
    a(f's_add_u32 s{dst_o}, s{dst_o}, s54')
    a(f's_lshl_b32 s{dst_o}, s{dst_o}, 10')
    if wsbase: a(f's_add_u32 s{dst_o}, s{dst_o}, {wsbase}')
    a(f's_lshl_b32 s{dst_f}, s53, 8')
    a('s_lshl_b32 s54, s54, 2')
    a(f's_add_u32 s{dst_f}, s{dst_f}, s54')
    a(f's_add_u32 s{dst_f}, s{dst_f}, {WS_FL + base_group*256}')

AC2, OF, WB = 32, 48, 96
def p2_setup():
    a('v_lshrrev_b32 v3, 2, v1')
    a('v_and_b32 v4, 3, v0')
    a('v_lshl_add_u32 v5, v2, 2, v3')
    a('v_lshlrev_b32 v5, 7, v5')
    a('v_lshl_add_u32 v5, v4, 3, v5')
    a(f's_mul_i32 s53, s{S_HH}, 28672')
    a(f's_add_u32 s53, s53, {L_WO + 57344}')
    a('v_add_u32 v5, s53, v5')
    a('v_mov_b32 v7, 2048')
    a(f'v_cndmask_b32_e64 v7, v7, 0, s[{M48}:{M48+1}]')
    a('v_lshrrev_b32 v6, 1, v3')
    a('v_lshl_add_u32 v6, v2, 1, v6')
    for par in range(2):
        a(f'v_add_u32 v8, {2*par}, v6')
        a('v_and_b32 v8, 3, v8')
        for T in range(4):
            a(f'v_xor_b32 v9, {T}, v8')
            a(f'v_lshl_add_u32 v{16+par*8+T}, v9, 5, v5')
            a(f'v_add_u32 v{16+par*8+4+T}, v{16+par*8+T}, v7')
    a(f's_and_b32 s54, s{S_WAVE}, 3')
    a(f's_lshl_b32 s63, s{S_PT}, 2')
    a('s_add_u32 s63, s63, s54')
    a('s_lshl_b32 s64, s63, 14')
    a(f's_lshl_b32 s53, s{S_HH}, 13')
    a('s_add_u32 s64, s64, s53')
    a('s_lshr_b32 s65, s63, 1')
    a('s_lshl_b32 s65, s65, 8')
    a(f's_add_u32 s65, s65, {WS_FL + 64*256}')
    a(f's_lshl_b32 s66, s{S_HH}, 3')
    a('v_lshlrev_b32 v6, 2, v1')
    for r in range(16): a(f'v_mov_b32 v{AC2+r}, 0')

WP = 240
KXP, QXP, GSV = 24, 32, 40
F0, F1, ACC = 24, 68, 112
def b_setup():
    a(f's_lshl_b32 s53, s{S_HP}, 1')
    a(f's_add_u32 s53, s53, s{S_J}')
    a('s_mul_i32 s53, s53, 1568')
    a('v_mul_u32_u24 v5, 224, v2')
    a('v_lshl_add_u32 v3, v1, 1, v5')
    a('v_add_u32 v6, 16, v1')
    a('v_min_u32 v6, 27, v6')
    a('v_lshl_add_u32 v6, v6, 1, v5')
    for ft, vo in ((0, 3), (1, 6)):
        for j in range(8):
            d = j if j < 4 else 16 + (j - 4)
            a(f'buffer_load_ushort v{224+ft*8+j}, v{vo}, {R(SPHI)}, s53 offen offset:{d*56}')
    common_consts(L_XB)
    a('v_cmp_eq_u32 s[88:89], 12, v1')
    a(f's_lshl_b32 s36, s{S_HP}, 4')
    a(f's_add_u32 s36, s36, s{S_RB}')
    a('s_lshl_b32 s36, s36, 3')
    a(f's_add_u32 s36, s36, s{S_WAVE}')
    a('s_lshl_b32 s36, s36, 10')
    a(f's_add_u32 s36, s36, {WS_KVP}')
    a(f's_lshl_b32 s38, s{S_HP}, 3')
    a(f's_add_u32 s38, s38, s{S_WAVE}')
    a('s_lshl_b32 s38, s38, 8')
    a(f's_add_u32 s38, s38, {WS_FL}')
    a(f's_lshl_b32 s54, s{S_RB}, 2')
    a('s_add_u32 s37, s38, s54')
    a(f's_lshl_b32 s39, s{S_HP}, 17')
    a(f's_lshl_b32 s54, s{S_WAVE}, 10')
    a('s_add_u32 s39, s39, s54')
    a(f's_add_u32 s39, s39, {WS_KVP}')
    o_offsets(WS_OB, 128, 40, 41)
    a(f's_mov_b32 s91, {f2u(1e-6):#x}')
def b_late():
    a('s_waitcnt vmcnt(0)')
    for ft in range(2):
        for jj in range(4):
            a(f'v_lshl_or_b32 v{WP+ft*4+jj}, v{224+ft*8+2*jj+1}, 16, v{224+ft*8+2*jj}')
        zero_pad(WP + ft * 4)
    a(f's_lshr_b32 s53, s{S_WAVE}, 1')
    a(f's_lshl_b32 s54, s{S_J}, 13')
    a(f's_add_u32 s54, s54, {L_VF}')
    a('v_add_u32 v21, s54, v11')
    a(f's_lshl_b32 s62, s{S_PI}, 11')
    a('v_add_u32 v22, s62, v21')
    a('v_lshrrev_b32 v6, 1, v1')
    a('v_and_b32 v6, 3, v6')
    a('v_lshlrev_b32 v6, 5, v6')
    a('v_lshl_add_u32 v6, v2, 3, v6')
    a('v_lshl_add_u32 v16, v1, 7, v6')
    a(f's_lshl_b32 s54, s{S_J}, 14')
    a(f's_add_u32 s54, s54, {L_PT}')
    a('s_lshl_b32 s62, s53, 12')
    a('s_add_u32 s62, s62, s54')
    a('v_add_u32 v16, s62, v16')
    for Ft in range(1, 4):
        a(f'v_xor_b32 v{16+Ft}, {Ft*32}, v16')
    a('v_lshrrev_b32 v6, 2, v1')
    a('v_lshl_add_u32 v6, v2, 2, v6')
    a('v_lshrrev_b32 v7, 1, v6')
    a('v_and_b32 v7, 3, v7')
    a('v_xor_b32 v7, s53, v7')
    a('v_lshlrev_b32 v7, 5, v7')
    a('v_lshl_add_u32 v20, v6, 7, v7')
    a('v_and_b32 v7, 3, v0')
    a('v_lshl_add_u32 v20, v7, 3, v20')
    a('v_add_u32 v20, s54, v20')
    a('s_lshr_b32 s5, s53, 1')
    a('s_lshl_b32 s5, s5, 11')
    a('s_and_b32 s53, s53, 1')
    a('s_lshl_b32 s53, s53, 3')
    a('s_add_u32 s53, s53, s5')
    a(f's_lshl_b32 s5, s{S_J}, 12')
    a(f's_add_u32 s5, s5, {L_KVL}')
    a('s_add_u32 s53, s53, s5')
    a('v_add_u32 v23, s53, v11')
    a('v_add_u32 v7, s5, v11')
    a('v_lshlrev_b32 v6, 2, v1')

a(f's_cmp_eq_u32 s{S_HH}, 0')
a('s_cbranch_scc1 L_B_COMP')
def bl_mid():
    b_late()
    nonce_prefetch()
loader_loop('B', False, SLOT_B, b_setup, 16, bl_mid)
a('s_barrier')
a(f'ds_read_b128 {vr(KXP,4)}, v251')
a(f'ds_read_b128 {vr(KXP+4,4)}, v251 offset:1024')
a(f'ds_read_b128 {vr(QXP,4)}, v251 offset:2048')
a(f'ds_read_b128 {vr(QXP+4,4)}, v251 offset:3072')
a(f'ds_read_b64 {vr(GSV,2)}, v251 offset:4096')
a('s_waitcnt lgkmcnt(0)')
a('s_branch L_B_EPI')
a.label('L_B_COMP')
b_setup()
frag_addr_setup(16384, 8192)
b_late()
for r in range(ACC, ACC + 112): a(f'v_mov_b32 v{r}, 0')
def readsB(F, ks):
    L = [f'ds_read_b128 {vr(F+4*t,4)}, v{4+ks} offset:{t*2048}' for t in range(4)]
    L.append(f'ds_read_b128 {vr(F+16,4)}, v3 offset:{ks*64}')
    for b in range(3):
        for dt in range(2):
            for h2 in range(2):
                L.append(f'ds_read_b64_tr_b16 {vr(F+20+(b*2+dt)*4+h2*2,2)}, v{8+dt} offset:{b*8192+(32*ks+4*h2)*128}')
    return L
def mfmasB(F):
    L = []
    X = lambda t: vr(F + 4 * t, 4)
    W = lambda b, dt: vr(F + 20 + (b * 2 + dt) * 4, 4)
    for t in (2, 3):
        for dt in range(2):
            c = vr(ACC + 32 + (t * 2 + dt) * 4, 4); L.append(f'v_mfma_f32_16x16x32_bf16 {c}, {W(1,dt)}, {X(t)}, {c}')
    for t in (2, 3):
        for dt in range(2):
            c = vr(ACC + (t * 2 + dt) * 4, 4); L.append(f'v_mfma_f32_16x16x32_bf16 {c}, {W(0,dt)}, {X(t)}, {c}')
    for t in (2, 3, 0, 1):
        c = vr(ACC + 96 + t * 4, 4); L.append(f'v_mfma_f32_16x16x32_bf16 {c}, {vr(F+16,4)}, {X(t)}, {c}')
    for t in (0, 1):
        for dt in range(2):
            c = vr(ACC + 32 + (t * 2 + dt) * 4, 4); L.append(f'v_mfma_f32_16x16x32_bf16 {c}, {W(1,dt)}, {X(t)}, {c}')
    for t in range(4):
        for dt in range(2):
            c = vr(ACC + 64 + (t * 2 + dt) * 4, 4); L.append(f'v_mfma_f32_16x16x32_bf16 {c}, {X(t)}, {W(2,dt)}, {c}')
    for t in (0, 1):
        for dt in range(2):
            c = vr(ACC + (t * 2 + dt) * 4, 4); L.append(f'v_mfma_f32_16x16x32_bf16 {c}, {W(0,dt)}, {X(t)}, {c}')
    return L
compute_loop('B', SLOT_B, F0, F1, readsB, mfmasB, (4, 5, 8, 9))
stamp(1)
nonce_prefetch()
for t in range(2):
    cvt4(44 + 4 * t, ACC + 32 + (2 + t) * 8, ACC + 32 + (2 + t) * 8 + 4)
    a(f'ds_write_b128 v251, {vr(44+4*t,4)} offset:{t*1024}')
for t in range(2):
    cvt4(52 + 4 * t, ACC + (2 + t) * 8, ACC + (2 + t) * 8 + 4)
    a(f'ds_write_b128 v251, {vr(52+4*t,4)} offset:{2048+t*1024}')
a(f'v_mov_b32 v60, v{ACC+96+8}')
a(f'v_mov_b32 v61, v{ACC+96+12}')
a('ds_write_b64 v251, v[60:61] offset:4096')
for t in range(2):
    cvt4(KXP + 4 * t, ACC + 32 + t * 8, ACC + 32 + t * 8 + 4)
a('s_waitcnt lgkmcnt(0)')
a('s_barrier')
for t in range(2):
    cvt4(QXP + 4 * t, ACC + t * 8, ACC + t * 8 + 4)
a(f'v_mov_b32 v{GSV}, v{ACC+96}')
a(f'v_mov_b32 v{GSV+1}, v{ACC+96+4}')
for hh in range(2):
    for dt in range(2):
        d = 44 + (hh * 2 + dt) * 4
        cvt4(d, ACC + 64 + ((2 * hh) * 2 + dt) * 4, ACC + 64 + ((2 * hh + 1) * 2 + dt) * 4)
        if dt:
            for r in range(4):
                a(f'v_cndmask_b32_e64 v{d+r}, v{d+r}, v{ONES}, s[88:89]')
        a(f'ds_write_b128 v22, {vr(d,4)} offset:{hh*4096 + dt*1024}')
a.label('L_B_EPI')
PK, ST, SUM, E, EP = 64, 80, 88, 104, 224
def hedgehog(xp, mid=None):
    for t in range(2):
        for ft in range(2):
            a(f'v_mfma_f32_16x16x32_bf16 {vr(PK+8*t+4*ft,4)}, {vr(WP+4*ft,4)}, {vr(xp+4*t,4)}, 0')
    for t in range(2):
        s = PK + 8 * t
        for n, d in (('', ST + t), ('-', ST + 2 + t)):
            a(f'v_max3_f32 v{d}, {n}v{s}, {n}v{s+1}, {n}v{s+2}')
            a(f'v_max3_f32 v{d}, v{d}, {n}v{s+3}, {n}v{s+4}')
            a(f'v_max3_f32 v{d}, v{d}, {n}v{s+5}, {n}v{s+6}')
            a(f'v_max_f32_e64 v{d}, v{d}, {n}v{s+7}')
    xlane4('v_max_f32', [ST, ST + 1, ST + 2, ST + 3])
    for q in range(4):
        a(f'v_mul_f32_e64 v{ST+q}, -s90, v{ST+q}')
        a(f'v_cndmask_b32_e64 v{ST+4+q}, v{ST+q}, v10, s[{M48}:{M48+1}]')
    for sg in range(2):
        for t in range(2):
            for ft in range(2):
                for r in range(4):
                    p = PK + 8 * t + 4 * ft + r
                    av(f'v_fma_f32 v{E+16*sg+8*t+4*ft+r}, {"-" if sg else ""}v{p}, s90, v{ST+4*ft+2*sg+t}')
            for r in range(8):
                av(f'v_exp_f32 v{E+16*sg+8*t+r}, v{E+16*sg+8*t+r}')
            q = 2 * sg + t
            cvt4(EP + 4 * q, E + 8 * q, E + 8 * q + 4)
            a(f'v_mfma_f32_16x16x32_bf16 {vr(SUM+4*q,4)}, {vr(ONES,4)}, {vr(EP+4*q,4)}, 0')
        if mid and (1 + sg) in mid: mid[1 + sg]()
    for q in range(4):
        a(f'v_rcp_f32 v{SUM+4*q}, v{SUM+4*q}')
    for q in range(4):
        for r in range(0, 8, 2):
            av(f'v_pk_mul_f32 {vr(E+8*q+r,2)}, {vr(E+8*q+r,2)}, {vr(SUM+4*q,2)} op_sel_hi:[1,0]')
        cvt4(EP + 4 * q, E + 8 * q, E + 8 * q + 4)
        if mid and 3 in mid: mid[3](q)
def ptwrite(q):
    sg, t = q >> 1, q & 1
    for ft in range(2):
        a(f'ds_write_b64 v{16+sg*2+ft}, {vr(EP+q*4+2*ft,2)} offset:{t*2048}')
SP.start(wo_ops(0), 8)
hedgehog(KXP, {3: ptwrite})
SP.finish()
stamp(10)
a('s_waitcnt lgkmcnt(0)')
a('s_barrier')
stamp(11)
ET, VG, KV = 136, 152, 184
for u in range(4):
    for hh in range(2):
        a(f'ds_read_b64_tr_b16 {vr(ET+4*u+2*hh,2)}, v20 offset:{(u*32+hh*16)*128}')
    for dt in range(2):
        a(f'ds_read_b128 {vr(VG+(u*2+dt)*4,4)}, v21 offset:{(u*2+dt)*1024}')
for u in range(4):
    a(f's_waitcnt lgkmcnt({4*(3-u)})')
    for dt in range(2):
        c = vr(KV + 4 * dt, 4)
        a(f'v_mfma_f32_16x16x32_bf16 {c}, {vr(ET+4*u,4)}, {vr(VG+(u*2+dt)*4,4)}, {c if u else 0}')
cvt4(192, KV, KV + 4)
a(f'buffer_store_dwordx4 v[192:195], v11, {R(SWS)}, s36 offen sc1')
stamp(12)
def kvflag():
    stamp(13)
    a('s_waitcnt vmcnt(0)')
    nonce_resolve()
    set_flag(37)
    stamp(2)
    SP.start(wo_ops(1), 6)
hedgehog(QXP, {1: kvflag})
SP.finish()
a('s_barrier')
for t in range(2):
    a(f'v_mul_f32 v{GSV+t}, s90, v{GSV+t}')
    a(f'v_exp_f32 v{GSV+t}, v{GSV+t}')
    a(f'v_add_f32 v{GSV+t}, 1.0, v{GSV+t}')
    a(f'v_rcp_f32 v{GSV+t}, v{GSV+t}')
PL, SEL, RS = 136, 200, 208
a('v_lshrrev_b32 v4, 2, v1')
a('v_cmp_eq_u32 vcc, v4, v2')
a('v_and_b32 v4, 3, v1')
a('v_and_b32 v5, 1, v4')
a('v_lshlrev_b32 v5, 4, v5')
a('v_mov_b32 v8, 0x3f80')
a('v_lshlrev_b32 v8, v5, v8')
a('v_cndmask_b32 v8, 0, v8, vcc')
a('v_cmp_gt_u32 vcc, 2, v4')
a(f'v_cndmask_b32 v{SEL}, 0, v8, vcc')
a(f'v_cndmask_b32 v{SEL+1}, v8, 0, vcc')
for r in (2, 3, 4, 5): a(f'v_mov_b32 v{SEL+r}, 0')
a(f'v_mov_b32 v{SEL+6}, v{SEL}')
a(f'v_mov_b32 v{SEL+7}, v{SEL+1}')
for r in range(8): a(f'v_mov_b32 v{RS+r}, 0')
stamp(3)
def kvload(p):
    a(f's_add_u32 s53, s39, {p*8192}')
    a(f'buffer_load_dwordx4 {vr(PL+4*p,4)}, v11, {R(SWS)}, s53 offen sc1')
def kvacc(p):
    a(f'v_mfma_f32_16x16x32_bf16 {vr(RS,4)}, {vr(SEL,4)}, {vr(PL+4*p,4)}, {vr(RS,4)}')
    a(f'v_mfma_f32_16x16x32_bf16 {vr(RS+4,4)}, {vr(SEL+4,4)}, {vr(PL+4*p,4)}, {vr(RS+4,4)}')
gather(6, 38, lambda: a('s_and_b32 s4, vcc_lo, 0xffff'), kvload, kvacc)
stamp(4)
cvt4(56, RS, RS + 4)
a('ds_write_b64 v23, v[56:57]')
a('ds_write_b64 v23, v[58:59] offset:1024')
a('s_waitcnt lgkmcnt(0)')
a('s_barrier')
KF = 64
for q in range(4):
    a(f'ds_read_b128 {vr(KF+4*q,4)}, v7 offset:{q*1024}')
OB = 80
a('s_waitcnt lgkmcnt(2)')
for t in range(2):
    for dt in range(2):
        c = vr(OB + (t * 2 + dt) * 4, 4)
        a(f'v_mfma_f32_16x16x32_bf16 {c}, {vr(KF+dt*4,4)}, {vr(EP+t*4,4)}, 0')
a('s_waitcnt lgkmcnt(0)')
for t in range(2):
    for dt in (1, 0):
        c = vr(OB + (t * 2 + dt) * 4, 4)
        a(f'v_mfma_f32_16x16x32_bf16 {c}, {vr(KF+(2+dt)*4,4)}, {vr(EP+(2+t)*4,4)}, {c}')
a(f'v_mov_b32 v96, v{OB+4}')
a(f'v_mov_b32 v97, v{OB+12}')
a('v_permlane32_swap_b32 v96, v97')
a('v_mov_b32 v96, v97')
a('v_permlane16_swap_b32 v97, v96')
a('v_add_f32 v96, s91, v96')
a('v_rcp_f32 v96, v96')
a('v_mov_b32 v97, v96')
a('v_permlane32_swap_b32 v96, v97')
for t in range(2):
    o = OB + 8 * t
    a(f'v_mul_f32 v{98+2*t}, v{96+t}, v{GSV+t}')
    for r in range(0, 8, 2): a(f'v_pk_mul_f32 {vr(o+r,2)}, {vr(o+r,2)}, {vr(98+2*t,2)} op_sel_hi:[1,0]')
    cvt4(104 + 4 * t, o, o + 4)
    zero_pad(104 + 4 * t)
    a(f'buffer_store_dwordx4 {vr(104+4*t,4)}, v11, {R(SWS)}, s40 offen sc1')
    a('s_add_u32 s40, s40, 16384')
stamp(15)
p2_setup()
a('s_waitcnt vmcnt(0)')
set_flag(41)
stamp(5)
a(f's_cmp_ge_u32 s{S_WORK}, 28')
a('s_cbranch_scc1 L_END')
a('s_branch L_P2')

a.label('L_A')
QP, KP, VP, AGS = 24, 32, 44, 22
AF0, AF1, AACC = 16, 64, 112
MC = [88, 92, 94, 100]
def a_setup():
    common_consts(L_XA)
    a('v_lshlrev_b32 v240, 2, v2')
    a('v_add_u32 v241, 9, v1')
    for r in range(4):
        a(f'v_add_u32 v242, {r}, v240')
        a(f'v_cmp_ge_u32 s[{36+2*r}:{37+2*r}], v242, v241')
        a('v_sub_u32 v243, v1, v242')
        a(f'v_cmp_gt_u32 s[{MC[r]}:{MC[r]+1}], 8, v243')
    o_offsets(WS_OA, 64, 96, 97)
    a(f's_and_b32 s53, s{S_WAVE}, 3')
    a('s_lshl_b32 s53, s53, 9')
    a(f's_add_u32 s53, s53, {L_XG}')
    a('v_lshlrev_b32 v249, 3, v0')
    a('v_add_u32 v249, s53, v249')
a(f's_cmp_eq_u32 s{S_HH}, 0')
a('s_cbranch_scc1 L_A_COMP')
loader_loop('A', True, SLOT_A, a_setup, 0, nonce_prefetch)
a('s_barrier')
for n in range(8):
    a(f'ds_read_b128 {vr(QP+4*n,4)}, v251 offset:{n*1024}')
a(f'ds_read_b64 {vr(AGS,2)}, v249')
a('s_waitcnt lgkmcnt(0)')
a('s_branch L_A_EPI')
a.label('L_A_COMP')
a('s_cmp_lg_u32 s2, 255')
a('s_cbranch_scc1 L_A_NOSCAN')
a(f's_cmp_lg_u32 s{S_WAVE}, 3')
a('s_cbranch_scc1 L_A_NOSCAN')
a('v_lshrrev_b32 v3, 2, v0')
a('v_lshlrev_b32 v3, 8, v3')
a('v_and_b32 v4, 3, v0')
a('v_lshl_add_u32 v3, v4, 4, v3')
a(f's_mov_b32 s53, {WS_FL}')
for n in range(12):
    a(f'buffer_load_dwordx4 {vr(100+4*n,4)}, v3, {R(SWS)}, s53 offen sc1')
    a('s_add_u32 s53, s53, 4096')
a('s_memrealtime s[88:89]')
a('s_waitcnt vmcnt(0) lgkmcnt(0)')
a('s_or_b32 s88, s88, 1')
a.label('L_A_SCAN')
a('s_mov_b64 s[90:91], 0')
for n in range(48):
    a(f'v_cmp_eq_u32 vcc, s88, v{100+n}')
    a('s_or_b64 s[90:91], s[90:91], vcc')
a('s_cmp_eq_u64 s[90:91], 0')
a('s_cbranch_scc1 L_A_SCANOK')
a('s_add_u32 s88, s88, 2')
a('s_branch L_A_SCAN')
a.label('L_A_SCANOK')
a('v_mov_b32 v3, 0')
a('v_mov_b32 v5, s88')
a('s_mov_b64 exec, 1')
a(f'buffer_store_dword v5, v3, {R(SDBG)}, 0 offen sc1')
a('s_mov_b64 exec, -1')
a.label('L_A_NOSCAN')
a_setup()
frag_addr_setup(18432, 9216)
a('v_or_b32 v16, 8, v1')
a('v_lshrrev_b32 v6, 1, v16')
a('v_xor_b32 v6, v2, v6')
a('v_lshlrev_b32 v6, 4, v6')
a('v_and_b32 v16, 7, v16')
a('v_lshl_add_u32 v6, v16, 7, v6')
a(f's_mul_i32 s53, s{S_PI}, 9216')
a('v_add_u32 v6, s53, v6')
a('v_xor_b32 v7, 64, v6')
for r in range(AACC, AACC + 128): a(f'v_mov_b32 v{r}, 0')
def readsA(F, ks):
    L = [f'ds_read_b128 {vr(F+4*t,4)}, v{4+ks} offset:{1024 + t*2048}' for t in range(4)]
    L.append(f'ds_read_b128 {vr(F+16,4)}, v{6+ks}')
    for b in range(3):
        for dt in range(2):
            for h2 in range(2):
                L.append(f'ds_read_b64_tr_b16 {vr(F+20+(b*2+dt)*4+h2*2,2)}, v{8+dt} offset:{b*8192+(32*ks+4*h2)*128}')
    L.append(f'ds_read_b128 {vr(F+44,4)}, v3 offset:{ks*64}')
    return L
def mfmasA(F):
    L = []
    X = lambda t: vr(F + 4 * t, 4) if t >= 0 else vr(F + 16, 4)
    W = lambda b, dt: vr(F + 20 + (b * 2 + dt) * 4, 4)
    for t in range(4):
        for dt in range(2):
            c = vr(AACC + (t * 2 + dt) * 4, 4); L.append(f'v_mfma_f32_16x16x32_bf16 {c}, {W(0,dt)}, {X(t)}, {c}')
    for t in range(-1, 4):
        for dt in range(2):
            c = vr(AACC + 32 + ((t + 1) * 2 + dt) * 4, 4); L.append(f'v_mfma_f32_16x16x32_bf16 {c}, {W(1,dt)}, {X(t)}, {c}')
    for t in range(-1, 4):
        for dt in range(2):
            c = vr(AACC + 72 + ((t + 1) * 2 + dt) * 4, 4); L.append(f'v_mfma_f32_16x16x32_bf16 {c}, {X(t)}, {W(2,dt)}, {c}')
    for t in range(4):
        c = vr(AACC + 112 + t * 4, 4); L.append(f'v_mfma_f32_16x16x32_bf16 {c}, {vr(F+44,4)}, {X(t)}, {c}')
    return L
compute_loop('A', SLOT_A, AF0, AF1, readsA, mfmasA, (4, 5, 6, 7, 8, 9))
stamp(1)
nonce_prefetch()
XQ, XK, XV = 56, 64, 76
def packA(q, k, v, t0):
    for t in range(2):
        cvt4(q + 4 * t, AACC + (t0 + t) * 8, AACC + (t0 + t) * 8 + 4)
        zero_pad(q + 4 * t)
    for t in range(3):
        cvt4(k + 4 * t, AACC + 32 + (t0 + t) * 8, AACC + 32 + (t0 + t) * 8 + 4)
    for t in range(3):
        for dt in range(2):
            s = AACC + 72 + ((t0 + t) * 2 + dt) * 4
            a(f'v_cvt_pk_bf16_f32 v{v+dt*6+2*t}, v{s}, v{s+1}')
            a(f'v_cvt_pk_bf16_f32 v{v+dt*6+2*t+1}, v{s+2}, v{s+3}')
packA(XQ, XK, XV, 2)
for n in range(8):
    a(f'ds_write_b128 v251, {vr(XQ+4*n,4)} offset:{n*1024}')
a(f'v_mov_b32 v{AGS}, v{AACC+112+8}')
a(f'v_mov_b32 v{AGS+1}, v{AACC+112+12}')
a(f'ds_write_b64 v249, {vr(AGS,2)}')
a('s_waitcnt lgkmcnt(0)')
a('s_barrier')
packA(QP, KP, VP, 0)
a(f'v_mov_b32 v{AGS}, v{AACC+112}')
a(f'v_mov_b32 v{AGS+1}, v{AACC+112+4}')
a.label('L_A_EPI')
a(f's_or_b32 s53, s{S_RB}, s{S_HH}')
a('s_cmp_eq_u32 s53, 0')
for r in range(4):
    a(f's_cselect_b64 s[{56+2*r}:{57+2*r}], 0, s[{36+2*r}:{37+2*r}]')
SC = 88
for t in range(2):
    a(f'v_mfma_f32_16x16x32_bf16 {vr(SC+8*t,4)}, {vr(KP+4*t,4)}, {vr(QP+4*t,4)}, 0')
    a(f'v_mfma_f32_16x16x32_bf16 {vr(SC+8*t+4,4)}, {vr(KP+4*(t+1),4)}, {vr(QP+4*t,4)}, 0')
for t in range(2):
    a(f'v_mul_f32 v{AGS+t}, s90, v{AGS+t}')
    a(f'v_exp_f32 v{AGS+t}, -v{AGS+t}')
    a(f'v_add_f32 v{AGS+t}, 1.0, v{AGS+t}')
MX = 104
SP.start(wo_ops(0), 6)
for t in range(2):
    for r in range(4):
        mp = (56 if t == 0 else 36) + 2 * r
        av(f'v_cndmask_b32_e64 v{SC+8*t+r}, v10, v{SC+8*t+r}, s[{mp}:{mp+1}]')
        av(f'v_cndmask_b32_e64 v{SC+8*t+4+r}, v10, v{SC+8*t+4+r}, s[{MC[r]}:{MC[r]+1}]')
    s = SC + 8 * t
    a(f'v_max3_f32 v{MX+t}, v{s}, v{s+1}, v{s+2}')
    a(f'v_max3_f32 v{MX+t}, v{MX+t}, v{s+3}, v{s+4}')
    a(f'v_max3_f32 v{MX+t}, v{MX+t}, v{s+5}, v{s+6}')
    a(f'v_max_f32 v{MX+t}, v{MX+t}, v{s+7}')
xlane2('v_max_f32', MX, MX + 1)
a(f's_mov_b32 s64, {f2u(28 ** -0.5 * LOG2E):#x}')
PP = 108
OO = 116
for t in range(2):
    a(f'v_mul_f32 v{MX+t}, s64, v{MX+t}')
    for r in range(8):
        av(f'v_fma_f32 v{SC+8*t+r}, v{SC+8*t+r}, s64, -v{MX+t}')
    for r in range(8):
        av(f'v_exp_f32 v{SC+8*t+r}, v{SC+8*t+r}')
    cvt4(PP + 4 * t, SC + 8 * t, SC + 8 * t + 4)
    a(f'v_mfma_f32_16x16x32_bf16 {vr(OO+12*t+8,4)}, {vr(ONES,4)}, {vr(PP+4*t,4)}, 0')
    for dt in range(2):
        a(f'v_mfma_f32_16x16x32_bf16 {vr(OO+12*t+4*dt,4)}, {vr(VP+dt*6+2*t,4)}, {vr(PP+4*t,4)}, 0')
for t in range(2):
    o = OO + 12 * t
    a(f'v_mul_f32 v{o+8}, v{o+8}, v{AGS+t}')
    a(f'v_rcp_f32 v{o+8}, v{o+8}')
    for r in range(0, 8, 2):
        a(f'v_pk_mul_f32 {vr(o+r,2)}, {vr(o+r,2)}, {vr(o+8,2)} op_sel_hi:[1,0]')
    cvt4(140 + 4 * t, o, o + 4)
    zero_pad(140 + 4 * t)
    a(f'buffer_store_dwordx4 {vr(140+4*t,4)}, v11, {R(SWS)}, s96 offen sc1')
    a('s_add_u32 s96, s96, 16384')
SP.finish()
p2_setup()
a('s_waitcnt vmcnt(0)')
nonce_resolve()
set_flag(97)
stamp(2)
for g in wo_ops(1):
    for i in g: a(i)
a('s_waitcnt vmcnt(0)')
a('s_barrier')

a.label('L_P2')
def wfrags():
    for h in range(8):
        for T in range(4):
            for sec in range(2):
                a(f'ds_read_b64_tr_b16 {vr(WB+(h*4+T)*4+2*sec,2)}, v{16+(h&1)*8+sec*4+T} offset:{h*3584}')
def oextract():
    a('s_lshr_b32 s4, vcc_lo, s66')
    a('s_and_b32 s4, s4, 0xff')
    a('s_waitcnt lgkmcnt(0)')
def oload(p):
    a(f's_add_u32 s53, s64, {p*1024}')
    a(f'buffer_load_dwordx4 {vr(OF+4*p,4)}, v11, {R(SWS)}, s53 offen sc1')
def oacc(p):
    for T in range(4):
        c = vr(AC2 + 4 * T, 4)
        a(f'v_mfma_f32_16x16x32_bf16 {c}, {vr(WB+(p*4+T)*4,4)}, {vr(OF+4*p,4)}, {c}')
a('s_mov_b32 s67, 0')
a.label('L_P2_HALF')
wfrags()
gather(6, 65, oextract, oload, oacc, 8)
a('s_cmp_eq_u32 s67, 1')
a('s_cbranch_scc1 L_P2_FIN')
stamp(7)
a('s_mov_b32 s67, 1')
for r in range(16, 32): a(f'v_subrev_u32 v{r}, 57344, v{r}')
a('s_add_u32 s65, s65, 16384')
a(f's_add_u32 s64, s64, {WS_OB}')
a('s_lshl_b32 s53, s54, 12')
a(f's_add_u32 s53, s53, {L_RED}')
a('v_add_u32 v3, s53, v11')
a(f's_lshr_b32 s62, s{S_PT}, 1')
a('s_lshl_b32 s62, s62, 7')
a(f's_and_b32 s53, s{S_PT}, 1')
a('s_add_u32 s62, s62, s53')
a('s_lshl_b32 s53, s54, 5')
a('s_add_u32 s62, s62, s53')
a('s_mul_i32 s62, s62, 896')
a(f's_lshl_b32 s53, s{S_NB}, 7')
a('s_add_u32 s62, s62, s53')
a(f's_lshl_b32 s53, s{S_HH}, 6')
a('s_add_u32 s62, s62, s53')
a('v_mul_u32_u24 v5, 1792, v1')
a('v_lshl_add_u32 v5, v2, 3, v5')
a('s_branch L_P2_HALF')
a.label('L_P2_FIN')
stamp(8)
a(f's_cmp_eq_u32 s{S_HH}, 0')
a('s_cbranch_scc1 L_P2_K0')
for T in range(2): a(f'ds_write_b128 v3, {vr(AC2+4*T,4)} offset:{T*1024}')
a('s_waitcnt lgkmcnt(0)')
a('s_barrier')
for T in range(2): a(f'ds_read_b128 {vr(OF+4*T,4)}, v3 offset:{2048+T*1024}')
for r in range(8): a(f'v_mov_b32 v{AC2+r}, v{AC2+8+r}')
a('s_branch L_P2_ST')
a.label('L_P2_K0')
for T in range(2): a(f'ds_write_b128 v3, {vr(AC2+8+4*T,4)} offset:{2048+T*1024}')
a('s_waitcnt lgkmcnt(0)')
a('s_barrier')
for T in range(2): a(f'ds_read_b128 {vr(OF+4*T,4)}, v3 offset:{T*1024}')
a.label('L_P2_ST')
for T in range(2):
    a(f's_waitcnt lgkmcnt({1-T})')
    for r in range(0, 4, 2): a(f'v_pk_add_f32 {vr(AC2+4*T+r,2)}, {vr(AC2+4*T+r,2)}, {vr(OF+4*T+r,2)}')
    a(f'v_cvt_pk_bf16_f32 v{OF+16+2*T}, v{AC2+4*T}, v{AC2+4*T+1}')
    a(f'v_cvt_pk_bf16_f32 v{OF+17+2*T}, v{AC2+4*T+2}, v{AC2+4*T+3}')
    a(f'buffer_store_dwordx2 {vr(OF+16+2*T,2)}, v5, {R(SOUT)}, s62 offen offset:{32*T}')
a.label('L_END')
if STAMP:
    a('s_waitcnt vmcnt(0)')
    stamp(9)
    a('s_lshl_b32 s3, s2, 3')
    a(f's_add_u32 s3, s3, s{S_WAVE}')
    a('s_lshl_b32 s3, s3, 8')
    a(f's_add_u32 s3, s3, {WS_ST}')
    a('v_lshlrev_b32 v3, 2, v0')
    a(f'buffer_store_dword v250, v3, {R(SWS)}, s3 offen')
    a('s_waitcnt vmcnt(0)')
if STAMP and os.environ.get('DBG'):
    a('v_readlane_b32 s4, v250, 0')
    a('v_readlane_b32 s5, v250, 9')
    a('s_not_b32 s4, s4')
    a('v_mov_b32 v4, s4')
    a('v_mov_b32 v5, s5')
    a('v_mov_b32 v3, 4')
    a(f's_cmp_lg_u32 s{S_WAVE}, 0')
    a('s_cbranch_scc1 L_EXIT')
    a('s_mov_b64 exec, 1')
    a(f'buffer_atomic_umax v4, v3, {R(SDBG)}, 0 offen sc1')
    a(f'buffer_atomic_umax v5, v3, {R(SDBG)}, 0 offen offset:4 sc1')
    a('s_mov_b64 exec, -1')
    for wg, base, idxs in ((9, 3, (0, 1, 2, 4, 5, 7, 9)), (137, 10, (0, 1, 2, 7, 8, 9))):
        a(f's_cmp_lg_u32 s2, {wg}')
        a(f's_cbranch_scc1 L_DBG_{wg}')
        for n, ix in enumerate(idxs):
            a(f'v_readlane_b32 s4, v250, {ix}')
            a('v_mov_b32 v4, s4')
            a(f'v_mov_b32 v3, {(base+n)*4}')
            a('s_mov_b64 exec, 1')
            a(f'buffer_store_dword v4, v3, {R(SDBG)}, 0 offen')
            a('s_mov_b64 exec, -1')
        a.label(f'L_DBG_{wg}')
    a('s_waitcnt vmcnt(0)')
a.label('L_EXIT')
a('s_endpgm')

a.raw('.section .rodata,"a"')
a.raw('.p2align 6')
a.raw(f'.amdhsa_kernel {KN}')
a.raw('  .amdhsa_next_free_vgpr 256')
a.raw('  .amdhsa_next_free_sgpr 102')
a.raw('  .amdhsa_accum_offset 256')
a.raw('  .amdhsa_group_segment_fixed_size 0')
a.raw('  .amdhsa_kernarg_size 88')
a.raw('  .amdhsa_user_sgpr_count 2')
a.raw('  .amdhsa_user_sgpr_kernarg_segment_ptr 1')
a.raw('  .amdhsa_system_sgpr_workgroup_id_x 1')
a.raw('.end_amdhsa_kernel')
sys.stdout.write(a.text())
```

```python
import sys, math, os, struct
from asmlib import *
STAMP = os.environ.get('STAMP') == '1'
SPIN = int(os.environ.get('SPIN', '200000'))

KN = 'gated_mix__sliding_local_dilated__linear_kernel_hedgehog__prompt_kernel'
WS_OA = 0
WS_OB = 2 << 20
WS_G = 4 << 20
WS_KVR = (4 << 20) + (1 << 19)
WS_KVP = 5 << 20
WS_FL = 6 << 20
WS_ST = 7 << 20
WS_SIZE = 8 << 20
NGRP = 224
LOG2E = 1.4426950408889634
def f2u(x): return struct.unpack('<I', struct.pack('<f', x))[0]

SLOT_Q = 18432 + 32768
SLOT_K = 32768
L_GATE = 98304
L_WO = 0
L_XK = 100352
L_PT = 114688
L_VF = 147456
L_RED = 131072
L_XQ = 0
LDS = 163840

a = Asm()
a.raw(f'; @launch grid=(256,1,1) block=(512,1,1) lds={LDS}')
a.raw('.amdgcn_target "amdgcn-amd-amdhsa--gfx950"')
a.raw('.text')
a.raw(f'.globl {KN}')
a.raw('.p2align 8')
a.raw(f'.type {KN},@function')
a.label(KN, pad=False)

SX, SWA, SWS, SPHI, SGATE, SDBG, SWOA, SWOB, SOUT, SWB = 8, 12, 16, 20, 24, 28, 72, 76, 80, 92
S_RB, S_HP, S_BR, S_WAVE, S_ROT, S_NONCE = 32, 33, 34, 35, 48, 49
S_J, S_PI, S_HH = 50, 51, 52
S_RB2, S_NB, S_WORK = 46, 47, 45
M48 = 84
VT0, VT1, VNON, VT2 = 252, 253, 254, 255

def srd(dst, lo, size):
    a(f's_mov_b32 s{dst}, s{lo}')
    a(f's_and_b32 s{dst+1}, s{lo+1}, 0xffff')
    a(f's_mov_b32 s{dst+2}, {size}')
    a(f's_mov_b32 s{dst+3}, 0x00020000')
def R(s): return f's[{s}:{s+3}]'
def stamp(n):
    if STAMP:
        a('s_memrealtime s[98:99]')
        a('s_waitcnt lgkmcnt(0)')
        a(f'v_writelane_b32 v250, s98, {n}')

a('s_cmp_ge_u32 s2, 256')
a('s_cbranch_scc1 L_EXIT')
a('s_load_dwordx8 s[36:43], s[0:1], 0')
a('s_load_dwordx8 s[56:63], s[0:1], 32')
a('s_load_dwordx4 s[64:67], s[0:1], 64')
a('s_load_dwordx2 s[44:45], s[0:1], 80')
if STAMP:
    a('v_mov_b32 v250, 0')
    a('s_memrealtime s[98:99]')
a('v_lshrrev_b32 v1, 6, v0')
a('v_and_b32 v0, 63, v0')
a(f'v_readfirstlane_b32 s{S_WAVE}, v1')
a('s_and_b32 s3, s2, 7')
a('s_lshr_b32 s7, s2, 3')
a('s_and_b32 s7, s7, 15')
a(f's_lshr_b32 s{S_BR}, s2, 7')
a('s_and_b32 s5, s3, 3')
a('s_lshl_b32 s5, s5, 2')
a('s_and_b32 s6, s7, 3')
a(f's_add_u32 s{S_RB}, s5, s6')
a('s_lshr_b32 s5, s3, 2')
a('s_lshl_b32 s5, s5, 2')
a('s_lshr_b32 s6, s7, 2')
a(f's_add_u32 s{S_HP}, s5, s6')
a(f's_mul_i32 s5, s{S_HP}, 3')
a(f's_add_u32 s5, s5, s{S_RB}')
a(f's_mul_i32 s6, s{S_BR}, 5')
a('s_add_u32 s5, s5, s6')
a('s_mul_i32 s6, s5, 37')
a('s_lshr_b32 s6, s6, 8')
a('s_mul_i32 s6, s6, 7')
a(f's_sub_u32 s{S_ROT}, s5, s6')
a('s_mul_i32 s5, s7, 37')
a('s_lshr_b32 s5, s5, 8')
a('s_mul_i32 s6, s5, 7')
a(f's_sub_u32 s{S_NB}, s7, s6')
a('s_lshl_b32 s3, s3, 1')
a(f's_add_u32 s{S_RB2}, s3, s5')
a(f's_and_b32 s{S_J}, s{S_WAVE}, 1')
a(f's_lshr_b32 s{S_PI}, s{S_WAVE}, 1')
a(f's_and_b32 s{S_PI}, s{S_PI}, 1')
a(f's_lshr_b32 s{S_HH}, s{S_WAVE}, 2')
a('v_lshrrev_b32 v3, 3, v0')
a('v_and_b32 v4, 7, v0')
a('v_lshrrev_b32 v5, 1, v3')
a('v_xor_b32 v16, v4, v5')
a('v_lshlrev_b32 v16, 4, v16')
a('v_mul_u32_u24 v6, 1792, v3')
a('v_xor_b32 v17, 64, v16')
a('v_add_u32 v16, v16, v6')
a('v_add_u32 v17, v17, v6')
a('v_add_u32 v17, 14336, v17')
a('v_add_u32 v18, 28672, v16')
a('v_add_u32 v19, 28672, v17')
a('v_and_b32 v7, 1, v5')
a('v_lshlrev_b32 v7, 1, v7')
a('v_xor_b32 v20, v4, v7')
a('v_xor_b32 v21, 4, v20')
a('v_min_u32 v20, 6, v20')
a('v_min_u32 v21, 6, v21')
a('v_lshlrev_b32 v20, 4, v20')
a('v_lshlrev_b32 v21, 4, v21')
a(f's_and_b32 s54, s{S_WAVE}, 3')
a('s_lshl_b32 s53, s54, 4')
a('v_add_u32 v7, s53, v3')
a('v_mul_u32_u24 v7, 2688, v7')
a('v_add_u32 v20, v20, v7')
a('v_add_u32 v21, v21, v7')
a('v_add_u32 v21, 21504, v21')
a(f's_lshl_b32 s53, s{S_J}, 1')
a('s_add_u32 s53, s53, 4')
a('v_add_u32 v22, s53, v5')
a('v_xor_b32 v22, v4, v22')
a('v_lshlrev_b32 v22, 4, v22')
a('v_add_u32 v22, v22, v6')
a(f's_lshl_b32 s53, s{S_J}, 2')
a('s_add_u32 s53, s53, 8')
a('s_mul_i32 s53, s53, 1792')
a('v_add_u32 v22, s53, v22')
a(f's_lshl_b32 s55, s{S_RB}, 7')
a('s_max_u32 s86, s55, 32')
a('s_sub_u32 s86, s86, 32')
a(f's_add_u32 s86, s86, s{S_PI}')
a('s_mul_i32 s86, s86, 896')
a(f's_lshl_b32 s53, s{S_J}, 6')
a('s_add_u32 s55, s55, s53')
a(f's_add_u32 s55, s55, s{S_PI}')
a('s_mul_i32 s55, s55, 896')
a(f's_mul_i32 s87, s{S_HP}, 112')
a('v_and_b32 v1, 15, v0')
a('v_lshrrev_b32 v2, 4, v0')
a('v_lshlrev_b32 v11, 4, v0')
a('s_waitcnt lgkmcnt(0)')
if STAMP: a('v_writelane_b32 v250, s98, 0')
srd(SX, 36, 2048 * 896)
srd(SWA, 38, 448 * 2688)
srd(SWB, 56, 448 * 2688)
srd(SWS, 44, WS_SIZE)
srd(SPHI, 58, 16 * 28 * 28 * 2)
srd(SGATE, 62, 896)
srd(SDBG, 66, 256)
srd(SWOA, 40, 448 * 896)
srd(SWOB, 60, 448 * 896)
srd(SOUT, 64, 2048 * 896)
a(f's_mov_b32 s{S_WORK}, s7')
a(f's_mov_b32 s60, s{S_ROT}')
a(f's_cmp_eq_u32 s{S_BR}, 1')
a('s_cbranch_scc1 L_KV')

uid = [0]
ONES = 12
def common_consts(xbase, xshift):
    a(f'v_cmp_le_u32 s[{M48}:{M48+1}], 48, v0')
    a('v_mov_b32 v10, 0xff800000')
    for r in range(4): a(f'v_mov_b32 v{ONES+r}, 0x3f803f80')
    a(f's_and_b32 s53, s{S_WAVE}, 3')
    a(f's_lshl_b32 s53, s53, {xshift}')
    if xbase: a(f's_add_u32 s53, s53, {xbase}')
    a('v_add_u32 v251, s53, v11')
    a(f's_mov_b32 s90, {f2u(LOG2E):#x}')
def phi_loads(dst):
    a(f's_lshl_b32 s53, s{S_HP}, 1')
    a(f's_add_u32 s53, s53, s{S_J}')
    a('s_mul_i32 s53, s53, 1568')
    a('v_mul_u32_u24 v5, 224, v2')
    a('v_lshl_add_u32 v3, v1, 1, v5')
    a('v_add_u32 v6, 16, v1')
    a('v_min_u32 v6, 27, v6')
    a('v_lshl_add_u32 v6, v6, 1, v5')
    for ft, vo in ((0, 3), (1, 6)):
        for j in range(8):
            d = j if j < 4 else 16 + (j - 4)
            a(f'buffer_load_ushort v{dst+ft*8+j}, v{vo}, {R(SPHI)}, s53 offen offset:{d*56}')
def wp_pack(src, WP):
    for ft in range(2):
        for jj in range(4):
            a(f'v_lshl_or_b32 v{WP+ft*4+jj}, v{src+ft*8+2*jj+1}, 16, v{src+ft*8+2*jj}')
        zero_pad(WP + ft * 4)
def frag_addr_setup(WOFF, XP):
    a('v_lshrrev_b32 v3, 2, v1')
    a('v_and_b32 v16, 3, v0')
    a('v_lshl_add_u32 v17, v2, 3, v3')
    a('v_lshlrev_b32 v17, 7, v17')
    a('v_lshrrev_b32 v18, 1, v3')
    a('v_lshlrev_b32 v18, 1, v18')
    a('v_and_b32 v19, 1, v2')
    a('v_lshl_add_u32 v18, v19, 2, v18')
    a(f's_mul_i32 s53, s{S_J}, 56')
    a('v_lshlrev_b32 v19, 3, v16')
    a('v_add_u32 v19, s53, v19')
    for dt in range(2):
        if dt: a('v_add_u32 v19, 32, v19')
        a('v_lshrrev_b32 v20, 4, v19')
        a('v_xor_b32 v20, v20, v18')
        a('v_lshlrev_b32 v20, 4, v20')
        a('v_and_b32 v21, 8, v19')
        a(f'v_add3_u32 v{8+dt}, v17, v20, v21')
        a(f'v_add_u32 v{8+dt}, {WOFF}, v{8+dt}')
    a('v_lshrrev_b32 v3, 1, v1')
    a('v_xor_b32 v4, v2, v3')
    a('v_lshlrev_b32 v4, 4, v4')
    a('v_lshl_add_u32 v4, v1, 7, v4')
    a(f's_mul_i32 s53, s{S_PI}, {XP}')
    a('v_add_u32 v4, s53, v4')
    a('v_xor_b32 v5, 64, v4')

def loader_loop(tag, halo, SLOT, wlist, gate, post=None, nextra=0, mid=None):
    XP = 9216 if halo else 8192
    XH = 1024 if halo else 0
    WOFF = 18432 if halo else 16384
    nops = 4 + (1 if halo else 0) + 2 * len(wlist)
    a(f's_mul_i32 s58, s{S_PI}, {XP}')
    if halo:
        a(f's_lshl_b32 s71, s{S_J}, 9')
        a('s_add_u32 s71, s71, s58')
    a(f's_lshl_b32 s53, s{S_J}, 12')
    a('s_add_u32 s58, s58, s53')
    if XH: a(f's_add_u32 s58, s58, {XH}')
    a(f's_and_b32 s59, s{S_WAVE}, 3')
    a('s_lshl_b32 s59, s59, 11')
    a(f's_add_u32 s59, s59, {WOFF}')
    a(f's_mov_b32 s68, {SLOT}')
    a(f's_mov_b32 s69, {3*SLOT}')
    a('s_mov_b32 s61, 0')
    def issue():
        a('s_lshl_b32 s62, s60, 7')
        if halo: a('s_add_u32 s63, s62, s86')
        a('s_add_u32 s62, s62, s55')
        a('s_mul_i32 s64, s60, 172032')
        a('s_add_u32 s64, s64, s87')
        a('s_add_u32 s60, s60, 1')
        a('s_cmp_eq_u32 s60, 7')
        a('s_cselect_b32 s60, 0, s60')
        a('s_add_u32 s65, s58, s61')
        a('s_add_u32 s56, s59, s61')
        for n in range(4):
            a(f's_add_u32 m0, s65, {n*1024}')
            a(f'buffer_load_dwordx4 v{16+n}, {R(SX)}, s62 offen lds')
        if halo:
            a('s_add_u32 m0, s71, s61')
            a('s_mov_b32 exec_hi, 0')
            a(f'buffer_load_dwordx4 v22, {R(SX)}, s63 offen lds')
            a('s_mov_b32 exec_hi, -1')
        for n, (sw, b) in enumerate(wlist):
            if b: a(f's_add_u32 s66, s64, {b*896}')
            for h in range(2):
                a(f's_add_u32 m0, s56, {n*8192 + h*1024}')
                a(f'buffer_load_dwordx4 v{20+h}, {R(sw)}, s{66 if b else 64} offen lds')
        a('s_add_u32 s61, s61, s68')
        a('s_cmp_eq_u32 s61, s69')
        a('s_cselect_b32 s61, 0, s61')
    if gate:
        a(f's_cmp_lg_u32 s{S_WAVE}, 7')
        a(f's_cbranch_scc1 L_NOGATE_{tag}')
        a(f's_mov_b32 m0, {L_GATE}')
        a(f'buffer_load_dwordx4 v11, {R(SGATE)}, 0 offen lds')
        a.label(f'L_NOGATE_{tag}')
    issue()
    issue()
    a('s_mov_b32 s67, 0')
    a.label(f'L_LD_{tag}')
    a(f's_waitcnt vmcnt({nops})')
    a('s_barrier')
    issue()
    a('s_add_u32 s67, s67, 1')
    a('s_cmp_lt_u32 s67, 5')
    a(f's_cbranch_scc1 L_LD_{tag}')
    if post: post()
    a(f's_waitcnt vmcnt({nops + nextra})')
    a('s_barrier')
    a(f's_waitcnt vmcnt({nextra})')
    a('s_barrier')
    if mid: mid()
    a('s_barrier')

def xlane4(op, m):
    m0, m1, m2, m3 = m
    a(f'v_permlane32_swap_b32 v{m0}, v{m1}')
    a(f'v_permlane32_swap_b32 v{m2}, v{m3}')
    a(f'{op} v{m0}, v{m0}, v{m1}')
    a(f'{op} v{m2}, v{m2}, v{m3}')
    a(f'v_permlane16_swap_b32 v{m0}, v{m2}')
    a(f'{op} v{m0}, v{m0}, v{m2}')
    a(f'v_mov_b32 v{m2}, v{m0}')
    a(f'v_permlane16_swap_b32 v{m0}, v{m2}')
    a(f'v_mov_b32 v{m1}, v{m0}')
    a(f'v_mov_b32 v{m3}, v{m2}')
    a(f'v_permlane32_swap_b32 v{m0}, v{m1}')
    a(f'v_permlane32_swap_b32 v{m2}, v{m3}')
def xlane2(op, m0, m1):
    a(f'v_permlane32_swap_b32 v{m0}, v{m1}')
    a(f'{op} v{m0}, v{m0}, v{m1}')
    a(f'v_mov_b32 v{m1}, v{m0}')
    a(f'v_permlane16_swap_b32 v{m0}, v{m1}')
    a(f'{op} v{m0}, v{m0}, v{m1}')
    a(f'v_mov_b32 v{m1}, v{m0}')
    a(f'v_permlane32_swap_b32 v{m0}, v{m1}')
def cvt4(dst, s0, s1):
    a(f'v_cvt_pk_bf16_f32 v{dst}, v{s0}, v{s0+1}')
    a(f'v_cvt_pk_bf16_f32 v{dst+1}, v{s0+2}, v{s0+3}')
    a(f'v_cvt_pk_bf16_f32 v{dst+2}, v{s1}, v{s1+1}')
    a(f'v_cvt_pk_bf16_f32 v{dst+3}, v{s1+2}, v{s1+3}')
def zero_pad(r):
    a(f'v_cndmask_b32_e64 v{r+2}, v{r+2}, 0, s[{M48}:{M48+1}]')
    a(f'v_cndmask_b32_e64 v{r+3}, v{r+3}, 0, s[{M48}:{M48+1}]')

def nonce_prefetch():
    a(f'v_mov_b32 v{VT0}, 0')
    a(f'buffer_load_dword v{VNON}, v{VT0}, {R(SDBG)}, 0 offen sc1')
def nonce_resolve():
    uid[0] += 1; u = uid[0]
    a('s_mov_b32 s3, 0')
    a.label(f'L_GN_{u}')
    a(f'v_readfirstlane_b32 s{S_NONCE}, v{VNON}')
    a(f's_cmp_lg_u32 s{S_NONCE}, 0')
    a(f's_cbranch_scc1 L_GNX_{u}')
    a('s_sleep 2')
    nonce_prefetch()
    a('s_waitcnt vmcnt(0)')
    a('s_add_u32 s3, s3, 1')
    a(f's_cmp_lt_u32 s3, {SPIN}')
    a(f's_cbranch_scc1 L_GN_{u}')
    a.label(f'L_GNX_{u}')
def set_flag(off_sgpr):
    a(f'v_mov_b32 v{VT0}, 0')
    a(f'v_mov_b32 v{VT2}, s{S_NONCE}')
    a('s_mov_b64 exec, 1')
    a(f'buffer_store_dword v{VT2}, v{VT0}, {R(SWS)}, s{off_sgpr} offen sc1')
    a('s_mov_b64 exec, -1')
def poll_mask(vaddr, off_sgpr, mask_sgpr):
    uid[0] += 1; u = uid[0]
    a('s_mov_b32 s3, 0')
    a.label(f'L_PA_{u}')
    a('s_waitcnt vmcnt(0)')
    a(f'v_cmp_eq_u32 vcc, s{S_NONCE}, v{VT1}')
    a(f's_and_b32 s4, vcc_lo, s{mask_sgpr}')
    a(f's_cmp_eq_u32 s4, s{mask_sgpr}')
    a(f's_cbranch_scc1 L_PAX_{u}')
    a('s_sleep 1')
    a(f'buffer_load_dword v{VT1}, v{vaddr}, {R(SWS)}, s{off_sgpr} offen sc1')
    a('s_add_u32 s3, s3, 1')
    a(f's_cmp_lt_u32 s3, {SPIN}')
    a(f's_cbranch_scc1 L_PA_{u}')
    a.label(f'L_PAX_{u}')
def sanitize(r, n=4):
    for i in range(n): a(f'v_min_u32 v{r+i}, 0xfffffffe, v{r+i}')
def empty_test(reg, nregs):
    a(f'v_max3_u32 v{VT2}, v{reg}, v{reg+1}, v{reg+2}')
    r = 3
    while r + 1 < nregs:
        a(f'v_max3_u32 v{VT2}, v{VT2}, v{reg+r}, v{reg+r+1}'); r += 2
    if r < nregs: a(f'v_max_u32 v{VT2}, v{VT2}, v{reg+r}')
    a(f'v_cmp_eq_u32 vcc, -1, v{VT2}')
    a('s_cmp_lg_u64 vcc, 0')
def check_acc(u, p, reg, nregs, acc, tag):
    empty_test(reg, nregs)
    a.raw(f'    s_cbranch_scc1 L_GC{tag}_{u}_{p}')
    acc(p)
    a(f's_bitset1_b32 s42, {p}')
    a.label(f'L_GC{tag}_{u}_{p}', pad=False)
def gather(vaddr, off_sgpr, extract, load, acc, reg, nld=1):
    uid[0] += 1; u = uid[0]
    n = 16; full = 0xffff
    a('s_mov_b32 s3, 0')
    a('s_mov_b32 s42, 0')
    a('s_mov_b32 s43, 0')
    a.label(f'L_GA_{u}')
    a('s_andn2_b32 s7, s43, s42')
    a(f's_cmp_eq_u32 s7, {full}')
    a(f's_cbranch_scc1 L_GF_{u}')
    a(f's_cmp_eq_u32 s43, {full}')
    a(f's_cbranch_scc1 L_GNP_{u}')
    a(f'buffer_load_dword v{VT1}, v{vaddr}, {R(SWS)}, s{off_sgpr} offen sc1')
    a.label(f'L_GNP_{u}')
    a('s_cmp_eq_u32 s7, 0')
    a(f's_cbranch_scc1 L_GNL_{u}')
    for p in range(n):
        a(f's_bitcmp1_b32 s7, {p}')
        a(f's_cbranch_scc0 L_GK_{u}_{p}')
        load(p)
        a.label(f'L_GK_{u}_{p}', pad=False)
    a.label(f'L_GNL_{u}')
    a('s_waitcnt vmcnt(0)')
    a(f'v_cmp_eq_u32 vcc, s{S_NONCE}, v{VT1}')
    extract()
    a('s_or_b32 s43, s43, s4')
    a('s_cmp_eq_u32 s7, 0')
    a(f's_cbranch_scc1 L_GNC_{u}')
    for p in range(n):
        a.raw(f'    s_bitcmp1_b32 s7, {p}')
        a.raw(f'    s_cbranch_scc0 L_GCL_{u}_{p}')
        check_acc(u, p, reg(p), 4 * nld, acc, 'L')
    a.label(f'L_GNC_{u}', pad=False)
    a(f's_cmp_eq_u32 s42, {full}')
    a(f's_cbranch_scc1 L_GAX_{u}')
    a('s_add_u32 s3, s3, 1')
    a(f's_cmp_lt_u32 s3, {SPIN}')
    a(f's_cbranch_scc1 L_GA_{u}')
    a(f's_branch L_GAX_{u}')
    a.label(f'L_GF_{u}')
    AHEAD = 6
    for p in range(n + AHEAD):
        if p < n: load(p)
        if p >= AHEAD:
            q = p - AHEAD
            a(f's_waitcnt vmcnt({(min(n - 1, p) - q) * nld})')
            check_acc(u, q, reg(q), 4 * nld, acc, 'F')
    a(f's_branch L_GNC_{u}')
    a.label(f'L_GAX_{u}')
    a('s_nop 7')

def o_offsets(dst_o, dst_f):
    a(f's_lshl_b32 s53, s{S_RB}, 1')
    a(f's_add_u32 s53, s53, s{S_PI}')
    a('s_lshl_b32 s53, s53, 1')
    a(f's_add_u32 s53, s53, s{S_HH}')
    a(f's_lshl_b32 s54, s{S_HP}, 1')
    a(f's_add_u32 s54, s54, s{S_J}')
    a(f's_lshl_b32 s{dst_o}, s53, 5')
    a(f's_add_u32 s{dst_o}, s{dst_o}, s54')
    a(f's_lshl_b32 s{dst_o}, s{dst_o}, 10')
    a(f's_lshl_b32 s{dst_f}, s53, 8')
    a('s_lshl_b32 s54, s54, 2')
    a(f's_add_u32 s{dst_f}, s{dst_f}, s54')
    a(f's_add_u32 s{dst_f}, s{dst_f}, {WS_FL + 64*256}')

def hedgehog(xp, WP, PK, ST, SUM, E, EP, mid=None):
    for t in range(2):
        for ft in range(2):
            a(f'v_mfma_f32_16x16x32_bf16 {vr(PK+8*t+4*ft,4)}, {vr(WP+4*ft,4)}, {vr(xp+4*t,4)}, 0')
    for t in range(2):
        s = PK + 8 * t
        for n, d in (('', ST + t), ('-', ST + 2 + t)):
            a(f'v_max3_f32 v{d}, {n}v{s}, {n}v{s+1}, {n}v{s+2}')
            a(f'v_max3_f32 v{d}, v{d}, {n}v{s+3}, {n}v{s+4}')
            a(f'v_max3_f32 v{d}, v{d}, {n}v{s+5}, {n}v{s+6}')
            a(f'v_max_f32_e64 v{d}, v{d}, {n}v{s+7}')
    xlane4('v_max_f32', [ST, ST + 1, ST + 2, ST + 3])
    for q in range(4):
        a(f'v_mul_f32_e64 v{ST+q}, -s90, v{ST+q}')
        a(f'v_cndmask_b32_e64 v{ST+4+q}, v{ST+q}, v10, s[{M48}:{M48+1}]')
    for sg in range(2):
        for t in range(2):
            for ft in range(2):
                for r in range(4):
                    p = PK + 8 * t + 4 * ft + r
                    a(f'v_fma_f32 v{E+16*sg+8*t+4*ft+r}, {"-" if sg else ""}v{p}, s90, v{ST+4*ft+2*sg+t}')
            for r in range(8):
                a(f'v_exp_f32 v{E+16*sg+8*t+r}, v{E+16*sg+8*t+r}')
            q = 2 * sg + t
            cvt4(EP + 4 * q, E + 8 * q, E + 8 * q + 4)
            a(f'v_mfma_f32_16x16x32_bf16 {vr(SUM+4*q,4)}, {vr(ONES,4)}, {vr(EP+4*q,4)}, 0')
        if mid and (1 + sg) in mid: mid[1 + sg]()
    for q in range(4):
        a(f'v_rcp_f32 v{SUM+4*q}, v{SUM+4*q}')
    for q in range(4):
        for r in range(0, 8, 2):
            a(f'v_pk_mul_f32 {vr(E+8*q+r,2)}, {vr(E+8*q+r,2)}, {vr(SUM+4*q,2)} op_sel_hi:[1,0]')
        cvt4(EP + 4 * q, E + 8 * q, E + 8 * q + 4)
        if mid and 3 in mid: mid[3](q)

X0, X1, WF, QACC, QWP = 16, 36, 56, 88, 232
A_Q, A_K, A_V, B_Q = QACC, QACC + 32, QACC + 72, QACC + 112
MC = [88, 100, 56, 58]
def aq_scalars():
    common_consts(L_XQ, 14)
    o_offsets(96, 97)
    a('s_lshr_b32 s40, s96, 14')
    a('s_lshl_b32 s40, s40, 8')
    a(f's_add_u32 s40, s40, {WS_G}')
    a(f's_lshl_b32 s41, s{S_HP}, 1')
    a(f's_add_u32 s41, s41, s{S_J}')
    a('s_lshl_b32 s41, s41, 12')
    a(f's_add_u32 s41, s41, {WS_KVR}')
    a(f's_lshl_b32 s53, s{S_RB}, 8')
    a(f's_lshl_b32 s54, s{S_HP}, 8')
    a('s_add_u32 s54, s54, 4096')
    a('v_mov_b32 v249, s53')
    a('v_mov_b32 v248, s54')
    a('v_cmp_lt_u32 vcc, 15, v0')
    a('v_cndmask_b32 v249, v249, v248, vcc')
    a('v_lshl_add_u32 v249, v1, 2, v249')
    a(f's_mov_b32 s38, {WS_FL + 192*256}')
    a(f's_lshl_b32 s39, 1, s{S_PI}')
    a(f's_lshl_b32 s53, s{S_J}, 1')
    a('s_add_u32 s53, s53, 16')
    a('s_lshl_b32 s53, 3, s53')
    a('s_or_b32 s39, s39, s53')
    a(f's_mov_b32 s91, {f2u(1e-6):#x}')
a(f's_cmp_eq_u32 s{S_HH}, 0')
a('s_cbranch_scc1 L_AQ_COMP')
def aql_post():
    phi_loads(100)
    aq_scalars()
    nonce_prefetch()
def aql_mid():
    a('s_waitcnt vmcnt(0)')
    wp_pack(100, QWP)
    nonce_resolve()
WL_AQ = [(SWB, 0), (SWA, 0), (SWA, 1), (SWA, 2)]
loader_loop('Q', True, SLOT_Q, WL_AQ, False, aql_post, 17, aql_mid)
QP, KP, VP, QXP = 16, 24, 36, 48
a(f'buffer_load_dword v{VT1}, v249, {R(SWS)}, s38 offen sc1')
a('s_barrier')
for n in range(10):
    a(f'ds_read_b128 {vr(QP+4*n,4)}, v251 offset:{n*1024}')
a('s_branch L_AQ_EPI')
a.label('L_AQ_COMP')
phi_loads(24)
aq_scalars()
frag_addr_setup(18432, 9216)
a('v_or_b32 v16, 8, v1')
a('v_lshrrev_b32 v6, 1, v16')
a('v_xor_b32 v6, v2, v6')
a('v_lshlrev_b32 v6, 4, v6')
a('v_and_b32 v16, 7, v16')
a('v_lshl_add_u32 v6, v16, 7, v6')
a(f's_mul_i32 s53, s{S_PI}, 9216')
a('v_add_u32 v6, s53, v6')
a('v_xor_b32 v7, 64, v6')
for r in range(QACC, QACC + 144): a(f'v_mov_b32 v{r}, 0')
a('s_waitcnt vmcnt(0)')
wp_pack(24, QWP)
def xreads(X, ks):
    L = [f'ds_read_b128 {vr(X+4*t,4)}, v{4+ks} offset:{1024 + t*2048}' for t in range(4)]
    L.append(f'ds_read_b128 {vr(X+16,4)}, v{6+ks}')
    return L
def wreads(b, ks):
    return [f'ds_read_b64_tr_b16 {vr(WF+(b*2+dt)*4+h2*2,2)}, v{8+dt} offset:{b*8192+(32*ks+4*h2)*128}' for dt in range(2) for h2 in range(2)]
def blk(b, X):
    XX = lambda t: vr(X + 4 * t, 4) if t >= 0 else vr(X + 16, 4)
    W = lambda dt: vr(WF + (b * 2 + dt) * 4, 4)
    L = []
    if b < 2:
        base = B_Q if b == 0 else A_Q
        for t in range(4):
            for dt in range(2):
                c = vr(base + (t * 2 + dt) * 4, 4); L.append(f'v_mfma_f32_16x16x32_bf16 {c}, {W(dt)}, {XX(t)}, {c}')
    else:
        base = A_K if b == 2 else A_V
        for t in range(-1, 4):
            for dt in range(2):
                c = vr(base + ((t + 1) * 2 + dt) * 4, 4)
                L.append(f'v_mfma_f32_16x16x32_bf16 {c}, {W(dt)}, {XX(t)}, {c}' if b == 2 else f'v_mfma_f32_16x16x32_bf16 {c}, {XX(t)}, {W(dt)}, {c}')
    return L
def kstep(Xc, Xn, ksn, first_wait):
    xr = xreads(Xn, ksn)
    waits = [12, 13, 13, 13] if first_wait else [None] * 4
    for b in range(4):
        if waits[b] is not None: a(f's_waitcnt lgkmcnt({waits[b] if b == 0 else min(15, 4*(3-b) + 5 + 4*b)})' if False else f's_waitcnt lgkmcnt({[12, 15, 13+0, 13][b] if False else [12, 13, 13, 13][b]})')
        M = blk(b, Xc)
        for n, m in enumerate(M):
            a(m)
            if b == 0 and n < len(xr): a(xr[n])
        for r in wreads(b, ksn): a(r)
a(f's_mov_b32 s68, {SLOT_Q}')
a(f's_mov_b32 s69, {-2*SLOT_Q & 0xffffffff}')
a('s_mov_b32 s67, 0')
a('s_mov_b32 s70, 0')
a('s_barrier')
for r in xreads(X0, 0): a(r)
for b in range(4):
    for r in wreads(b, 0): a(r)
a.label('L_CP_Q')
kstep(X0, X1, 1, True)
a('s_add_u32 s70, s70, 1')
a('s_cmp_eq_u32 s70, 3')
a('s_cselect_b32 s53, s69, s68')
a('s_cselect_b32 s70, 0, s70')
a('s_waitcnt lgkmcnt(0)')
for r in (4, 5, 6, 7, 8, 9): a(f'v_add_u32 v{r}, s53, v{r}')
a('s_waitcnt vmcnt(0)')
a('s_barrier')
kstep(X1, X0, 0, False)
a('s_cmp_lg_u32 s67, 2')
a('s_cbranch_scc1 L_NC_Q')
for r in range(4): a(f'v_mov_b32 v{240+r}, -1')
for br in range(2):
    a(f's_add_u32 s53, s96, {br*WS_OB}')
    for t in range(4):
        a(f'buffer_store_dwordx4 v[240:243], v11, {R(SWS)}, s53 offen sc1')
        a('s_add_u32 s53, s53, 16384')
a.label('L_NC_Q', pad=False)
a('s_add_u32 s67, s67, 1')
a('s_cmp_lt_u32 s67, 7')
a('s_cbranch_scc1 L_CP_Q')
a('s_waitcnt lgkmcnt(0)')
stamp(1)
nonce_prefetch()
def packA(q, k, v, b, t0):
    for t in range(2):
        cvt4(q + 4 * t, A_Q + (t0 + t) * 8, A_Q + (t0 + t) * 8 + 4)
        zero_pad(q + 4 * t)
    for t in range(3):
        cvt4(k + 4 * t, A_K + (t0 + t) * 8, A_K + (t0 + t) * 8 + 4)
    for t in range(3):
        for dt in range(2):
            s = A_V + ((t0 + t) * 2 + dt) * 4
            a(f'v_cvt_pk_bf16_f32 v{v+dt*6+2*t}, v{s}, v{s+1}')
            a(f'v_cvt_pk_bf16_f32 v{v+dt*6+2*t+1}, v{s+2}, v{s+3}')
    for t in range(2):
        cvt4(b + 4 * t, B_Q + (t0 + t) * 8, B_Q + (t0 + t) * 8 + 4)
packA(QP, KP, VP, QXP, 2)
for n in range(10):
    a(f'ds_write_b128 v251, {vr(QP+4*n,4)} offset:{n*1024}')
a('s_waitcnt lgkmcnt(0)')
a('s_barrier')
packA(QP, KP, VP, QXP, 0)
a('s_waitcnt vmcnt(0)')
nonce_resolve()
a(f'buffer_load_dword v{VT1}, v249, {R(SWS)}, s38 offen sc1')
a.label('L_AQ_EPI')
set_flag(97)
GV = 56
MP = [56, 58, 60, 62]; MC = [64, 66, 68, 70]; MP0 = [36, 42, 86, 100]
a('v_lshlrev_b32 v3, 2, v2')
a('v_add_u32 v4, 9, v1')
for r in range(4):
    a(f'v_add_u32 v5, {r}, v3')
    a(f'v_cmp_ge_u32 s[{MP[r]}:{MP[r]+1}], v5, v4')
    a('v_sub_u32 v6, v1, v5')
    a(f'v_cmp_gt_u32 s[{MC[r]}:{MC[r]+1}], 8, v6')
a(f's_or_b32 s53, s{S_RB}, s{S_HH}')
a('s_cmp_eq_u32 s53, 0')
for r in range(4):
    a(f's_cselect_b64 s[{MP0[r]}:{MP0[r]+1}], 0, s[{MP[r]}:{MP[r]+1}]')
a('s_waitcnt lgkmcnt(0)')
SC = 88
for t in range(2):
    a(f'v_mfma_f32_16x16x32_bf16 {vr(SC+8*t,4)}, {vr(KP+4*t,4)}, {vr(QP+4*t,4)}, 0')
    a(f'v_mfma_f32_16x16x32_bf16 {vr(SC+8*t+4,4)}, {vr(KP+4*(t+1),4)}, {vr(QP+4*t,4)}, 0')
MX = 104
for t in range(2):
    for r in range(4):
        mp = (MP0 if t == 0 else MP)[r]
        a(f'v_cndmask_b32_e64 v{SC+8*t+r}, v10, v{SC+8*t+r}, s[{mp}:{mp+1}]')
        a(f'v_cndmask_b32_e64 v{SC+8*t+4+r}, v10, v{SC+8*t+4+r}, s[{MC[r]}:{MC[r]+1}]')
    s = SC + 8 * t
    a(f'v_max3_f32 v{MX+t}, v{s}, v{s+1}, v{s+2}')
    a(f'v_max3_f32 v{MX+t}, v{MX+t}, v{s+3}, v{s+4}')
    a(f'v_max3_f32 v{MX+t}, v{MX+t}, v{s+5}, v{s+6}')
    a(f'v_max_f32 v{MX+t}, v{MX+t}, v{s+7}')
xlane2('v_max_f32', MX, MX + 1)
poll_mask(249, 38, 39)
a('v_lshlrev_b32 v3, 2, v0')
for t in range(2):
    a(f'buffer_load_dword v{GV+t}, v3, {R(SWS)}, s40 offen offset:{t*256} sc1')
a(f's_mov_b32 s88, {f2u(28 ** -0.5 * LOG2E):#x}')
PP = 108
OO = 116
for t in range(2):
    a(f'v_mul_f32 v{MX+t}, s88, v{MX+t}')
    for r in range(8):
        a(f'v_fma_f32 v{SC+8*t+r}, v{SC+8*t+r}, s88, -v{MX+t}')
    for r in range(8):
        a(f'v_exp_f32 v{SC+8*t+r}, v{SC+8*t+r}')
    cvt4(PP + 4 * t, SC + 8 * t, SC + 8 * t + 4)
    a(f'v_mfma_f32_16x16x32_bf16 {vr(OO+12*t+8,4)}, {vr(ONES,4)}, {vr(PP+4*t,4)}, 0')
    for dt in range(2):
        a(f'v_mfma_f32_16x16x32_bf16 {vr(OO+12*t+4*dt,4)}, {vr(VP+dt*6+2*t,4)}, {vr(PP+4*t,4)}, 0')
a('s_mov_b32 s53, s96')
a('s_waitcnt vmcnt(0)')
for t in range(2):
    o = OO + 12 * t
    a(f'v_rcp_f32 v{o+8}, v{o+8}')
    a(f'v_mul_f32 v{o+8}, v{o+8}, v{GV+t}')
    for r in range(0, 8, 2):
        a(f'v_pk_mul_f32 {vr(o+r,2)}, {vr(o+r,2)}, {vr(o+8,2)} op_sel_hi:[1,0]')
    cvt4(140 + 4 * t, o, o + 4)
    zero_pad(140 + 4 * t)
    sanitize(140 + 4 * t)
    a(f'buffer_store_dwordx4 {vr(140+4*t,4)}, v11, {R(SWS)}, s53 offen sc1')
    a('s_add_u32 s53, s53, 16384')
stamp(15)
PK, ST, SUM, E, EP = 16, 32, 60, 200, 76
def kvloads():
    for q in range(4):
        a(f'buffer_load_dwordx4 {vr(PK+4*q,4)}, v11, {R(SWS)}, s41 offen offset:{q*1024} sc1')
def kvfetch():
    kvloads()
    a('s_add_u32 s53, s97, 16384')
    set_flag(53)
hedgehog(QXP, QWP, PK, ST, SUM, E, EP, {2: kvfetch})
stamp(3)
KF = PK
OB = 200
a('s_mov_b32 s3, 0')
a.label('L_KVW')
a('s_waitcnt vmcnt(0)')
empty_test(KF, 16)
a('s_cbranch_scc0 L_KVOK')
kvloads()
a('s_add_u32 s3, s3, 1')
a(f's_cmp_lt_u32 s3, {SPIN}')
a('s_cbranch_scc1 L_KVW')
a('s_waitcnt vmcnt(0)')
a.label('L_KVOK')
stamp(2)
for t in range(2):
    for dt in range(2):
        c = vr(OB + (t * 2 + dt) * 4, 4)
        a(f'v_mfma_f32_16x16x32_bf16 {c}, {vr(KF+dt*4,4)}, {vr(EP+t*4,4)}, 0')
for t in range(2):
    for dt in (1, 0):
        c = vr(OB + (t * 2 + dt) * 4, 4)
        a(f'v_mfma_f32_16x16x32_bf16 {c}, {vr(KF+(2+dt)*4,4)}, {vr(EP+(2+t)*4,4)}, {c}')
for t in range(2): a(f'v_sub_f32 v{GV+2+t}, 1.0, v{GV+t}')
a(f's_add_u32 s53, s96, {WS_OB}')
a(f'v_mov_b32 v216, v{OB+4}')
a(f'v_mov_b32 v217, v{OB+12}')
a('v_permlane32_swap_b32 v216, v217')
a('v_mov_b32 v216, v217')
a('v_permlane16_swap_b32 v217, v216')
a('v_add_f32 v216, s91, v216')
a('v_rcp_f32 v216, v216')
a('v_mov_b32 v217, v216')
a('v_permlane32_swap_b32 v216, v217')
for t in range(2):
    o = OB + 8 * t
    a(f'v_mul_f32 v{218+2*t}, v{216+t}, v{GV+2+t}')
    for r in range(0, 8, 2): a(f'v_pk_mul_f32 {vr(o+r,2)}, {vr(o+r,2)}, {vr(218+2*t,2)} op_sel_hi:[1,0]')
    cvt4(224 + 4 * t, o, o + 4)
    zero_pad(224 + 4 * t)
    sanitize(224 + 4 * t)
    a(f'buffer_store_dwordx4 {vr(224+4*t,4)}, v11, {R(SWS)}, s53 offen sc1')
    a('s_add_u32 s53, s53, 16384')
stamp(5)
a('s_branch L_END')

a.label('L_KV')
WP = 240
KXP = 24
F0, F1, ACC = 24, 68, 112
def kv_setup():
    phi_loads(224)
    common_consts(L_XK, 11)
    a('v_cmp_eq_u32 s[88:89], 12, v1')
    a(f's_lshl_b32 s36, s{S_HP}, 4')
    a(f's_add_u32 s36, s36, s{S_RB}')
    a('s_lshl_b32 s36, s36, 3')
    a(f's_add_u32 s36, s36, s{S_WAVE}')
    a('s_lshl_b32 s36, s36, 10')
    a(f's_add_u32 s36, s36, {WS_KVP}')
    a(f's_lshl_b32 s37, s{S_HP}, 3')
    a(f's_add_u32 s37, s37, s{S_WAVE}')
    a('s_lshl_b32 s37, s37, 8')
    a(f's_lshl_b32 s54, s{S_RB}, 2')
    a('s_add_u32 s37, s37, s54')
    a(f's_add_u32 s37, s37, {WS_FL}')
    a(f'v_lshrrev_b32 v248, 3, v0')
    a(f'v_and_b32 v{VT2}, 6, v248')
    a(f'v_mul_u32_u24 v248, 896, v248')
    a(f'v_xor_b32 v{VT2}, v0, v{VT2}')
    a(f'v_and_b32 v{VT2}, 7, v{VT2}')
    a(f'v_lshl_add_u32 v248, v{VT2}, 4, v248')
    a(f's_mul_i32 s53, s{S_WAVE}, {7*7168}')
    a(f's_lshl_b32 s54, s{S_NB}, 7')
    a('s_add_u32 s53, s53, s54')
    a('v_add_u32 v248, s53, v248')
    a(f's_mul_i32 s44, s{S_WAVE}, 7168')
    a('s_and_b32 s4, s2, 7')
    a(f's_and_b32 s53, s{S_WORK}, 1')
    a('s_lshl_b32 s53, s53, 1')
    a(f's_add_u32 s53, s53, s{S_J}')
    a('s_lshr_b32 s5, s53, 1')
    a('s_and_b32 s6, s53, 1')
    a('s_lshl_b32 s38, s6, 2')
    a('s_add_u32 s38, s38, s5')
    a('s_lshl_b32 s39, s4, 17')
    a('s_lshl_b32 s40, s38, 10')
    a('s_add_u32 s39, s39, s40')
    a(f's_add_u32 s39, s39, {WS_KVP}')
    a('s_lshl_b32 s40, s4, 3')
    a('s_add_u32 s38, s38, s40')
    a('s_lshl_b32 s38, s38, 8')
    a(f's_add_u32 s38, s38, {WS_FL}')
    a('s_lshl_b32 s40, s4, 1')
    a('s_add_u32 s40, s40, s5')
    a('s_lshl_b32 s40, s40, 12')
    a('s_lshl_b32 s41, s6, 11')
    a('s_add_u32 s40, s40, s41')
    a(f's_add_u32 s40, s40, {WS_KVR}')
    a('s_lshl_b32 s41, s4, 8')
    a('s_lshl_b32 s53, s53, 2')
    a('s_add_u32 s41, s41, s53')
    a(f's_add_u32 s41, s41, {WS_FL + 208*256}')
def kv_late():
    a('s_waitcnt vmcnt(0)')
    wp_pack(224, WP)
    a(f's_lshr_b32 s53, s{S_WAVE}, 1')
    a(f's_lshl_b32 s54, s{S_J}, 13')
    a(f's_add_u32 s54, s54, {L_VF}')
    a('v_add_u32 v21, s54, v11')
    a(f's_lshl_b32 s62, s{S_PI}, 11')
    a('v_add_u32 v22, s62, v21')
    a('v_lshrrev_b32 v6, 1, v1')
    a('v_and_b32 v6, 3, v6')
    a('v_lshlrev_b32 v6, 5, v6')
    a('v_lshl_add_u32 v6, v2, 3, v6')
    a('v_lshl_add_u32 v16, v1, 7, v6')
    a(f's_lshl_b32 s54, s{S_J}, 14')
    a(f's_add_u32 s54, s54, {L_PT}')
    a('s_lshl_b32 s62, s53, 12')
    a('s_add_u32 s62, s62, s54')
    a('v_add_u32 v16, s62, v16')
    for Ft in range(1, 4):
        a(f'v_xor_b32 v{16+Ft}, {Ft*32}, v16')
    a('v_lshrrev_b32 v6, 2, v1')
    a('v_lshl_add_u32 v6, v2, 2, v6')
    a('v_lshrrev_b32 v7, 1, v6')
    a('v_and_b32 v7, 3, v7')
    a('v_xor_b32 v7, s53, v7')
    a('v_lshlrev_b32 v7, 5, v7')
    a('v_lshl_add_u32 v20, v6, 7, v7')
    a('v_and_b32 v7, 3, v0')
    a('v_lshl_add_u32 v20, v7, 3, v20')
    a('v_add_u32 v20, s54, v20')
a(f's_cmp_eq_u32 s{S_HH}, 0')
a('s_cbranch_scc1 L_KV_COMP')
def kvl_post():
    kv_setup()
    nonce_prefetch()
def kvl_mid():
    kv_late()
    nonce_resolve()
    set_flag(37)
    a('s_sub_u32 s53, s37, 1024')
    set_flag(53)
    a(f's_cmp_lt_u32 s{S_WORK}, 14')
    a('s_cbranch_scc1 L_NKRF')
    a(f's_cmp_ge_u32 s{S_WAVE}, 6')
    a('s_cbranch_scc1 L_NKRF')
    set_flag(41)
    a.label('L_NKRF')
loader_loop('K', False, SLOT_K, [(SWB, 1), (SWB, 2)], True, kvl_post, 17, kvl_mid)
a('s_barrier')
a(f'ds_read_b128 {vr(KXP,4)}, v251')
a(f'ds_read_b128 {vr(KXP+4,4)}, v251 offset:1024')
a('s_waitcnt lgkmcnt(0)')
a('s_branch L_KV_EPI')
a.label('L_KV_COMP')
a('s_cmp_lg_u32 s2, 255')
a('s_cbranch_scc1 L_NOSCAN')
a(f's_cmp_lg_u32 s{S_WAVE}, 3')
a('s_cbranch_scc1 L_NOSCAN')
a('v_lshrrev_b32 v3, 2, v0')
a('v_lshlrev_b32 v3, 8, v3')
a('v_and_b32 v4, 3, v0')
a('v_lshl_add_u32 v3, v4, 4, v3')
a(f's_mov_b32 s53, {WS_FL}')
NS = NGRP // 16
for n in range(NS):
    a(f'buffer_load_dwordx4 {vr(100+4*n,4)}, v3, {R(SWS)}, s53 offen sc1')
    a('s_add_u32 s53, s53, 4096')
a('s_memrealtime s[88:89]')
a('s_waitcnt vmcnt(0) lgkmcnt(0)')
a('s_or_b32 s88, s88, 1')
a.label('L_SCAN')
a('s_mov_b64 s[90:91], 0')
for n in range(4 * NS):
    a(f'v_cmp_eq_u32 vcc, s88, v{100+n}')
    a('s_or_b64 s[90:91], s[90:91], vcc')
a('s_cmp_eq_u64 s[90:91], 0')
a('s_cbranch_scc1 L_SCANOK')
a('s_add_u32 s88, s88, 2')
a('s_branch L_SCAN')
a.label('L_SCANOK')
a('v_mov_b32 v3, 0')
a('v_mov_b32 v5, s88')
a('s_mov_b64 exec, 1')
a(f'buffer_store_dword v5, v3, {R(SDBG)}, 0 offen sc1')
a('s_mov_b64 exec, -1')
a.label('L_NOSCAN')
kv_setup()
frag_addr_setup(16384, 8192)
kv_late()
a(f's_lshl_b32 s53, s{S_ROT}, 7')
a(f's_add_u32 s53, s53, {L_GATE}')
a('v_lshlrev_b32 v3, 4, v2')
a('v_add_u32 v3, s53, v3')
a(f's_mov_b32 s71, s{S_ROT}')
for r in range(ACC, ACC + 80): a(f'v_mov_b32 v{r}, 0')
def readsK(F, ks):
    L = [f'ds_read_b128 {vr(F+4*t,4)}, v{4+ks} offset:{t*2048}' for t in range(4)]
    for b in range(2):
        for dt in range(2):
            for h2 in range(2):
                L.append(f'ds_read_b64_tr_b16 {vr(F+20+(b*2+dt)*4+h2*2,2)}, v{8+dt} offset:{b*8192+(32*ks+4*h2)*128}')
    L.append(f'ds_read_b128 {vr(F+16,4)}, v3 offset:{ks*64}')
    return L
def mfmasK(F):
    L = []
    X = lambda t: vr(F + 4 * t, 4)
    W = lambda b, dt: vr(F + 20 + (b * 2 + dt) * 4, 4)
    for t in (2, 3, 0, 1):
        for dt in range(2):
            c = vr(ACC + (t * 2 + dt) * 4, 4); L.append(f'v_mfma_f32_16x16x32_bf16 {c}, {W(0,dt)}, {X(t)}, {c}')
    for t in range(4):
        for dt in range(2):
            c = vr(ACC + 32 + (t * 2 + dt) * 4, 4); L.append(f'v_mfma_f32_16x16x32_bf16 {c}, {X(t)}, {W(1,dt)}, {c}')
    for t in range(4):
        c = vr(ACC + 64 + t * 4, 4); L.append(f'v_mfma_f32_16x16x32_bf16 {c}, {vr(F+16,4)}, {X(t)}, {c}')
    return L
def interleave(M, Rr):
    for n, m in enumerate(M):
        a(m)
        if n < len(Rr): a(Rr[n])
a(f's_mov_b32 s68, {SLOT_K}')
a(f's_mov_b32 s69, {-2*SLOT_K & 0xffffffff}')
a('s_movk_i32 s60, 128')
a('s_movk_i32 s61, -768')
a('s_mov_b32 s67, 0')
a('s_mov_b32 s70, 0')
a('s_barrier')
for r in readsK(F0, 0): a(r)
a.label('L_CP_K')
a('s_waitcnt lgkmcnt(0)')
interleave(mfmasK(F0), readsK(F1, 1))
a('s_add_u32 s70, s70, 1')
a('s_cmp_eq_u32 s70, 3')
a('s_cselect_b32 s53, s69, s68')
a('s_cselect_b32 s70, 0, s70')
a('s_waitcnt lgkmcnt(0)')
for r in (4, 5, 8, 9): a(f'v_add_u32 v{r}, s53, v{r}')
a('s_add_u32 s71, s71, 1')
a('s_cmp_eq_u32 s71, 7')
a('s_cselect_b32 s53, s61, s60')
a('s_cselect_b32 s71, 0, s71')
a('v_add_u32 v3, s53, v3')
a('s_waitcnt vmcnt(0)')
a('s_barrier')
interleave(mfmasK(F1), readsK(F0, 0))
a('s_cmp_lg_u32 s67, 2')
a('s_cbranch_scc1 L_NC_K')
for r in range(4): a(f'v_mov_b32 v{224+r}, -1')
a('s_add_u32 s53, s36, 4096')
a(f'buffer_store_dwordx4 v[224:227], v11, {R(SWS)}, s36 offen sc1')
a(f'buffer_store_dwordx4 v[224:227], v11, {R(SWS)}, s53 offen sc1')
a(f's_cmp_lt_u32 s{S_WORK}, 14')
a('s_cbranch_scc1 L_NC_K')
a(f's_cmp_ge_u32 s{S_WAVE}, 2')
a('s_cbranch_scc1 L_NC_K')
a(f'buffer_store_dwordx4 v[224:227], v11, {R(SWS)}, s40 offen sc1')
a(f'buffer_store_dwordx4 v[224:227], v11, {R(SWS)}, s40 offen offset:1024 sc1')
a.label('L_NC_K', pad=False)
a('s_add_u32 s67, s67, 1')
a('s_cmp_lt_u32 s67, 7')
a('s_cbranch_scc1 L_CP_K')
a('s_waitcnt lgkmcnt(0)')
stamp(1)
nonce_prefetch()
for t in range(2):
    cvt4(44 + 4 * t, ACC + (2 + t) * 8, ACC + (2 + t) * 8 + 4)
    a(f'ds_write_b128 v251, {vr(44+4*t,4)} offset:{t*1024}')
for t in range(2):
    cvt4(KXP + 4 * t, ACC + t * 8, ACC + t * 8 + 4)
a('s_waitcnt lgkmcnt(0)')
a('s_barrier')
for hh in range(2):
    for dt in range(2):
        d = 44 + (hh * 2 + dt) * 4
        cvt4(d, ACC + 32 + ((2 * hh) * 2 + dt) * 4, ACC + 32 + ((2 * hh + 1) * 2 + dt) * 4)
        if dt:
            for r in range(4):
                a(f'v_cndmask_b32_e64 v{d+r}, v{d+r}, v{ONES}, s[88:89]')
        a(f'ds_write_b128 v22, {vr(d,4)} offset:{hh*4096 + dt*1024}')
a(f's_or_b32 s53, s{S_HP}, s{S_J}')
a('s_cmp_lg_u32 s53, 0')
a('s_cbranch_scc1 L_KV_EPI')
a(f's_lshl_b32 s53, s{S_RB}, 1')
a(f's_add_u32 s53, s53, s{S_PI}')
a('s_lshl_b32 s53, s53, 10')
a(f's_add_u32 s53, s53, {WS_G}')
a('v_lshlrev_b32 v3, 2, v0')
for t in range(4):
    gs = ACC + 64 + 4 * t
    a(f'v_mul_f32 v{gs}, s90, v{gs}')
    a(f'v_exp_f32 v{gs}, -v{gs}')
    a(f'v_add_f32 v{gs}, 1.0, v{gs}')
    a(f'v_rcp_f32 v{gs}, v{gs}')
    a(f'buffer_store_dword v{gs}, v3, {R(SWS)}, s53 offen offset:{t*256} sc1')
a.label('L_KV_EPI')
KPK, KST, KSUM, KE, KEP = 64, 80, 88, 104, 224
def ptwrite(q):
    sg, t = q >> 1, q & 1
    for ft in range(2):
        a(f'ds_write_b64 v{16+sg*2+ft}, {vr(KEP+q*4+2*ft,2)} offset:{t*2048}')
hedgehog(KXP, WP, KPK, KST, KSUM, KE, KEP, {3: ptwrite})
stamp(10)
a('s_waitcnt lgkmcnt(0)')
a('s_barrier')
ET, VG, KV = 136, 152, 184
for u in range(4):
    for hh in range(2):
        a(f'ds_read_b64_tr_b16 {vr(ET+4*u+2*hh,2)}, v20 offset:{(u*32+hh*16)*128}')
    for dt in range(2):
        a(f'ds_read_b128 {vr(VG+(u*2+dt)*4,4)}, v21 offset:{(u*2+dt)*1024}')
for u in range(4):
    a(f's_waitcnt lgkmcnt({4*(3-u)})')
    for dt in range(2):
        c = vr(KV + 4 * dt, 4)
        a(f'v_mfma_f32_16x16x32_bf16 {c}, {vr(ET+4*u,4)}, {vr(VG+(u*2+dt)*4,4)}, {c if u else 0}')
cvt4(192, KV, KV + 4)
sanitize(192)
a(f'buffer_store_dwordx4 v[192:195], v11, {R(SWS)}, s36 offen sc1')
stamp(12)
AC2, OF, WB = 24, 56, 120
a('v_lshrrev_b32 v3, 2, v1')
a('v_and_b32 v4, 3, v0')
a('v_lshl_add_u32 v5, v2, 2, v3')
a('v_lshlrev_b32 v5, 7, v5')
a('v_lshl_add_u32 v5, v4, 3, v5')
a(f's_mul_i32 s53, s{S_HH}, 28672')
a(f's_add_u32 s53, s53, {L_WO + 57344}')
a('v_add_u32 v5, s53, v5')
a('v_lshrrev_b32 v6, 1, v3')
a('v_lshl_add_u32 v6, v2, 1, v6')
for par in range(2):
    a(f'v_add_u32 v8, {2*par}, v6')
    a('v_and_b32 v8, 3, v8')
    for T in range(4):
        a(f'v_xor_b32 v9, {T}, v8')
        a(f'v_lshl_add_u32 v{16+par*4+T}, v9, 5, v5')
a(f's_and_b32 s54, s{S_WAVE}, 3')
a(f's_lshl_b32 s63, s{S_RB2}, 3')
a('s_add_u32 s63, s63, s54')
a('s_lshl_b32 s64, s63, 14')
a(f's_lshl_b32 s53, s{S_HH}, 13')
a('s_add_u32 s64, s64, s53')
a('s_lshr_b32 s65, s63, 1')
a('s_lshl_b32 s65, s65, 8')
a(f's_add_u32 s65, s65, {WS_FL + 64*256}')
a(f's_lshl_b32 s66, s{S_HH}, 3')
a('v_and_b32 v6, 1, v2')
a('v_lshlrev_b32 v6, 9, v6')
a('v_lshl_add_u32 v6, v1, 2, v6')
a('s_waitcnt vmcnt(1)')
nonce_resolve()
a(f's_or_b32 s53, s{S_HP}, s{S_J}')
a(f's_or_b32 s53, s53, s{S_HH}')
a('s_cmp_lg_u32 s53, 0')
a('s_cbranch_scc1 L_NOGF')
a(f's_lshl_b32 s53, s{S_RB}, 8')
a(f's_lshl_b32 s5, s{S_PI}, 2')
a('s_add_u32 s53, s53, s5')
a(f's_add_u32 s53, s53, {WS_FL + 192*256}')
set_flag(53)
a.label('L_NOGF')
stamp(2)
a(f's_cmp_lt_u32 s{S_WORK}, 14')
a('s_cbranch_scc1 L_NORED')
a(f's_cmp_ge_u32 s{S_WAVE}, 2')
a('s_cbranch_scc1 L_END')
PL, SEL, RS = 56, 184, 192
a('v_lshrrev_b32 v4, 2, v1')
a('v_cmp_eq_u32 vcc, v4, v2')
a('v_and_b32 v4, 3, v1')
a('v_and_b32 v5, 1, v4')
a('v_lshlrev_b32 v5, 4, v5')
a('v_mov_b32 v8, 0x3f80')
a('v_lshlrev_b32 v8, v5, v8')
a('v_cndmask_b32 v8, 0, v8, vcc')
a('v_cmp_gt_u32 vcc, 2, v4')
a(f'v_cndmask_b32 v{SEL}, 0, v8, vcc')
a(f'v_cndmask_b32 v{SEL+1}, v8, 0, vcc')
for r in (2, 3, 4, 5): a(f'v_mov_b32 v{SEL+r}, 0')
a(f'v_mov_b32 v{SEL+6}, v{SEL}')
a(f'v_mov_b32 v{SEL+7}, v{SEL+1}')
for r in range(16): a(f'v_mov_b32 v{RS+r}, 0')
def rextract():
    a('s_lshr_b32 s4, vcc_lo, 16')
    a('s_and_b32 s4, s4, vcc_lo')
def rload(p):
    a(f's_add_u32 s53, s39, {p*8192}')
    a(f'buffer_load_dwordx4 {vr(PL+8*p,4)}, v11, {R(SWS)}, s53 offen sc1')
    a(f'buffer_load_dwordx4 {vr(PL+8*p+4,4)}, v11, {R(SWS)}, s53 offen offset:2048 sc1')
def racc(p):
    for f in range(2):
        for dt in range(2):
            c = vr(RS + (dt * 2 + f) * 4, 4)
            a(f'v_mfma_f32_16x16x32_bf16 {c}, {vr(SEL+4*dt,4)}, {vr(PL+8*p+4*f,4)}, {c}')
gather(6, 38, rextract, rload, racc, lambda p: PL + 8 * p, nld=2)
for dt in range(2):
    cvt4(208 + 4 * dt, RS + dt * 8, RS + dt * 8 + 4)
    sanitize(208 + 4 * dt)
    a(f'buffer_store_dwordx4 {vr(208+4*dt,4)}, v11, {R(SWS)}, s40 offen offset:{dt*1024} sc1')
stamp(4)
a('s_branch L_END')
a.label('L_NORED')
for r in range(32): a(f'v_mov_b32 v{AC2+r}, 0')
for br in (0, 1):
    for n in range(7):
        a(f's_add_u32 m0, s44, {L_WO + (1-br)*57344 + n*1024}')
        a(f's_mov_b32 s5, {n*7168}')
        a(f'buffer_load_dwordx4 v248, {R(SWOA if br == 0 else SWOB)}, s5 offen lds')
a('s_waitcnt vmcnt(0)')
a('s_barrier')
def wfrags():
    for h in range(8):
        for T in range(4):
            for sec in range(2):
                a(f'ds_read_b64_tr_b16 {vr(WB+(h*4+T)*4+2*sec,2)}, v{16+(h&1)*4+T} offset:{h*3584 + sec*2048}')
def oextract():
    a('s_lshr_b32 s4, vcc_lo, s66')
    a('s_lshr_b32 s5, s4, 8')
    a('s_and_b32 s4, s4, 0xff')
    a('s_and_b32 s5, s5, 0xff00')
    a('s_or_b32 s4, s4, s5')
    a('s_waitcnt lgkmcnt(0)')
def oload(p):
    a(f's_add_u32 s53, s64, {(p>>3)*65536 + (p&7)*1024}')
    a(f'buffer_load_dwordx4 {vr(OF+4*p,4)}, v11, {R(SWS)}, s53 offen sc1')
def oacc(p):
    for T in range(4):
        c = vr(AC2 + (p >> 3) * 16 + 4 * T, 4)
        a(f'v_mfma_f32_16x16x32_bf16 {c}, {vr(WB+((p&7)*4+T)*4,4)}, {vr(OF+4*p,4)}, {c}')
a('s_mov_b32 s67, 0')
a.label('L_P2_HALF')
wfrags()
gather(6, 65, oextract, oload, oacc, lambda p: OF + 4 * p)
a('s_cmp_eq_u32 s67, 1')
a('s_cbranch_scc1 L_P2_FIN')
stamp(7)
a('s_mov_b32 s67, 1')
for r in range(16, 24): a(f'v_subrev_u32 v{r}, 57344, v{r}')
a('s_add_u32 s65, s65, 16384')
a(f's_add_u32 s64, s64, {WS_OB}')
a('s_lshl_b32 s53, s54, 13')
a(f's_add_u32 s53, s53, {L_RED}')
a('v_add_u32 v3, s53, v11')
a(f's_lshl_b32 s62, s{S_RB2}, 7')
a('s_lshl_b32 s53, s54, 5')
a('s_add_u32 s62, s62, s53')
a(f's_add_u32 s62, s62, s{S_HH}')
a('s_mul_i32 s62, s62, 896')
a(f's_lshl_b32 s53, s{S_NB}, 7')
a('s_add_u32 s62, s62, s53')
a('v_mul_u32_u24 v5, 1792, v1')
a('v_lshl_add_u32 v5, v2, 3, v5')
a('s_branch L_P2_HALF')
a.label('L_P2_FIN')
stamp(8)
a(f's_cmp_eq_u32 s{S_HH}, 0')
a('s_cbranch_scc1 L_P2_K0')
for T in range(4): a(f'ds_write_b128 v3, {vr(AC2+4*T,4)} offset:{T*1024}')
a('s_waitcnt lgkmcnt(0)')
a('s_barrier')
for T in range(4): a(f'ds_read_b128 {vr(OF+4*T,4)}, v3 offset:{4096+T*1024}')
for r in range(16): a(f'v_mov_b32 v{AC2+r}, v{AC2+16+r}')
a('s_branch L_P2_ST')
a.label('L_P2_K0')
for T in range(4): a(f'ds_write_b128 v3, {vr(AC2+16+4*T,4)} offset:{4096+T*1024}')
a('s_waitcnt lgkmcnt(0)')
a('s_barrier')
for T in range(4): a(f'ds_read_b128 {vr(OF+4*T,4)}, v3 offset:{T*1024}')
a.label('L_P2_ST')
for T in range(4):
    a(f's_waitcnt lgkmcnt({3-T})')
    for r in range(0, 4, 2): a(f'v_pk_add_f32 {vr(AC2+4*T+r,2)}, {vr(AC2+4*T+r,2)}, {vr(OF+4*T+r,2)}')
    a(f'v_cvt_pk_bf16_f32 v{OF+16+2*T}, v{AC2+4*T}, v{AC2+4*T+1}')
    a(f'v_cvt_pk_bf16_f32 v{OF+17+2*T}, v{AC2+4*T+2}, v{AC2+4*T+3}')
    a(f'buffer_store_dwordx2 {vr(OF+16+2*T,2)}, v5, {R(SOUT)}, s62 offen offset:{32*T}')
a.label('L_END')
if STAMP:
    a('s_waitcnt vmcnt(0)')
    stamp(9)
    a('s_lshl_b32 s3, s2, 3')
    a(f's_add_u32 s3, s3, s{S_WAVE}')
    a('s_lshl_b32 s3, s3, 8')
    a(f's_add_u32 s3, s3, {WS_ST}')
    a('v_lshlrev_b32 v3, 2, v0')
    a(f'buffer_store_dword v250, v3, {R(SWS)}, s3 offen')
    a('s_waitcnt vmcnt(0)')
a.label('L_EXIT')
a('s_endpgm')

a.raw('.section .rodata,"a"')
a.raw('.p2align 6')
a.raw(f'.amdhsa_kernel {KN}')
a.raw('  .amdhsa_next_free_vgpr 256')
a.raw('  .amdhsa_next_free_sgpr 102')
a.raw('  .amdhsa_accum_offset 256')
a.raw('  .amdhsa_group_segment_fixed_size 0')
a.raw('  .amdhsa_kernarg_size 88')
a.raw('  .amdhsa_user_sgpr_count 2')
a.raw('  .amdhsa_user_sgpr_kernarg_segment_ptr 1')
a.raw('  .amdhsa_system_sgpr_workgroup_id_x 1')
a.raw('.end_amdhsa_kernel')
sys.stdout.write(a.text())
```

```python
import sys, math, os, struct
from asmlib import *
STAMP = os.environ.get('STAMP') == '1'
SPIN = int(os.environ.get('SPIN', '200000'))

KN = 'gated_mix__sliding_local_dilated__linear_kernel_hedgehog__prompt_kernel'
WS_OA = 0
WS_OB = 2 << 20
WS_G = 4 << 20
WS_KVR = (4 << 20) + (1 << 19)
WS_KVP = 5 << 20
WS_FL = 6 << 20
WS_ST = 7 << 20
WS_SIZE = 8 << 20
NGRP = 224
LOG2E = 1.4426950408889634
def f2u(x): return struct.unpack('<I', struct.pack('<f', x))[0]

SLOT_Q = 18432 + 32768
SLOT_K = 32768
L_GATE = 98304
L_WO = 0
L_XK = 100352
L_PT = 114688
L_VF = 147456
L_RED = 131072
L_XQ = 0
LDS = 163840

a = Asm()
a.raw(f'; @launch grid=(256,1,1) block=(512,1,1) lds={LDS}')
a.raw('.amdgcn_target "amdgcn-amd-amdhsa--gfx950"')
a.raw('.text')
a.raw(f'.globl {KN}')
a.raw('.p2align 8')
a.raw(f'.type {KN},@function')
a.label(KN, pad=False)

SX, SWA, SWS, SPHI, SGATE, SDBG, SWOA, SWOB, SOUT, SWB = 8, 12, 16, 20, 24, 28, 72, 76, 80, 92
S_RB, S_HP, S_BR, S_WAVE, S_ROT, S_NONCE = 32, 33, 34, 35, 48, 49
S_J, S_PI, S_HH = 50, 51, 52
S_RB2, S_NB, S_WORK = 46, 47, 45
M48 = 84
VT0, VT1, VNON, VT2 = 252, 253, 254, 255

def srd(dst, lo, size):
    a(f's_mov_b32 s{dst}, s{lo}')
    a(f's_and_b32 s{dst+1}, s{lo+1}, 0xffff')
    a(f's_mov_b32 s{dst+2}, {size}')
    a(f's_mov_b32 s{dst+3}, 0x00020000')
def R(s): return f's[{s}:{s+3}]'
def stamp(n):
    if STAMP:
        a('s_memrealtime s[98:99]')
        a('s_waitcnt lgkmcnt(0)')
        a(f'v_writelane_b32 v250, s98, {n}')

a('s_cmp_ge_u32 s2, 256')
a('s_cbranch_scc1 L_EXIT')
a('s_load_dwordx8 s[36:43], s[0:1], 0')
a('s_load_dwordx8 s[56:63], s[0:1], 32')
a('s_load_dwordx4 s[64:67], s[0:1], 64')
a('s_load_dwordx2 s[44:45], s[0:1], 80')
if STAMP:
    a('v_mov_b32 v250, 0')
    a('s_memrealtime s[98:99]')
a('v_lshrrev_b32 v1, 6, v0')
a('v_and_b32 v0, 63, v0')
a(f'v_readfirstlane_b32 s{S_WAVE}, v1')
a('s_and_b32 s3, s2, 7')
a('s_lshr_b32 s7, s2, 3')
a('s_and_b32 s7, s7, 15')
a(f's_lshr_b32 s{S_BR}, s2, 7')
a('s_and_b32 s5, s3, 3')
a('s_lshl_b32 s5, s5, 2')
a('s_and_b32 s6, s7, 3')
a(f's_add_u32 s{S_RB}, s5, s6')
a('s_lshr_b32 s5, s3, 2')
a('s_lshl_b32 s5, s5, 2')
a('s_lshr_b32 s6, s7, 2')
a(f's_add_u32 s{S_HP}, s5, s6')
a(f's_mul_i32 s5, s{S_HP}, 3')
a(f's_add_u32 s5, s5, s{S_RB}')
a(f's_mul_i32 s6, s{S_BR}, 5')
a('s_add_u32 s5, s5, s6')
a('s_mul_i32 s6, s5, 37')
a('s_lshr_b32 s6, s6, 8')
a('s_mul_i32 s6, s6, 7')
a(f's_sub_u32 s{S_ROT}, s5, s6')
a('s_mul_i32 s5, s7, 37')
a('s_lshr_b32 s5, s5, 8')
a('s_mul_i32 s6, s5, 7')
a(f's_sub_u32 s{S_NB}, s7, s6')
a('s_lshl_b32 s3, s3, 1')
a(f's_add_u32 s{S_RB2}, s3, s5')
a(f's_and_b32 s{S_J}, s{S_WAVE}, 1')
a(f's_lshr_b32 s{S_PI}, s{S_WAVE}, 1')
a(f's_and_b32 s{S_PI}, s{S_PI}, 1')
a(f's_lshr_b32 s{S_HH}, s{S_WAVE}, 2')
a('v_lshrrev_b32 v3, 3, v0')
a('v_and_b32 v4, 7, v0')
a('v_lshrrev_b32 v5, 1, v3')
a('v_xor_b32 v16, v4, v5')
a('v_lshlrev_b32 v16, 4, v16')
a('v_mul_u32_u24 v6, 1792, v3')
a('v_xor_b32 v17, 64, v16')
a('v_add_u32 v16, v16, v6')
a('v_add_u32 v17, v17, v6')
a('v_add_u32 v17, 14336, v17')
a('v_add_u32 v18, 28672, v16')
a('v_add_u32 v19, 28672, v17')
a('v_and_b32 v7, 1, v5')
a('v_lshlrev_b32 v7, 1, v7')
a('v_xor_b32 v20, v4, v7')
a('v_xor_b32 v21, 4, v20')
a('v_min_u32 v20, 6, v20')
a('v_min_u32 v21, 6, v21')
a('v_lshlrev_b32 v20, 4, v20')
a('v_lshlrev_b32 v21, 4, v21')
a(f's_and_b32 s54, s{S_WAVE}, 3')
a('s_lshl_b32 s53, s54, 4')
a('v_add_u32 v7, s53, v3')
a('v_mul_u32_u24 v7, 2688, v7')
a('v_add_u32 v20, v20, v7')
a('v_add_u32 v21, v21, v7')
a('v_add_u32 v21, 21504, v21')
a(f's_lshl_b32 s53, s{S_J}, 1')
a('s_add_u32 s53, s53, 4')
a('v_add_u32 v22, s53, v5')
a('v_xor_b32 v22, v4, v22')
a('v_lshlrev_b32 v22, 4, v22')
a('v_add_u32 v22, v22, v6')
a(f's_lshl_b32 s53, s{S_J}, 2')
a('s_add_u32 s53, s53, 8')
a('s_mul_i32 s53, s53, 1792')
a('v_add_u32 v22, s53, v22')
a(f's_lshl_b32 s55, s{S_RB}, 7')
a('s_max_u32 s86, s55, 32')
a('s_sub_u32 s86, s86, 32')
a(f's_add_u32 s86, s86, s{S_PI}')
a('s_mul_i32 s86, s86, 896')
a(f's_lshl_b32 s53, s{S_J}, 6')
a('s_add_u32 s55, s55, s53')
a(f's_add_u32 s55, s55, s{S_PI}')
a('s_mul_i32 s55, s55, 896')
a(f's_mul_i32 s87, s{S_HP}, 112')
a('v_and_b32 v1, 15, v0')
a('v_lshrrev_b32 v2, 4, v0')
a('v_lshlrev_b32 v11, 4, v0')
a('s_waitcnt lgkmcnt(0)')
if STAMP: a('v_writelane_b32 v250, s98, 0')
srd(SX, 36, 2048 * 896)
srd(SWA, 38, 448 * 2688)
srd(SWB, 56, 448 * 2688)
srd(SWS, 44, WS_SIZE)
srd(SPHI, 58, 16 * 28 * 28 * 2)
srd(SGATE, 62, 896)
srd(SDBG, 66, 256)
srd(SWOA, 40, 448 * 896)
srd(SWOB, 60, 448 * 896)
srd(SOUT, 64, 2048 * 896)
a(f's_mov_b32 s{S_WORK}, s7')
a(f's_mov_b32 s60, s{S_ROT}')
a(f's_cmp_eq_u32 s{S_BR}, 1')
a('s_cbranch_scc1 L_KV')

uid = [0]
ONES = 12
def common_consts(xbase, xshift):
    a(f'v_cmp_le_u32 s[{M48}:{M48+1}], 48, v0')
    a('v_mov_b32 v10, 0xff800000')
    for r in range(4): a(f'v_mov_b32 v{ONES+r}, 0x3f803f80')
    a(f's_and_b32 s53, s{S_WAVE}, 3')
    a(f's_lshl_b32 s53, s53, {xshift}')
    if xbase: a(f's_add_u32 s53, s53, {xbase}')
    a('v_add_u32 v251, s53, v11')
    a(f's_mov_b32 s90, {f2u(LOG2E):#x}')
def phi_loads(dst):
    a(f's_lshl_b32 s53, s{S_HP}, 1')
    a(f's_add_u32 s53, s53, s{S_J}')
    a('s_mul_i32 s53, s53, 1568')
    a('v_mul_u32_u24 v5, 224, v2')
    a('v_lshl_add_u32 v3, v1, 1, v5')
    a('v_add_u32 v6, 16, v1')
    a('v_min_u32 v6, 27, v6')
    a('v_lshl_add_u32 v6, v6, 1, v5')
    for ft, vo in ((0, 3), (1, 6)):
        for j in range(8):
            d = j if j < 4 else 16 + (j - 4)
            a(f'buffer_load_ushort v{dst+ft*8+j}, v{vo}, {R(SPHI)}, s53 offen offset:{d*56}')
def wp_pack(src, WP):
    for ft in range(2):
        for jj in range(4):
            a(f'v_lshl_or_b32 v{WP+ft*4+jj}, v{src+ft*8+2*jj+1}, 16, v{src+ft*8+2*jj}')
        zero_pad(WP + ft * 4)
def frag_addr_setup(WOFF, XP):
    a('v_lshrrev_b32 v3, 2, v1')
    a('v_and_b32 v16, 3, v0')
    a('v_lshl_add_u32 v17, v2, 3, v3')
    a('v_lshlrev_b32 v17, 7, v17')
    a('v_lshrrev_b32 v18, 1, v3')
    a('v_lshlrev_b32 v18, 1, v18')
    a('v_and_b32 v19, 1, v2')
    a('v_lshl_add_u32 v18, v19, 2, v18')
    a(f's_mul_i32 s53, s{S_J}, 56')
    a('v_lshlrev_b32 v19, 3, v16')
    a('v_add_u32 v19, s53, v19')
    for dt in range(2):
        if dt: a('v_add_u32 v19, 32, v19')
        a('v_lshrrev_b32 v20, 4, v19')
        a('v_xor_b32 v20, v20, v18')
        a('v_lshlrev_b32 v20, 4, v20')
        a('v_and_b32 v21, 8, v19')
        a(f'v_add3_u32 v{8+dt}, v17, v20, v21')
        a(f'v_add_u32 v{8+dt}, {WOFF}, v{8+dt}')
    a('v_lshrrev_b32 v3, 1, v1')
    a('v_xor_b32 v4, v2, v3')
    a('v_lshlrev_b32 v4, 4, v4')
    a('v_lshl_add_u32 v4, v1, 7, v4')
    a(f's_mul_i32 s53, s{S_PI}, {XP}')
    a('v_add_u32 v4, s53, v4')
    a('v_xor_b32 v5, 64, v4')

def loader_loop(tag, halo, SLOT, wlist, gate, post=None, nextra=0, mid=None):
    XP = 9216 if halo else 8192
    XH = 1024 if halo else 0
    WOFF = 18432 if halo else 16384
    nops = 4 + (1 if halo else 0) + 2 * len(wlist)
    a(f's_mul_i32 s58, s{S_PI}, {XP}')
    if halo:
        a(f's_lshl_b32 s71, s{S_J}, 9')
        a('s_add_u32 s71, s71, s58')
    a(f's_lshl_b32 s53, s{S_J}, 12')
    a('s_add_u32 s58, s58, s53')
    if XH: a(f's_add_u32 s58, s58, {XH}')
    a(f's_and_b32 s59, s{S_WAVE}, 3')
    a('s_lshl_b32 s59, s59, 11')
    a(f's_add_u32 s59, s59, {WOFF}')
    a(f's_mov_b32 s68, {SLOT}')
    a(f's_mov_b32 s69, {3*SLOT}')
    a('s_mov_b32 s61, 0')
    def issue():
        a('s_lshl_b32 s62, s60, 7')
        if halo: a('s_add_u32 s63, s62, s86')
        a('s_add_u32 s62, s62, s55')
        a('s_mul_i32 s64, s60, 172032')
        a('s_add_u32 s64, s64, s87')
        a('s_add_u32 s60, s60, 1')
        a('s_cmp_eq_u32 s60, 7')
        a('s_cselect_b32 s60, 0, s60')
        a('s_add_u32 s65, s58, s61')
        a('s_add_u32 s56, s59, s61')
        for n in range(4):
            a(f's_add_u32 m0, s65, {n*1024}')
            a(f'buffer_load_dwordx4 v{16+n}, {R(SX)}, s62 offen lds')
        if halo:
            a('s_add_u32 m0, s71, s61')
            a('s_mov_b32 exec_hi, 0')
            a(f'buffer_load_dwordx4 v22, {R(SX)}, s63 offen lds')
            a('s_mov_b32 exec_hi, -1')
        for n, (sw, b) in enumerate(wlist):
            if b: a(f's_add_u32 s66, s64, {b*896}')
            for h in range(2):
                a(f's_add_u32 m0, s56, {n*8192 + h*1024}')
                a(f'buffer_load_dwordx4 v{20+h}, {R(sw)}, s{66 if b else 64} offen lds')
        a('s_add_u32 s61, s61, s68')
        a('s_cmp_eq_u32 s61, s69')
        a('s_cselect_b32 s61, 0, s61')
    if gate:
        a(f's_cmp_lg_u32 s{S_WAVE}, 7')
        a(f's_cbranch_scc1 L_NOGATE_{tag}')
        a(f's_mov_b32 m0, {L_GATE}')
        a(f'buffer_load_dwordx4 v11, {R(SGATE)}, 0 offen lds')
        a.label(f'L_NOGATE_{tag}')
    issue()
    issue()
    a('s_mov_b32 s67, 0')
    a.label(f'L_LD_{tag}')
    a(f's_waitcnt vmcnt({nops})')
    a('s_barrier')
    issue()
    a('s_add_u32 s67, s67, 1')
    a('s_cmp_lt_u32 s67, 5')
    a(f's_cbranch_scc1 L_LD_{tag}')
    if post: post()
    a(f's_waitcnt vmcnt({nops + nextra})')
    a('s_barrier')
    a(f's_waitcnt vmcnt({nextra})')
    a('s_barrier')
    if mid: mid()
    a('s_barrier')

def xlane4(op, m):
    m0, m1, m2, m3 = m
    a(f'v_permlane32_swap_b32 v{m0}, v{m1}')
    a(f'v_permlane32_swap_b32 v{m2}, v{m3}')
    a(f'{op} v{m0}, v{m0}, v{m1}')
    a(f'{op} v{m2}, v{m2}, v{m3}')
    a(f'v_permlane16_swap_b32 v{m0}, v{m2}')
    a(f'{op} v{m0}, v{m0}, v{m2}')
    a(f'v_mov_b32 v{m2}, v{m0}')
    a(f'v_permlane16_swap_b32 v{m0}, v{m2}')
    a(f'v_mov_b32 v{m1}, v{m0}')
    a(f'v_mov_b32 v{m3}, v{m2}')
    a(f'v_permlane32_swap_b32 v{m0}, v{m1}')
    a(f'v_permlane32_swap_b32 v{m2}, v{m3}')
def xlane2(op, m0, m1):
    a(f'v_permlane32_swap_b32 v{m0}, v{m1}')
    a(f'{op} v{m0}, v{m0}, v{m1}')
    a(f'v_mov_b32 v{m1}, v{m0}')
    a(f'v_permlane16_swap_b32 v{m0}, v{m1}')
    a(f'{op} v{m0}, v{m0}, v{m1}')
    a(f'v_mov_b32 v{m1}, v{m0}')
    a(f'v_permlane32_swap_b32 v{m0}, v{m1}')
def cvt4(dst, s0, s1):
    a(f'v_cvt_pk_bf16_f32 v{dst}, v{s0}, v{s0+1}')
    a(f'v_cvt_pk_bf16_f32 v{dst+1}, v{s0+2}, v{s0+3}')
    a(f'v_cvt_pk_bf16_f32 v{dst+2}, v{s1}, v{s1+1}')
    a(f'v_cvt_pk_bf16_f32 v{dst+3}, v{s1+2}, v{s1+3}')
def zero_pad(r):
    a(f'v_cndmask_b32_e64 v{r+2}, v{r+2}, 0, s[{M48}:{M48+1}]')
    a(f'v_cndmask_b32_e64 v{r+3}, v{r+3}, 0, s[{M48}:{M48+1}]')

def nonce_prefetch():
    a(f'v_mov_b32 v{VT0}, 0')
    a(f'buffer_load_dword v{VNON}, v{VT0}, {R(SDBG)}, 0 offen sc1')
def nonce_resolve():
    uid[0] += 1; u = uid[0]
    a('s_mov_b32 s3, 0')
    a.label(f'L_GN_{u}')
    a(f'v_readfirstlane_b32 s{S_NONCE}, v{VNON}')
    a(f's_cmp_lg_u32 s{S_NONCE}, 0')
    a(f's_cbranch_scc1 L_GNX_{u}')
    a('s_sleep 2')
    nonce_prefetch()
    a('s_waitcnt vmcnt(0)')
    a('s_add_u32 s3, s3, 1')
    a(f's_cmp_lt_u32 s3, {SPIN}')
    a(f's_cbranch_scc1 L_GN_{u}')
    a.label(f'L_GNX_{u}')
def set_flag(off_sgpr):
    a(f'v_mov_b32 v{VT0}, 0')
    a(f'v_mov_b32 v{VT2}, s{S_NONCE}')
    a('s_mov_b64 exec, 1')
    a(f'buffer_store_dword v{VT2}, v{VT0}, {R(SWS)}, s{off_sgpr} offen sc1')
    a('s_mov_b64 exec, -1')
def poll_mask(vaddr, off_sgpr, mask_sgpr):
    uid[0] += 1; u = uid[0]
    a('s_mov_b32 s3, 0')
    a.label(f'L_PA_{u}')
    a('s_waitcnt vmcnt(0)')
    a(f'v_cmp_eq_u32 vcc, s{S_NONCE}, v{VT1}')
    a(f's_and_b32 s4, vcc_lo, s{mask_sgpr}')
    a(f's_cmp_eq_u32 s4, s{mask_sgpr}')
    a(f's_cbranch_scc1 L_PAX_{u}')
    a('s_sleep 1')
    a(f'buffer_load_dword v{VT1}, v{vaddr}, {R(SWS)}, s{off_sgpr} offen sc1')
    a('s_add_u32 s3, s3, 1')
    a(f's_cmp_lt_u32 s3, {SPIN}')
    a(f's_cbranch_scc1 L_PA_{u}')
    a.label(f'L_PAX_{u}')
def sanitize(r, n=4):
    for i in range(n): a(f'v_min_u32 v{r+i}, 0xfffffffe, v{r+i}')
def empty_test(reg, nregs):
    a(f'v_max3_u32 v{VT2}, v{reg}, v{reg+1}, v{reg+2}')
    r = 3
    while r + 1 < nregs:
        a(f'v_max3_u32 v{VT2}, v{VT2}, v{reg+r}, v{reg+r+1}'); r += 2
    if r < nregs: a(f'v_max_u32 v{VT2}, v{VT2}, v{reg+r}')
    a(f'v_cmp_eq_u32 vcc, -1, v{VT2}')
    a('s_cmp_lg_u64 vcc, 0')
def check_acc(u, p, reg, nregs, acc, tag):
    empty_test(reg, nregs)
    a.raw(f'    s_cbranch_scc1 L_GC{tag}_{u}_{p}')
    acc(p)
    a(f's_bitset1_b32 s42, {p}')
    a.label(f'L_GC{tag}_{u}_{p}', pad=False)
def gather(vaddr, off_sgpr, extract, load, acc, reg, nld=1):
    uid[0] += 1; u = uid[0]
    n = 16; full = 0xffff
    a('s_mov_b32 s3, 0')
    a('s_mov_b32 s42, 0')
    a('s_mov_b32 s43, 0')
    a.label(f'L_GA_{u}')
    a('s_andn2_b32 s7, s43, s42')
    a(f's_cmp_eq_u32 s7, {full}')
    a(f's_cbranch_scc1 L_GF_{u}')
    a(f's_cmp_eq_u32 s43, {full}')
    a(f's_cbranch_scc1 L_GNP_{u}')
    a(f'buffer_load_dword v{VT1}, v{vaddr}, {R(SWS)}, s{off_sgpr} offen sc1')
    a.label(f'L_GNP_{u}')
    a('s_cmp_eq_u32 s7, 0')
    a(f's_cbranch_scc1 L_GNL_{u}')
    for p in range(n):
        a(f's_bitcmp1_b32 s7, {p}')
        a(f's_cbranch_scc0 L_GK_{u}_{p}')
        load(p)
        a.label(f'L_GK_{u}_{p}', pad=False)
    a.label(f'L_GNL_{u}')
    a('s_waitcnt vmcnt(0)')
    a(f'v_cmp_eq_u32 vcc, s{S_NONCE}, v{VT1}')
    extract()
    a('s_or_b32 s43, s43, s4')
    a('s_cmp_eq_u32 s7, 0')
    a(f's_cbranch_scc1 L_GNC_{u}')
    for p in range(n):
        a.raw(f'    s_bitcmp1_b32 s7, {p}')
        a.raw(f'    s_cbranch_scc0 L_GCL_{u}_{p}')
        check_acc(u, p, reg(p), 4 * nld, acc, 'L')
    a.label(f'L_GNC_{u}', pad=False)
    a(f's_cmp_eq_u32 s42, {full}')
    a(f's_cbranch_scc1 L_GAX_{u}')
    a('s_add_u32 s3, s3, 1')
    a(f's_cmp_lt_u32 s3, {SPIN}')
    a(f's_cbranch_scc1 L_GA_{u}')
    a(f's_branch L_GAX_{u}')
    a.label(f'L_GF_{u}')
    AHEAD = 6
    for p in range(n + AHEAD):
        if p < n: load(p)
        if p >= AHEAD:
            q = p - AHEAD
            a(f's_waitcnt vmcnt({(min(n - 1, p) - q) * nld})')
            check_acc(u, q, reg(q), 4 * nld, acc, 'F')
    a(f's_branch L_GNC_{u}')
    a.label(f'L_GAX_{u}')
    a('s_nop 7')

def o_offsets(dst_o, dst_f):
    a(f's_lshl_b32 s53, s{S_RB}, 1')
    a(f's_add_u32 s53, s53, s{S_PI}')
    a('s_lshl_b32 s53, s53, 1')
    a(f's_add_u32 s53, s53, s{S_HH}')
    a(f's_lshl_b32 s54, s{S_HP}, 1')
    a(f's_add_u32 s54, s54, s{S_J}')
    a(f's_lshl_b32 s{dst_o}, s53, 5')
    a(f's_add_u32 s{dst_o}, s{dst_o}, s54')
    a(f's_lshl_b32 s{dst_o}, s{dst_o}, 10')
    a(f's_lshl_b32 s{dst_f}, s53, 8')
    a('s_lshl_b32 s54, s54, 2')
    a(f's_add_u32 s{dst_f}, s{dst_f}, s54')
    a(f's_add_u32 s{dst_f}, s{dst_f}, {WS_FL + 64*256}')

def hedgehog(xp, WP, PK, ST, SUM, E, EP, mid=None):
    for t in range(2):
        for ft in range(2):
            a(f'v_mfma_f32_16x16x32_bf16 {vr(PK+8*t+4*ft,4)}, {vr(WP+4*ft,4)}, {vr(xp+4*t,4)}, 0')
    for t in range(2):
        s = PK + 8 * t
        for n, d in (('', ST + t), ('-', ST + 2 + t)):
            a(f'v_max3_f32 v{d}, {n}v{s}, {n}v{s+1}, {n}v{s+2}')
            a(f'v_max3_f32 v{d}, v{d}, {n}v{s+3}, {n}v{s+4}')
            a(f'v_max3_f32 v{d}, v{d}, {n}v{s+5}, {n}v{s+6}')
            a(f'v_max_f32_e64 v{d}, v{d}, {n}v{s+7}')
    xlane4('v_max_f32', [ST, ST + 1, ST + 2, ST + 3])
    for q in range(4):
        a(f'v_mul_f32_e64 v{ST+q}, -s90, v{ST+q}')
        a(f'v_cndmask_b32_e64 v{ST+4+q}, v{ST+q}, v10, s[{M48}:{M48+1}]')
    for sg in range(2):
        for t in range(2):
            for ft in range(2):
                for r in range(4):
                    p = PK + 8 * t + 4 * ft + r
                    a(f'v_fma_f32 v{E+16*sg+8*t+4*ft+r}, {"-" if sg else ""}v{p}, s90, v{ST+4*ft+2*sg+t}')
            for r in range(8):
                a(f'v_exp_f32 v{E+16*sg+8*t+r}, v{E+16*sg+8*t+r}')
            q = 2 * sg + t
            cvt4(EP + 4 * q, E + 8 * q, E + 8 * q + 4)
            a(f'v_mfma_f32_16x16x32_bf16 {vr(SUM+4*q,4)}, {vr(ONES,4)}, {vr(EP+4*q,4)}, 0')
        if mid and (1 + sg) in mid: mid[1 + sg]()
    for q in range(4):
        a(f'v_rcp_f32 v{SUM+4*q}, v{SUM+4*q}')
    for q in range(4):
        for r in range(0, 8, 2):
            a(f'v_pk_mul_f32 {vr(E+8*q+r,2)}, {vr(E+8*q+r,2)}, {vr(SUM+4*q,2)} op_sel_hi:[1,0]')
        cvt4(EP + 4 * q, E + 8 * q, E + 8 * q + 4)
        if mid and 3 in mid: mid[3](q)

X0, X1, WF, QACC, QWP = 16, 36, 56, 88, 232
A_Q, A_K, A_V, B_Q = QACC, QACC + 32, QACC + 72, QACC + 112
MC = [88, 100, 56, 58]
def aq_scalars():
    common_consts(L_XQ, 14)
    o_offsets(96, 97)
    a('s_lshr_b32 s40, s96, 14')
    a('s_lshl_b32 s40, s40, 8')
    a(f's_add_u32 s40, s40, {WS_G}')
    a(f's_lshl_b32 s41, s{S_HP}, 1')
    a(f's_add_u32 s41, s41, s{S_J}')
    a('s_lshl_b32 s41, s41, 12')
    a(f's_add_u32 s41, s41, {WS_KVR}')
    a(f's_lshl_b32 s53, s{S_RB}, 8')
    a(f's_lshl_b32 s54, s{S_HP}, 8')
    a('s_add_u32 s54, s54, 4096')
    a('v_mov_b32 v249, s53')
    a('v_mov_b32 v248, s54')
    a('v_cmp_lt_u32 vcc, 15, v0')
    a('v_cndmask_b32 v249, v249, v248, vcc')
    a('v_lshl_add_u32 v249, v1, 2, v249')
    a(f's_mov_b32 s38, {WS_FL + 192*256}')
    a(f's_lshl_b32 s39, 1, s{S_PI}')
    a(f's_lshl_b32 s53, s{S_J}, 1')
    a('s_add_u32 s53, s53, 16')
    a('s_lshl_b32 s53, 3, s53')
    a('s_or_b32 s39, s39, s53')
    a(f's_mov_b32 s91, {f2u(1e-6):#x}')
a(f's_cmp_eq_u32 s{S_HH}, 0')
a('s_cbranch_scc1 L_AQ_COMP')
def aql_post():
    phi_loads(100)
    aq_scalars()
    nonce_prefetch()
def aql_mid():
    a('s_waitcnt vmcnt(0)')
    wp_pack(100, QWP)
    nonce_resolve()
WL_AQ = [(SWB, 0), (SWA, 0), (SWA, 1), (SWA, 2)]
loader_loop('Q', True, SLOT_Q, WL_AQ, False, aql_post, 17, aql_mid)
QP, KP, VP, QXP = 16, 24, 36, 48
a(f'buffer_load_dword v{VT1}, v249, {R(SWS)}, s38 offen sc1')
a('s_barrier')
for n in range(10):
    a(f'ds_read_b128 {vr(QP+4*n,4)}, v251 offset:{n*1024}')
a('s_branch L_AQ_EPI')
a.label('L_AQ_COMP')
phi_loads(24)
aq_scalars()
frag_addr_setup(18432, 9216)
a('v_or_b32 v16, 8, v1')
a('v_lshrrev_b32 v6, 1, v16')
a('v_xor_b32 v6, v2, v6')
a('v_lshlrev_b32 v6, 4, v6')
a('v_and_b32 v16, 7, v16')
a('v_lshl_add_u32 v6, v16, 7, v6')
a(f's_mul_i32 s53, s{S_PI}, 9216')
a('v_add_u32 v6, s53, v6')
a('v_xor_b32 v7, 64, v6')
for r in range(QACC, QACC + 144): a(f'v_mov_b32 v{r}, 0')
a('s_waitcnt vmcnt(0)')
wp_pack(24, QWP)
def xreads(X, ks):
    L = [f'ds_read_b128 {vr(X+4*t,4)}, v{4+ks} offset:{1024 + t*2048}' for t in range(4)]
    L.append(f'ds_read_b128 {vr(X+16,4)}, v{6+ks}')
    return L
def wreads(b, ks):
    return [f'ds_read_b64_tr_b16 {vr(WF+(b*2+dt)*4+h2*2,2)}, v{8+dt} offset:{b*8192+(32*ks+4*h2)*128}' for dt in range(2) for h2 in range(2)]
def blk(b, X):
    XX = lambda t: vr(X + 4 * t, 4) if t >= 0 else vr(X + 16, 4)
    W = lambda dt: vr(WF + (b * 2 + dt) * 4, 4)
    L = []
    if b < 2:
        base = B_Q if b == 0 else A_Q
        for t in range(4):
            for dt in range(2):
                c = vr(base + (t * 2 + dt) * 4, 4); L.append(f'v_mfma_f32_16x16x32_bf16 {c}, {W(dt)}, {XX(t)}, {c}')
    else:
        base = A_K if b == 2 else A_V
        for t in range(-1, 4):
            for dt in range(2):
                c = vr(base + ((t + 1) * 2 + dt) * 4, 4)
                L.append(f'v_mfma_f32_16x16x32_bf16 {c}, {W(dt)}, {XX(t)}, {c}' if b == 2 else f'v_mfma_f32_16x16x32_bf16 {c}, {XX(t)}, {W(dt)}, {c}')
    return L
def kstep(Xc, Xn, ksn, first_wait):
    xr = xreads(Xn, ksn)
    waits = [12, 13, 13, 13] if first_wait else [None] * 4
    for b in range(4):
        if waits[b] is not None: a(f's_waitcnt lgkmcnt({waits[b] if b == 0 else min(15, 4*(3-b) + 5 + 4*b)})' if False else f's_waitcnt lgkmcnt({[12, 15, 13+0, 13][b] if False else [12, 13, 13, 13][b]})')
        M = blk(b, Xc)
        for n, m in enumerate(M):
            a(m)
            if b == 0 and n < len(xr): a(xr[n])
        for r in wreads(b, ksn): a(r)
a(f's_mov_b32 s68, {SLOT_Q}')
a(f's_mov_b32 s69, {-2*SLOT_Q & 0xffffffff}')
a('s_mov_b32 s67, 0')
a('s_mov_b32 s70, 0')
a('s_barrier')
for r in xreads(X0, 0): a(r)
for b in range(4):
    for r in wreads(b, 0): a(r)
a.label('L_CP_Q')
kstep(X0, X1, 1, True)
a('s_add_u32 s70, s70, 1')
a('s_cmp_eq_u32 s70, 3')
a('s_cselect_b32 s53, s69, s68')
a('s_cselect_b32 s70, 0, s70')
a('s_waitcnt lgkmcnt(0)')
for r in (4, 5, 6, 7, 8, 9): a(f'v_add_u32 v{r}, s53, v{r}')
a('s_barrier')
kstep(X1, X0, 0, False)
a('s_cmp_lg_u32 s67, 2')
a('s_cbranch_scc1 L_NC_Q')
for r in range(4): a(f'v_mov_b32 v{240+r}, -1')
for br in range(2):
    a(f's_add_u32 s53, s96, {br*WS_OB}')
    for t in range(4):
        a(f'buffer_store_dwordx4 v[240:243], v11, {R(SWS)}, s53 offen sc1')
        a('s_add_u32 s53, s53, 16384')
a.label('L_NC_Q', pad=False)
a('s_add_u32 s67, s67, 1')
a('s_cmp_lt_u32 s67, 7')
a('s_cbranch_scc1 L_CP_Q')
a('s_waitcnt lgkmcnt(0)')
stamp(1)
a('s_waitcnt vmcnt(0)')
nonce_prefetch()
def packA(q, k, v, b, t0):
    for t in range(2):
        cvt4(q + 4 * t, A_Q + (t0 + t) * 8, A_Q + (t0 + t) * 8 + 4)
        zero_pad(q + 4 * t)
    for t in range(3):
        cvt4(k + 4 * t, A_K + (t0 + t) * 8, A_K + (t0 + t) * 8 + 4)
    for t in range(3):
        for dt in range(2):
            s = A_V + ((t0 + t) * 2 + dt) * 4
            a(f'v_cvt_pk_bf16_f32 v{v+dt*6+2*t}, v{s}, v{s+1}')
            a(f'v_cvt_pk_bf16_f32 v{v+dt*6+2*t+1}, v{s+2}, v{s+3}')
    for t in range(2):
        cvt4(b + 4 * t, B_Q + (t0 + t) * 8, B_Q + (t0 + t) * 8 + 4)
packA(QP, KP, VP, QXP, 2)
for n in range(10):
    a(f'ds_write_b128 v251, {vr(QP+4*n,4)} offset:{n*1024}')
a('s_waitcnt lgkmcnt(0)')
a('s_barrier')
packA(QP, KP, VP, QXP, 0)
a('s_waitcnt vmcnt(0)')
nonce_resolve()
a(f'buffer_load_dword v{VT1}, v249, {R(SWS)}, s38 offen sc1')
a.label('L_AQ_EPI')
set_flag(97)
GV = 56
MP = [56, 58, 60, 62]; MC = [64, 66, 68, 70]; MP0 = [36, 42, 86, 100]
a('v_lshlrev_b32 v3, 2, v2')
a('v_add_u32 v4, 9, v1')
for r in range(4):
    a(f'v_add_u32 v5, {r}, v3')
    a(f'v_cmp_ge_u32 s[{MP[r]}:{MP[r]+1}], v5, v4')
    a('v_sub_u32 v6, v1, v5')
    a(f'v_cmp_gt_u32 s[{MC[r]}:{MC[r]+1}], 8, v6')
a(f's_or_b32 s53, s{S_RB}, s{S_HH}')
a('s_cmp_eq_u32 s53, 0')
for r in range(4):
    a(f's_cselect_b64 s[{MP0[r]}:{MP0[r]+1}], 0, s[{MP[r]}:{MP[r]+1}]')
a('s_waitcnt lgkmcnt(0)')
SC = 88
for t in range(2):
    a(f'v_mfma_f32_16x16x32_bf16 {vr(SC+8*t,4)}, {vr(KP+4*t,4)}, {vr(QP+4*t,4)}, 0')
    a(f'v_mfma_f32_16x16x32_bf16 {vr(SC+8*t+4,4)}, {vr(KP+4*(t+1),4)}, {vr(QP+4*t,4)}, 0')
MX = 104
for t in range(2):
    for r in range(4):
        mp = (MP0 if t == 0 else MP)[r]
        a(f'v_cndmask_b32_e64 v{SC+8*t+r}, v10, v{SC+8*t+r}, s[{mp}:{mp+1}]')
        a(f'v_cndmask_b32_e64 v{SC+8*t+4+r}, v10, v{SC+8*t+4+r}, s[{MC[r]}:{MC[r]+1}]')
    s = SC + 8 * t
    a(f'v_max3_f32 v{MX+t}, v{s}, v{s+1}, v{s+2}')
    a(f'v_max3_f32 v{MX+t}, v{MX+t}, v{s+3}, v{s+4}')
    a(f'v_max3_f32 v{MX+t}, v{MX+t}, v{s+5}, v{s+6}')
    a(f'v_max_f32 v{MX+t}, v{MX+t}, v{s+7}')
xlane2('v_max_f32', MX, MX + 1)
poll_mask(249, 38, 39)
a('v_lshlrev_b32 v3, 2, v0')
for t in range(2):
    a(f'buffer_load_dword v{GV+t}, v3, {R(SWS)}, s40 offen offset:{t*256} sc1')
a(f's_mov_b32 s88, {f2u(28 ** -0.5 * LOG2E):#x}')
PP = 108
OO = 116
for t in range(2):
    a(f'v_mul_f32 v{MX+t}, s88, v{MX+t}')
    for r in range(8):
        a(f'v_fma_f32 v{SC+8*t+r}, v{SC+8*t+r}, s88, -v{MX+t}')
    for r in range(8):
        a(f'v_exp_f32 v{SC+8*t+r}, v{SC+8*t+r}')
    cvt4(PP + 4 * t, SC + 8 * t, SC + 8 * t + 4)
    a(f'v_mfma_f32_16x16x32_bf16 {vr(OO+12*t+8,4)}, {vr(ONES,4)}, {vr(PP+4*t,4)}, 0')
    for dt in range(2):
        a(f'v_mfma_f32_16x16x32_bf16 {vr(OO+12*t+4*dt,4)}, {vr(VP+dt*6+2*t,4)}, {vr(PP+4*t,4)}, 0')
a('s_mov_b32 s53, s96')
a('s_waitcnt vmcnt(0)')
for t in range(2):
    o = OO + 12 * t
    a(f'v_rcp_f32 v{o+8}, v{o+8}')
    a(f'v_mul_f32 v{o+8}, v{o+8}, v{GV+t}')
    for r in range(0, 8, 2):
        a(f'v_pk_mul_f32 {vr(o+r,2)}, {vr(o+r,2)}, {vr(o+8,2)} op_sel_hi:[1,0]')
    cvt4(140 + 4 * t, o, o + 4)
    zero_pad(140 + 4 * t)
    sanitize(140 + 4 * t)
    a(f'buffer_store_dwordx4 {vr(140+4*t,4)}, v11, {R(SWS)}, s53 offen sc1')
    a('s_add_u32 s53, s53, 16384')
stamp(15)
PK, ST, SUM, E, EP = 16, 32, 60, 200, 76
def kvloads():
    for q in range(4):
        a(f'buffer_load_dwordx4 {vr(PK+4*q,4)}, v11, {R(SWS)}, s41 offen offset:{q*1024} sc1')
def kvfetch():
    kvloads()
    a('s_add_u32 s53, s97, 16384')
    set_flag(53)
hedgehog(QXP, QWP, PK, ST, SUM, E, EP, {2: kvfetch})
stamp(3)
KF = PK
OB = 200
a('s_mov_b32 s3, 0')
a.label('L_KVW')
a('s_waitcnt vmcnt(0)')
empty_test(KF, 16)
a('s_cbranch_scc0 L_KVOK')
kvloads()
a('s_add_u32 s3, s3, 1')
a(f's_cmp_lt_u32 s3, {SPIN}')
a('s_cbranch_scc1 L_KVW')
a('s_waitcnt vmcnt(0)')
a.label('L_KVOK')
stamp(2)
for t in range(2):
    for dt in range(2):
        c = vr(OB + (t * 2 + dt) * 4, 4)
        a(f'v_mfma_f32_16x16x32_bf16 {c}, {vr(KF+dt*4,4)}, {vr(EP+t*4,4)}, 0')
for t in range(2):
    for dt in (1, 0):
        c = vr(OB + (t * 2 + dt) * 4, 4)
        a(f'v_mfma_f32_16x16x32_bf16 {c}, {vr(KF+(2+dt)*4,4)}, {vr(EP+(2+t)*4,4)}, {c}')
for t in range(2): a(f'v_sub_f32 v{GV+2+t}, 1.0, v{GV+t}')
a(f's_add_u32 s53, s96, {WS_OB}')
a(f'v_mov_b32 v216, v{OB+4}')
a(f'v_mov_b32 v217, v{OB+12}')
a('v_permlane32_swap_b32 v216, v217')
a('v_mov_b32 v216, v217')
a('v_permlane16_swap_b32 v217, v216')
a('v_add_f32 v216, s91, v216')
a('v_rcp_f32 v216, v216')
a('v_mov_b32 v217, v216')
a('v_permlane32_swap_b32 v216, v217')
for t in range(2):
    o = OB + 8 * t
    a(f'v_mul_f32 v{218+2*t}, v{216+t}, v{GV+2+t}')
    for r in range(0, 8, 2): a(f'v_pk_mul_f32 {vr(o+r,2)}, {vr(o+r,2)}, {vr(218+2*t,2)} op_sel_hi:[1,0]')
    cvt4(224 + 4 * t, o, o + 4)
    zero_pad(224 + 4 * t)
    sanitize(224 + 4 * t)
    a(f'buffer_store_dwordx4 {vr(224+4*t,4)}, v11, {R(SWS)}, s53 offen sc1')
    a('s_add_u32 s53, s53, 16384')
stamp(5)
a('s_branch L_END')

a.label('L_KV')
WP = 240
KXP = 24
F0, F1, ACC = 24, 68, 112
def kv_setup():
    phi_loads(224)
    common_consts(L_XK, 11)
    a('v_cmp_eq_u32 s[88:89], 12, v1')
    a(f's_lshl_b32 s36, s{S_HP}, 4')
    a(f's_add_u32 s36, s36, s{S_RB}')
    a('s_lshl_b32 s36, s36, 3')
    a(f's_add_u32 s36, s36, s{S_WAVE}')
    a('s_lshl_b32 s36, s36, 10')
    a(f's_add_u32 s36, s36, {WS_KVP}')
    a(f's_lshl_b32 s37, s{S_HP}, 3')
    a(f's_add_u32 s37, s37, s{S_WAVE}')
    a('s_lshl_b32 s37, s37, 8')
    a(f's_lshl_b32 s54, s{S_RB}, 2')
    a('s_add_u32 s37, s37, s54')
    a(f's_add_u32 s37, s37, {WS_FL}')
    a(f'v_lshrrev_b32 v248, 3, v0')
    a(f'v_and_b32 v{VT2}, 6, v248')
    a(f'v_mul_u32_u24 v248, 896, v248')
    a(f'v_xor_b32 v{VT2}, v0, v{VT2}')
    a(f'v_and_b32 v{VT2}, 7, v{VT2}')
    a(f'v_lshl_add_u32 v248, v{VT2}, 4, v248')
    a(f's_mul_i32 s53, s{S_WAVE}, {7*7168}')
    a(f's_lshl_b32 s54, s{S_NB}, 7')
    a('s_add_u32 s53, s53, s54')
    a('v_add_u32 v248, s53, v248')
    a(f's_mul_i32 s44, s{S_WAVE}, 7168')
    a('s_and_b32 s4, s2, 7')
    a(f's_and_b32 s53, s{S_WORK}, 1')
    a('s_lshl_b32 s53, s53, 1')
    a(f's_add_u32 s53, s53, s{S_J}')
    a('s_lshr_b32 s5, s53, 1')
    a('s_and_b32 s6, s53, 1')
    a('s_lshl_b32 s38, s6, 2')
    a('s_add_u32 s38, s38, s5')
    a('s_lshl_b32 s39, s4, 17')
    a('s_lshl_b32 s40, s38, 10')
    a('s_add_u32 s39, s39, s40')
    a(f's_add_u32 s39, s39, {WS_KVP}')
    a('s_lshl_b32 s40, s4, 3')
    a('s_add_u32 s38, s38, s40')
    a('s_lshl_b32 s38, s38, 8')
    a(f's_add_u32 s38, s38, {WS_FL}')
    a('s_lshl_b32 s40, s4, 1')
    a('s_add_u32 s40, s40, s5')
    a('s_lshl_b32 s40, s40, 12')
    a('s_lshl_b32 s41, s6, 11')
    a('s_add_u32 s40, s40, s41')
    a(f's_add_u32 s40, s40, {WS_KVR}')
    a('s_lshl_b32 s41, s4, 8')
    a('s_lshl_b32 s53, s53, 2')
    a('s_add_u32 s41, s41, s53')
    a(f's_add_u32 s41, s41, {WS_FL + 208*256}')
def kv_late():
    a('s_waitcnt vmcnt(0)')
    wp_pack(224, WP)
    a(f's_lshr_b32 s53, s{S_WAVE}, 1')
    a(f's_lshl_b32 s54, s{S_J}, 13')
    a(f's_add_u32 s54, s54, {L_VF}')
    a('v_add_u32 v21, s54, v11')
    a(f's_lshl_b32 s62, s{S_PI}, 11')
    a('v_add_u32 v22, s62, v21')
    a('v_lshrrev_b32 v6, 1, v1')
    a('v_and_b32 v6, 3, v6')
    a('v_lshlrev_b32 v6, 5, v6')
    a('v_lshl_add_u32 v6, v2, 3, v6')
    a('v_lshl_add_u32 v16, v1, 7, v6')
    a(f's_lshl_b32 s54, s{S_J}, 14')
    a(f's_add_u32 s54, s54, {L_PT}')
    a('s_lshl_b32 s62, s53, 12')
    a('s_add_u32 s62, s62, s54')
    a('v_add_u32 v16, s62, v16')
    for Ft in range(1, 4):
        a(f'v_xor_b32 v{16+Ft}, {Ft*32}, v16')
    a('v_lshrrev_b32 v6, 2, v1')
    a('v_lshl_add_u32 v6, v2, 2, v6')
    a('v_lshrrev_b32 v7, 1, v6')
    a('v_and_b32 v7, 3, v7')
    a('v_xor_b32 v7, s53, v7')
    a('v_lshlrev_b32 v7, 5, v7')
    a('v_lshl_add_u32 v20, v6, 7, v7')
    a('v_and_b32 v7, 3, v0')
    a('v_lshl_add_u32 v20, v7, 3, v20')
    a('v_add_u32 v20, s54, v20')
a(f's_cmp_eq_u32 s{S_HH}, 0')
a('s_cbranch_scc1 L_KV_COMP')
def kvl_post():
    kv_setup()
    nonce_prefetch()
def kvl_mid():
    kv_late()
    nonce_resolve()
    set_flag(37)
    a('s_sub_u32 s53, s37, 1024')
    set_flag(53)
    a(f's_cmp_lt_u32 s{S_WORK}, 14')
    a('s_cbranch_scc1 L_NKRF')
    a(f's_cmp_ge_u32 s{S_WAVE}, 6')
    a('s_cbranch_scc1 L_NKRF')
    set_flag(41)
    a.label('L_NKRF')
loader_loop('K', False, SLOT_K, [(SWB, 1), (SWB, 2)], True, kvl_post, 17, kvl_mid)
a('s_barrier')
a(f'ds_read_b128 {vr(KXP,4)}, v251')
a(f'ds_read_b128 {vr(KXP+4,4)}, v251 offset:1024')
a('s_waitcnt lgkmcnt(0)')
a('s_branch L_KV_EPI')
a.label('L_KV_COMP')
a('s_cmp_lg_u32 s2, 255')
a('s_cbranch_scc1 L_NOSCAN')
a(f's_cmp_lg_u32 s{S_WAVE}, 3')
a('s_cbranch_scc1 L_NOSCAN')
a('v_lshrrev_b32 v3, 2, v0')
a('v_lshlrev_b32 v3, 8, v3')
a('v_and_b32 v4, 3, v0')
a('v_lshl_add_u32 v3, v4, 4, v3')
a(f's_mov_b32 s53, {WS_FL}')
NS = NGRP // 16
for n in range(NS):
    a(f'buffer_load_dwordx4 {vr(100+4*n,4)}, v3, {R(SWS)}, s53 offen sc1')
    a('s_add_u32 s53, s53, 4096')
a('s_memrealtime s[88:89]')
a('s_waitcnt vmcnt(0) lgkmcnt(0)')
a('s_or_b32 s88, s88, 1')
a.label('L_SCAN')
a('s_mov_b64 s[90:91], 0')
for n in range(4 * NS):
    a(f'v_cmp_eq_u32 vcc, s88, v{100+n}')
    a('s_or_b64 s[90:91], s[90:91], vcc')
a('s_cmp_eq_u64 s[90:91], 0')
a('s_cbranch_scc1 L_SCANOK')
a('s_add_u32 s88, s88, 2')
a('s_branch L_SCAN')
a.label('L_SCANOK')
a('v_mov_b32 v3, 0')
a('v_mov_b32 v5, s88')
a('s_mov_b64 exec, 1')
a(f'buffer_store_dword v5, v3, {R(SDBG)}, 0 offen sc1')
a('s_mov_b64 exec, -1')
a.label('L_NOSCAN')
kv_setup()
frag_addr_setup(16384, 8192)
kv_late()
a(f's_lshl_b32 s53, s{S_ROT}, 7')
a(f's_add_u32 s53, s53, {L_GATE}')
a('v_lshlrev_b32 v3, 4, v2')
a('v_add_u32 v3, s53, v3')
a(f's_mov_b32 s71, s{S_ROT}')
for r in range(ACC, ACC + 80): a(f'v_mov_b32 v{r}, 0')
def readsK(F, ks):
    L = [f'ds_read_b128 {vr(F+4*t,4)}, v{4+ks} offset:{t*2048}' for t in range(4)]
    for b in range(2):
        for dt in range(2):
            for h2 in range(2):
                L.append(f'ds_read_b64_tr_b16 {vr(F+20+(b*2+dt)*4+h2*2,2)}, v{8+dt} offset:{b*8192+(32*ks+4*h2)*128}')
    L.append(f'ds_read_b128 {vr(F+16,4)}, v3 offset:{ks*64}')
    return L
def mfmasK(F):
    L = []
    X = lambda t: vr(F + 4 * t, 4)
    W = lambda b, dt: vr(F + 20 + (b * 2 + dt) * 4, 4)
    for t in (2, 3, 0, 1):
        for dt in range(2):
            c = vr(ACC + (t * 2 + dt) * 4, 4); L.append(f'v_mfma_f32_16x16x32_bf16 {c}, {W(0,dt)}, {X(t)}, {c}')
    for t in range(4):
        for dt in range(2):
            c = vr(ACC + 32 + (t * 2 + dt) * 4, 4); L.append(f'v_mfma_f32_16x16x32_bf16 {c}, {X(t)}, {W(1,dt)}, {c}')
    for t in range(4):
        c = vr(ACC + 64 + t * 4, 4); L.append(f'v_mfma_f32_16x16x32_bf16 {c}, {vr(F+16,4)}, {X(t)}, {c}')
    return L
def interleave(M, Rr):
    for n, m in enumerate(M):
        a(m)
        if n < len(Rr): a(Rr[n])
a(f's_mov_b32 s68, {SLOT_K}')
a(f's_mov_b32 s69, {-2*SLOT_K & 0xffffffff}')
a('s_movk_i32 s60, 128')
a('s_movk_i32 s61, -768')
a('s_mov_b32 s67, 0')
a('s_mov_b32 s70, 0')
a('s_barrier')
for r in readsK(F0, 0): a(r)
a.label('L_CP_K')
a('s_waitcnt lgkmcnt(0)')
interleave(mfmasK(F0), readsK(F1, 1))
a('s_add_u32 s70, s70, 1')
a('s_cmp_eq_u32 s70, 3')
a('s_cselect_b32 s53, s69, s68')
a('s_cselect_b32 s70, 0, s70')
a('s_waitcnt lgkmcnt(0)')
for r in (4, 5, 8, 9): a(f'v_add_u32 v{r}, s53, v{r}')
a('s_add_u32 s71, s71, 1')
a('s_cmp_eq_u32 s71, 7')
a('s_cselect_b32 s53, s61, s60')
a('s_cselect_b32 s71, 0, s71')
a('v_add_u32 v3, s53, v3')
a('s_cmp_lg_u32 s67, 5')
a('s_cbranch_scc1 L_NW_K')
a('s_waitcnt vmcnt(0)')
a.label('L_NW_K', pad=False)
a('s_barrier')
interleave(mfmasK(F1), readsK(F0, 0))
a('s_cmp_lg_u32 s67, 1')
a('s_cbranch_scc1 L_NC_K')
for r in range(4): a(f'v_mov_b32 v{224+r}, -1')
a('s_add_u32 s53, s36, 4096')
a(f'buffer_store_dwordx4 v[224:227], v11, {R(SWS)}, s36 offen sc1')
a(f'buffer_store_dwordx4 v[224:227], v11, {R(SWS)}, s53 offen sc1')
a(f's_cmp_lt_u32 s{S_WORK}, 14')
a('s_cbranch_scc1 L_NC_K')
a(f's_cmp_ge_u32 s{S_WAVE}, 2')
a('s_cbranch_scc1 L_NC_K')
a(f'buffer_store_dwordx4 v[224:227], v11, {R(SWS)}, s40 offen sc1')
a(f'buffer_store_dwordx4 v[224:227], v11, {R(SWS)}, s40 offen offset:1024 sc1')
a.label('L_NC_K', pad=False)
a('s_add_u32 s67, s67, 1')
a('s_cmp_lt_u32 s67, 7')
a('s_cbranch_scc1 L_CP_K')
a('s_waitcnt lgkmcnt(0)')
stamp(1)
nonce_prefetch()
for t in range(2):
    cvt4(44 + 4 * t, ACC + (2 + t) * 8, ACC + (2 + t) * 8 + 4)
    a(f'ds_write_b128 v251, {vr(44+4*t,4)} offset:{t*1024}')
for t in range(2):
    cvt4(KXP + 4 * t, ACC + t * 8, ACC + t * 8 + 4)
a('s_waitcnt lgkmcnt(0)')
a('s_barrier')
for hh in range(2):
    for dt in range(2):
        d = 44 + (hh * 2 + dt) * 4
        cvt4(d, ACC + 32 + ((2 * hh) * 2 + dt) * 4, ACC + 32 + ((2 * hh + 1) * 2 + dt) * 4)
        if dt:
            for r in range(4):
                a(f'v_cndmask_b32_e64 v{d+r}, v{d+r}, v{ONES}, s[88:89]')
        a(f'ds_write_b128 v22, {vr(d,4)} offset:{hh*4096 + dt*1024}')
a(f's_or_b32 s53, s{S_HP}, s{S_J}')
a('s_cmp_lg_u32 s53, 0')
a('s_cbranch_scc1 L_KV_EPI')
a(f's_lshl_b32 s53, s{S_RB}, 1')
a(f's_add_u32 s53, s53, s{S_PI}')
a('s_lshl_b32 s53, s53, 10')
a(f's_add_u32 s53, s53, {WS_G}')
a('v_lshlrev_b32 v3, 2, v0')
for t in range(4):
    gs = ACC + 64 + 4 * t
    a(f'v_mul_f32 v{gs}, s90, v{gs}')
    a(f'v_exp_f32 v{gs}, -v{gs}')
    a(f'v_add_f32 v{gs}, 1.0, v{gs}')
    a(f'v_rcp_f32 v{gs}, v{gs}')
    a(f'buffer_store_dword v{gs}, v3, {R(SWS)}, s53 offen offset:{t*256} sc1')
a.label('L_KV_EPI')
KPK, KST, KSUM, KE, KEP = 64, 80, 88, 104, 224
def ptwrite(q):
    sg, t = q >> 1, q & 1
    for ft in range(2):
        a(f'ds_write_b64 v{16+sg*2+ft}, {vr(KEP+q*4+2*ft,2)} offset:{t*2048}')
hedgehog(KXP, WP, KPK, KST, KSUM, KE, KEP, {3: ptwrite})
stamp(10)
a('s_waitcnt lgkmcnt(0)')
a('s_barrier')
ET, VG, KV = 136, 152, 184
for u in range(4):
    for hh in range(2):
        a(f'ds_read_b64_tr_b16 {vr(ET+4*u+2*hh,2)}, v20 offset:{(u*32+hh*16)*128}')
    for dt in range(2):
        a(f'ds_read_b128 {vr(VG+(u*2+dt)*4,4)}, v21 offset:{(u*2+dt)*1024}')
for u in range(4):
    a(f's_waitcnt lgkmcnt({4*(3-u)})')
    for dt in range(2):
        c = vr(KV + 4 * dt, 4)
        a(f'v_mfma_f32_16x16x32_bf16 {c}, {vr(ET+4*u,4)}, {vr(VG+(u*2+dt)*4,4)}, {c if u else 0}')
cvt4(192, KV, KV + 4)
sanitize(192)
a(f'buffer_store_dwordx4 v[192:195], v11, {R(SWS)}, s36 offen sc1')
stamp(12)
AC2, OF, WB = 24, 56, 120
a('v_lshrrev_b32 v3, 2, v1')
a('v_and_b32 v4, 3, v0')
a('v_lshl_add_u32 v5, v2, 2, v3')
a('v_lshlrev_b32 v5, 7, v5')
a('v_lshl_add_u32 v5, v4, 3, v5')
a(f's_mul_i32 s53, s{S_HH}, 28672')
a(f's_add_u32 s53, s53, {L_WO + 57344}')
a('v_add_u32 v5, s53, v5')
a('v_lshrrev_b32 v6, 1, v3')
a('v_lshl_add_u32 v6, v2, 1, v6')
for par in range(2):
    a(f'v_add_u32 v8, {2*par}, v6')
    a('v_and_b32 v8, 3, v8')
    for T in range(4):
        a(f'v_xor_b32 v9, {T}, v8')
        a(f'v_lshl_add_u32 v{16+par*4+T}, v9, 5, v5')
a(f's_and_b32 s54, s{S_WAVE}, 3')
a(f's_lshl_b32 s63, s{S_RB2}, 3')
a('s_add_u32 s63, s63, s54')
a('s_lshl_b32 s64, s63, 14')
a(f's_lshl_b32 s53, s{S_HH}, 13')
a('s_add_u32 s64, s64, s53')
a('s_lshr_b32 s65, s63, 1')
a('s_lshl_b32 s65, s65, 8')
a(f's_add_u32 s65, s65, {WS_FL + 64*256}')
a(f's_lshl_b32 s66, s{S_HH}, 3')
a('v_and_b32 v6, 1, v2')
a('v_lshlrev_b32 v6, 9, v6')
a('v_lshl_add_u32 v6, v1, 2, v6')
a('s_waitcnt vmcnt(1)')
nonce_resolve()
a(f's_or_b32 s53, s{S_HP}, s{S_J}')
a(f's_or_b32 s53, s53, s{S_HH}')
a('s_cmp_lg_u32 s53, 0')
a('s_cbranch_scc1 L_NOGF')
a(f's_lshl_b32 s53, s{S_RB}, 8')
a(f's_lshl_b32 s5, s{S_PI}, 2')
a('s_add_u32 s53, s53, s5')
a(f's_add_u32 s53, s53, {WS_FL + 192*256}')
set_flag(53)
a.label('L_NOGF')
stamp(2)
a(f's_cmp_lt_u32 s{S_WORK}, 14')
a('s_cbranch_scc1 L_NORED')
a(f's_cmp_ge_u32 s{S_WAVE}, 2')
a('s_cbranch_scc1 L_END')
PL, SEL, RS = 56, 184, 192
a('v_lshrrev_b32 v4, 2, v1')
a('v_cmp_eq_u32 vcc, v4, v2')
a('v_and_b32 v4, 3, v1')
a('v_and_b32 v5, 1, v4')
a('v_lshlrev_b32 v5, 4, v5')
a('v_mov_b32 v8, 0x3f80')
a('v_lshlrev_b32 v8, v5, v8')
a('v_cndmask_b32 v8, 0, v8, vcc')
a('v_cmp_gt_u32 vcc, 2, v4')
a(f'v_cndmask_b32 v{SEL}, 0, v8, vcc')
a(f'v_cndmask_b32 v{SEL+1}, v8, 0, vcc')
for r in (2, 3, 4, 5): a(f'v_mov_b32 v{SEL+r}, 0')
a(f'v_mov_b32 v{SEL+6}, v{SEL}')
a(f'v_mov_b32 v{SEL+7}, v{SEL+1}')
for r in range(16): a(f'v_mov_b32 v{RS+r}, 0')
def rextract():
    a('s_lshr_b32 s4, vcc_lo, 16')
    a('s_and_b32 s4, s4, vcc_lo')
def rload(p):
    a(f's_add_u32 s53, s39, {p*8192}')
    a(f'buffer_load_dwordx4 {vr(PL+8*p,4)}, v11, {R(SWS)}, s53 offen sc1')
    a(f'buffer_load_dwordx4 {vr(PL+8*p+4,4)}, v11, {R(SWS)}, s53 offen offset:2048 sc1')
def racc(p):
    for f in range(2):
        for dt in range(2):
            c = vr(RS + (dt * 2 + f) * 4, 4)
            a(f'v_mfma_f32_16x16x32_bf16 {c}, {vr(SEL+4*dt,4)}, {vr(PL+8*p+4*f,4)}, {c}')
gather(6, 38, rextract, rload, racc, lambda p: PL + 8 * p, nld=2)
for dt in range(2):
    cvt4(208 + 4 * dt, RS + dt * 8, RS + dt * 8 + 4)
    sanitize(208 + 4 * dt)
    a(f'buffer_store_dwordx4 {vr(208+4*dt,4)}, v11, {R(SWS)}, s40 offen offset:{dt*1024} sc1')
stamp(4)
a('s_branch L_END')
a.label('L_NORED')
for r in range(32): a(f'v_mov_b32 v{AC2+r}, 0')
for br in (0, 1):
    for n in range(7):
        a(f's_add_u32 m0, s44, {L_WO + (1-br)*57344 + n*1024}')
        a(f's_mov_b32 s5, {n*7168}')
        a(f'buffer_load_dwordx4 v248, {R(SWOA if br == 0 else SWOB)}, s5 offen lds')
a('s_waitcnt vmcnt(0)')
a('s_barrier')
def wfrags():
    for h in range(8):
        for T in range(4):
            for sec in range(2):
                a(f'ds_read_b64_tr_b16 {vr(WB+(h*4+T)*4+2*sec,2)}, v{16+(h&1)*4+T} offset:{h*3584 + sec*2048}')
def oextract():
    a('s_lshr_b32 s4, vcc_lo, s66')
    a('s_lshr_b32 s5, s4, 8')
    a('s_and_b32 s4, s4, 0xff')
    a('s_and_b32 s5, s5, 0xff00')
    a('s_or_b32 s4, s4, s5')
    a('s_waitcnt lgkmcnt(0)')
def oload(p):
    a(f's_add_u32 s53, s64, {(p>>3)*65536 + (p&7)*1024}')
    a(f'buffer_load_dwordx4 {vr(OF+4*p,4)}, v11, {R(SWS)}, s53 offen sc1')
def oacc(p):
    for T in range(4):
        c = vr(AC2 + (p >> 3) * 16 + 4 * T, 4)
        a(f'v_mfma_f32_16x16x32_bf16 {c}, {vr(WB+((p&7)*4+T)*4,4)}, {vr(OF+4*p,4)}, {c}')
a('s_mov_b32 s67, 0')
a.label('L_P2_HALF')
wfrags()
gather(6, 65, oextract, oload, oacc, lambda p: OF + 4 * p)
a('s_cmp_eq_u32 s67, 1')
a('s_cbranch_scc1 L_P2_FIN')
stamp(7)
a('s_mov_b32 s67, 1')
for r in range(16, 24): a(f'v_subrev_u32 v{r}, 57344, v{r}')
a('s_add_u32 s65, s65, 16384')
a(f's_add_u32 s64, s64, {WS_OB}')
a('s_lshl_b32 s53, s54, 13')
a(f's_add_u32 s53, s53, {L_RED}')
a('v_add_u32 v3, s53, v11')
a(f's_lshl_b32 s62, s{S_RB2}, 7')
a('s_lshl_b32 s53, s54, 5')
a('s_add_u32 s62, s62, s53')
a(f's_add_u32 s62, s62, s{S_HH}')
a('s_mul_i32 s62, s62, 896')
a(f's_lshl_b32 s53, s{S_NB}, 7')
a('s_add_u32 s62, s62, s53')
a('v_mul_u32_u24 v5, 1792, v1')
a('v_lshl_add_u32 v5, v2, 3, v5')
a('s_branch L_P2_HALF')
a.label('L_P2_FIN')
stamp(8)
a(f's_cmp_eq_u32 s{S_HH}, 0')
a('s_cbranch_scc1 L_P2_K0')
for T in range(4): a(f'ds_write_b128 v3, {vr(AC2+4*T,4)} offset:{T*1024}')
a('s_waitcnt lgkmcnt(0)')
a('s_barrier')
for T in range(4): a(f'ds_read_b128 {vr(OF+4*T,4)}, v3 offset:{4096+T*1024}')
for r in range(16): a(f'v_mov_b32 v{AC2+r}, v{AC2+16+r}')
a('s_branch L_P2_ST')
a.label('L_P2_K0')
for T in range(4): a(f'ds_write_b128 v3, {vr(AC2+16+4*T,4)} offset:{4096+T*1024}')
a('s_waitcnt lgkmcnt(0)')
a('s_barrier')
for T in range(4): a(f'ds_read_b128 {vr(OF+4*T,4)}, v3 offset:{T*1024}')
a.label('L_P2_ST')
for T in range(4):
    a(f's_waitcnt lgkmcnt({3-T})')
    for r in range(0, 4, 2): a(f'v_pk_add_f32 {vr(AC2+4*T+r,2)}, {vr(AC2+4*T+r,2)}, {vr(OF+4*T+r,2)}')
    a(f'v_cvt_pk_bf16_f32 v{OF+16+2*T}, v{AC2+4*T}, v{AC2+4*T+1}')
    a(f'v_cvt_pk_bf16_f32 v{OF+17+2*T}, v{AC2+4*T+2}, v{AC2+4*T+3}')
    a(f'buffer_store_dwordx2 {vr(OF+16+2*T,2)}, v5, {R(SOUT)}, s62 offen offset:{32*T}')
a.label('L_END')
if STAMP:
    a('s_waitcnt vmcnt(0)')
    stamp(9)
    a('s_lshl_b32 s3, s2, 3')
    a(f's_add_u32 s3, s3, s{S_WAVE}')
    a('s_lshl_b32 s3, s3, 8')
    a(f's_add_u32 s3, s3, {WS_ST}')
    a('v_lshlrev_b32 v3, 2, v0')
    a(f'buffer_store_dword v250, v3, {R(SWS)}, s3 offen')
    a('s_waitcnt vmcnt(0)')
a.label('L_EXIT')
a('s_endpgm')

a.raw('.section .rodata,"a"')
a.raw('.p2align 6')
a.raw(f'.amdhsa_kernel {KN}')
a.raw('  .amdhsa_next_free_vgpr 256')
a.raw('  .amdhsa_next_free_sgpr 102')
a.raw('  .amdhsa_accum_offset 256')
a.raw('  .amdhsa_group_segment_fixed_size 0')
a.raw('  .amdhsa_kernarg_size 88')
a.raw('  .amdhsa_user_sgpr_count 2')
a.raw('  .amdhsa_user_sgpr_kernarg_segment_ptr 1')
a.raw('  .amdhsa_system_sgpr_workgroup_id_x 1')
a.raw('.end_amdhsa_kernel')
sys.stdout.write(a.text())
```

```python
import sys, math, os, struct
from asmlib import *
STAMP = os.environ.get('STAMP') == '1'
SPIN = int(os.environ.get('SPIN', '200000'))

KN = 'gated_mix__sliding_local_dilated__linear_kernel_hedgehog__prompt_kernel'
WS_OA = 0
WS_OB = 2 << 20
WS_G = 4 << 20
WS_KVR = (4 << 20) + (1 << 19)
WS_KVP = 5 << 20
WS_FL = 6 << 20
WS_ST = 7 << 20
WS_SIZE = 8 << 20
NGRP = 224
LOG2E = 1.4426950408889634
def f2u(x): return struct.unpack('<I', struct.pack('<f', x))[0]

SLOT_Q = 18432 + 32768
SLOT_K = 32768
L_GATE = 98304
L_WO = 0
L_XK = 100352
L_PT = 114688
L_VF = 147456
L_RED = 131072
L_XQ = 0
LDS = 163840

a = Asm()
a.raw(f'; @launch grid=(256,1,1) block=(512,1,1) lds={LDS}')
a.raw('.amdgcn_target "amdgcn-amd-amdhsa--gfx950"')
a.raw('.text')
a.raw(f'.globl {KN}')
a.raw('.p2align 8')
a.raw(f'.type {KN},@function')
a.label(KN, pad=False)

SX, SWA, SWS, SPHI, SGATE, SDBG, SWOA, SWOB, SOUT, SWB = 8, 12, 16, 20, 24, 28, 72, 76, 80, 92
S_RB, S_HP, S_BR, S_WAVE, S_ROT, S_NONCE = 32, 33, 34, 35, 48, 49
S_J, S_PI, S_HH = 50, 51, 52
S_RB2, S_NB, S_WORK = 46, 47, 45
M48 = 84
VT0, VT1, VNON, VT2 = 252, 253, 254, 255

def srd(dst, lo, size):
    a(f's_mov_b32 s{dst}, s{lo}')
    a(f's_and_b32 s{dst+1}, s{lo+1}, 0xffff')
    a(f's_mov_b32 s{dst+2}, {size}')
    a(f's_mov_b32 s{dst+3}, 0x00020000')
def R(s): return f's[{s}:{s+3}]'
def stamp(n):
    if STAMP:
        a('s_memrealtime s[98:99]')
        a('s_waitcnt lgkmcnt(0)')
        a(f'v_writelane_b32 v250, s98, {n}')

a('s_cmp_ge_u32 s2, 256')
a('s_cbranch_scc1 L_EXIT')
a('s_load_dwordx8 s[36:43], s[0:1], 0')
a('s_load_dwordx8 s[56:63], s[0:1], 32')
a('s_load_dwordx4 s[64:67], s[0:1], 64')
a('s_load_dwordx2 s[44:45], s[0:1], 80')
if STAMP:
    a('v_mov_b32 v250, 0')
    a('s_memrealtime s[98:99]')
a('v_lshrrev_b32 v1, 6, v0')
a('v_and_b32 v0, 63, v0')
a(f'v_readfirstlane_b32 s{S_WAVE}, v1')
a('s_and_b32 s3, s2, 7')
a('s_lshr_b32 s7, s2, 3')
a('s_and_b32 s7, s7, 15')
a(f's_lshr_b32 s{S_BR}, s2, 7')
a('s_and_b32 s5, s3, 3')
a('s_lshl_b32 s5, s5, 2')
a('s_and_b32 s6, s7, 3')
a(f's_add_u32 s{S_RB}, s5, s6')
a('s_lshr_b32 s5, s3, 2')
a('s_lshl_b32 s5, s5, 2')
a('s_lshr_b32 s6, s7, 2')
a(f's_add_u32 s{S_HP}, s5, s6')
a(f's_mul_i32 s5, s{S_HP}, 3')
a(f's_add_u32 s5, s5, s{S_RB}')
a(f's_mul_i32 s6, s{S_BR}, 5')
a('s_add_u32 s5, s5, s6')
a('s_mul_i32 s6, s5, 37')
a('s_lshr_b32 s6, s6, 8')
a('s_mul_i32 s6, s6, 7')
a(f's_sub_u32 s{S_ROT}, s5, s6')
a('s_mul_i32 s5, s7, 37')
a('s_lshr_b32 s5, s5, 8')
a('s_mul_i32 s6, s5, 7')
a(f's_sub_u32 s{S_NB}, s7, s6')
a('s_lshl_b32 s3, s3, 1')
a(f's_add_u32 s{S_RB2}, s3, s5')
a(f's_and_b32 s{S_J}, s{S_WAVE}, 1')
a(f's_lshr_b32 s{S_PI}, s{S_WAVE}, 1')
a(f's_and_b32 s{S_PI}, s{S_PI}, 1')
a(f's_lshr_b32 s{S_HH}, s{S_WAVE}, 2')
a('v_lshrrev_b32 v3, 3, v0')
a('v_and_b32 v4, 7, v0')
a('v_lshrrev_b32 v5, 1, v3')
a('v_xor_b32 v16, v4, v5')
a('v_lshlrev_b32 v16, 4, v16')
a('v_mul_u32_u24 v6, 1792, v3')
a('v_xor_b32 v17, 64, v16')
a('v_add_u32 v16, v16, v6')
a('v_add_u32 v17, v17, v6')
a('v_add_u32 v17, 14336, v17')
a('v_add_u32 v18, 28672, v16')
a('v_add_u32 v19, 28672, v17')
a('v_and_b32 v7, 1, v5')
a('v_lshlrev_b32 v7, 1, v7')
a('v_xor_b32 v20, v4, v7')
a('v_xor_b32 v21, 4, v20')
a('v_min_u32 v20, 6, v20')
a('v_min_u32 v21, 6, v21')
a('v_lshlrev_b32 v20, 4, v20')
a('v_lshlrev_b32 v21, 4, v21')
a(f's_and_b32 s54, s{S_WAVE}, 3')
a('s_lshl_b32 s53, s54, 4')
a('v_add_u32 v7, s53, v3')
a('v_mul_u32_u24 v7, 2688, v7')
a('v_add_u32 v20, v20, v7')
a('v_add_u32 v21, v21, v7')
a('v_add_u32 v21, 21504, v21')
a(f's_lshl_b32 s53, s{S_J}, 1')
a('s_add_u32 s53, s53, 4')
a('v_add_u32 v22, s53, v5')
a('v_xor_b32 v22, v4, v22')
a('v_lshlrev_b32 v22, 4, v22')
a('v_add_u32 v22, v22, v6')
a(f's_lshl_b32 s53, s{S_J}, 2')
a('s_add_u32 s53, s53, 8')
a('s_mul_i32 s53, s53, 1792')
a('v_add_u32 v22, s53, v22')
a(f's_lshl_b32 s55, s{S_RB}, 7')
a('s_max_u32 s86, s55, 32')
a('s_sub_u32 s86, s86, 32')
a(f's_add_u32 s86, s86, s{S_PI}')
a('s_mul_i32 s86, s86, 896')
a(f's_lshl_b32 s53, s{S_J}, 6')
a('s_add_u32 s55, s55, s53')
a(f's_add_u32 s55, s55, s{S_PI}')
a('s_mul_i32 s55, s55, 896')
a(f's_mul_i32 s87, s{S_HP}, 112')
a('v_and_b32 v1, 15, v0')
a('v_lshrrev_b32 v2, 4, v0')
a('v_lshlrev_b32 v11, 4, v0')
a('s_waitcnt lgkmcnt(0)')
if STAMP: a('v_writelane_b32 v250, s98, 0')
srd(SX, 36, 2048 * 896)
srd(SWA, 38, 448 * 2688)
srd(SWB, 56, 448 * 2688)
srd(SWS, 44, WS_SIZE)
srd(SPHI, 58, 16 * 28 * 28 * 2)
srd(SGATE, 62, 896)
srd(SDBG, 66, 256)
srd(SWOA, 40, 448 * 896)
srd(SWOB, 60, 448 * 896)
srd(SOUT, 64, 2048 * 896)
a(f's_mov_b32 s{S_WORK}, s7')
a(f's_mov_b32 s60, s{S_ROT}')
a(f's_cmp_eq_u32 s{S_BR}, 1')
a('s_cbranch_scc1 L_KV')

uid = [0]
ONES = 12
def common_consts(xbase, xshift):
    a(f'v_cmp_le_u32 s[{M48}:{M48+1}], 48, v0')
    a('v_mov_b32 v10, 0xff800000')
    for r in range(4): a(f'v_mov_b32 v{ONES+r}, 0x3f803f80')
    a(f's_and_b32 s53, s{S_WAVE}, 3')
    a(f's_lshl_b32 s53, s53, {xshift}')
    if xbase: a(f's_add_u32 s53, s53, {xbase}')
    a('v_add_u32 v251, s53, v11')
    a(f's_mov_b32 s90, {f2u(LOG2E):#x}')
def phi_loads(dst):
    a(f's_lshl_b32 s53, s{S_HP}, 1')
    a(f's_add_u32 s53, s53, s{S_J}')
    a('s_mul_i32 s53, s53, 1568')
    a('v_mul_u32_u24 v5, 224, v2')
    a('v_lshl_add_u32 v3, v1, 1, v5')
    a('v_add_u32 v6, 16, v1')
    a('v_min_u32 v6, 27, v6')
    a('v_lshl_add_u32 v6, v6, 1, v5')
    for ft, vo in ((0, 3), (1, 6)):
        for j in range(8):
            d = j if j < 4 else 16 + (j - 4)
            a(f'buffer_load_ushort v{dst+ft*8+j}, v{vo}, {R(SPHI)}, s53 offen offset:{d*56}')
def wp_pack(src, WP):
    for ft in range(2):
        for jj in range(4):
            a(f'v_lshl_or_b32 v{WP+ft*4+jj}, v{src+ft*8+2*jj+1}, 16, v{src+ft*8+2*jj}')
        zero_pad(WP + ft * 4)
def frag_addr_setup(WOFF, XP):
    a('v_lshrrev_b32 v3, 2, v1')
    a('v_and_b32 v16, 3, v0')
    a('v_lshl_add_u32 v17, v2, 3, v3')
    a('v_lshlrev_b32 v17, 7, v17')
    a('v_lshrrev_b32 v18, 1, v3')
    a('v_lshlrev_b32 v18, 1, v18')
    a('v_and_b32 v19, 1, v2')
    a('v_lshl_add_u32 v18, v19, 2, v18')
    a(f's_mul_i32 s53, s{S_J}, 56')
    a('v_lshlrev_b32 v19, 3, v16')
    a('v_add_u32 v19, s53, v19')
    for dt in range(2):
        if dt: a('v_add_u32 v19, 32, v19')
        a('v_lshrrev_b32 v20, 4, v19')
        a('v_xor_b32 v20, v20, v18')
        a('v_lshlrev_b32 v20, 4, v20')
        a('v_and_b32 v21, 8, v19')
        a(f'v_add3_u32 v{8+dt}, v17, v20, v21')
        a(f'v_add_u32 v{8+dt}, {WOFF}, v{8+dt}')
    a('v_lshrrev_b32 v3, 1, v1')
    a('v_xor_b32 v4, v2, v3')
    a('v_lshlrev_b32 v4, 4, v4')
    a('v_lshl_add_u32 v4, v1, 7, v4')
    a(f's_mul_i32 s53, s{S_PI}, {XP}')
    a('v_add_u32 v4, s53, v4')
    a('v_xor_b32 v5, 64, v4')

def loader_loop(tag, halo, SLOT, wlist, gate, post=None, nextra=0, mid=None):
    XP = 9216 if halo else 8192
    XH = 1024 if halo else 0
    WOFF = 18432 if halo else 16384
    nops = 4 + (1 if halo else 0) + 2 * len(wlist)
    a(f's_mul_i32 s58, s{S_PI}, {XP}')
    if halo:
        a(f's_lshl_b32 s71, s{S_J}, 9')
        a('s_add_u32 s71, s71, s58')
    a(f's_lshl_b32 s53, s{S_J}, 12')
    a('s_add_u32 s58, s58, s53')
    if XH: a(f's_add_u32 s58, s58, {XH}')
    a(f's_and_b32 s59, s{S_WAVE}, 3')
    a('s_lshl_b32 s59, s59, 11')
    a(f's_add_u32 s59, s59, {WOFF}')
    a(f's_mov_b32 s68, {SLOT}')
    a(f's_mov_b32 s69, {3*SLOT}')
    a('s_mov_b32 s61, 0')
    def issue():
        a('s_lshl_b32 s62, s60, 7')
        if halo: a('s_add_u32 s63, s62, s86')
        a('s_add_u32 s62, s62, s55')
        a('s_mul_i32 s64, s60, 172032')
        a('s_add_u32 s64, s64, s87')
        a('s_add_u32 s60, s60, 1')
        a('s_cmp_eq_u32 s60, 7')
        a('s_cselect_b32 s60, 0, s60')
        a('s_add_u32 s65, s58, s61')
        a('s_add_u32 s56, s59, s61')
        for n in range(4):
            a(f's_add_u32 m0, s65, {n*1024}')
            a(f'buffer_load_dwordx4 v{16+n}, {R(SX)}, s62 offen lds')
        if halo:
            a('s_add_u32 m0, s71, s61')
            a('s_mov_b32 exec_hi, 0')
            a(f'buffer_load_dwordx4 v22, {R(SX)}, s63 offen lds')
            a('s_mov_b32 exec_hi, -1')
        for n, (sw, b) in enumerate(wlist):
            if b: a(f's_add_u32 s66, s64, {b*896}')
            for h in range(2):
                a(f's_add_u32 m0, s56, {n*8192 + h*1024}')
                a(f'buffer_load_dwordx4 v{20+h}, {R(sw)}, s{66 if b else 64} offen lds')
        a('s_add_u32 s61, s61, s68')
        a('s_cmp_eq_u32 s61, s69')
        a('s_cselect_b32 s61, 0, s61')
    if gate:
        a(f's_cmp_lg_u32 s{S_WAVE}, 7')
        a(f's_cbranch_scc1 L_NOGATE_{tag}')
        a(f's_mov_b32 m0, {L_GATE}')
        a(f'buffer_load_dwordx4 v11, {R(SGATE)}, 0 offen lds')
        a.label(f'L_NOGATE_{tag}')
    issue()
    issue()
    a('s_mov_b32 s67, 0')
    a.label(f'L_LD_{tag}')
    a(f's_waitcnt vmcnt({nops})')
    a('s_barrier')
    issue()
    a('s_add_u32 s67, s67, 1')
    a('s_cmp_lt_u32 s67, 5')
    a(f's_cbranch_scc1 L_LD_{tag}')
    a(f's_waitcnt vmcnt({nops})')
    a('s_barrier')
    if post: post()
    a(f's_waitcnt vmcnt({nextra})')
    a('s_barrier')
    if mid: mid()
    a('s_barrier')

def xlane4(op, m):
    m0, m1, m2, m3 = m
    a(f'v_permlane32_swap_b32 v{m0}, v{m1}')
    a(f'v_permlane32_swap_b32 v{m2}, v{m3}')
    a(f'{op} v{m0}, v{m0}, v{m1}')
    a(f'{op} v{m2}, v{m2}, v{m3}')
    a(f'v_permlane16_swap_b32 v{m0}, v{m2}')
    a(f'{op} v{m0}, v{m0}, v{m2}')
    a(f'v_mov_b32 v{m2}, v{m0}')
    a(f'v_permlane16_swap_b32 v{m0}, v{m2}')
    a(f'v_mov_b32 v{m1}, v{m0}')
    a(f'v_mov_b32 v{m3}, v{m2}')
    a(f'v_permlane32_swap_b32 v{m0}, v{m1}')
    a(f'v_permlane32_swap_b32 v{m2}, v{m3}')
def xlane2(op, m0, m1):
    a(f'v_permlane32_swap_b32 v{m0}, v{m1}')
    a(f'{op} v{m0}, v{m0}, v{m1}')
    a(f'v_mov_b32 v{m1}, v{m0}')
    a(f'v_permlane16_swap_b32 v{m0}, v{m1}')
    a(f'{op} v{m0}, v{m0}, v{m1}')
    a(f'v_mov_b32 v{m1}, v{m0}')
    a(f'v_permlane32_swap_b32 v{m0}, v{m1}')
def cvt4(dst, s0, s1):
    a(f'v_cvt_pk_bf16_f32 v{dst}, v{s0}, v{s0+1}')
    a(f'v_cvt_pk_bf16_f32 v{dst+1}, v{s0+2}, v{s0+3}')
    a(f'v_cvt_pk_bf16_f32 v{dst+2}, v{s1}, v{s1+1}')
    a(f'v_cvt_pk_bf16_f32 v{dst+3}, v{s1+2}, v{s1+3}')
def zero_pad(r):
    a(f'v_cndmask_b32_e64 v{r+2}, v{r+2}, 0, s[{M48}:{M48+1}]')
    a(f'v_cndmask_b32_e64 v{r+3}, v{r+3}, 0, s[{M48}:{M48+1}]')

def nonce_prefetch():
    a(f'v_mov_b32 v{VT0}, 0')
    a(f'buffer_load_dword v{VNON}, v{VT0}, {R(SDBG)}, 0 offen sc1')
def nonce_resolve():
    uid[0] += 1; u = uid[0]
    a('s_mov_b32 s3, 0')
    a.label(f'L_GN_{u}')
    a(f'v_readfirstlane_b32 s{S_NONCE}, v{VNON}')
    a(f's_cmp_lg_u32 s{S_NONCE}, 0')
    a(f's_cbranch_scc1 L_GNX_{u}')
    a('s_sleep 2')
    nonce_prefetch()
    a('s_waitcnt vmcnt(0)')
    a('s_add_u32 s3, s3, 1')
    a(f's_cmp_lt_u32 s3, {SPIN}')
    a(f's_cbranch_scc1 L_GN_{u}')
    a.label(f'L_GNX_{u}')
def set_flag(off_sgpr):
    a(f'v_mov_b32 v{VT0}, 0')
    a(f'v_mov_b32 v{VT2}, s{S_NONCE}')
    a('s_mov_b64 exec, 1')
    a(f'buffer_store_dword v{VT2}, v{VT0}, {R(SWS)}, s{off_sgpr} offen sc1')
    a('s_mov_b64 exec, -1')
def poll_mask(vaddr, off_sgpr, mask_sgpr):
    uid[0] += 1; u = uid[0]
    a('s_mov_b32 s3, 0')
    a.label(f'L_PA_{u}')
    a('s_waitcnt vmcnt(0)')
    a(f'v_cmp_eq_u32 vcc, s{S_NONCE}, v{VT1}')
    a(f's_and_b32 s4, vcc_lo, s{mask_sgpr}')
    a(f's_cmp_eq_u32 s4, s{mask_sgpr}')
    a(f's_cbranch_scc1 L_PAX_{u}')
    a('s_sleep 1')
    a(f'buffer_load_dword v{VT1}, v{vaddr}, {R(SWS)}, s{off_sgpr} offen sc1')
    a('s_add_u32 s3, s3, 1')
    a(f's_cmp_lt_u32 s3, {SPIN}')
    a(f's_cbranch_scc1 L_PA_{u}')
    a.label(f'L_PAX_{u}')
def sanitize(r, n=4):
    for i in range(n): a(f'v_min_u32 v{r+i}, 0xfffffffe, v{r+i}')
def empty_test(reg, nregs):
    a(f'v_max3_u32 v{VT2}, v{reg}, v{reg+1}, v{reg+2}')
    r = 3
    while r + 1 < nregs:
        a(f'v_max3_u32 v{VT2}, v{VT2}, v{reg+r}, v{reg+r+1}'); r += 2
    if r < nregs: a(f'v_max_u32 v{VT2}, v{VT2}, v{reg+r}')
    a(f'v_cmp_eq_u32 vcc, -1, v{VT2}')
    a('s_cmp_lg_u64 vcc, 0')
def check_acc(u, p, reg, nregs, acc, tag):
    empty_test(reg, nregs)
    a.raw(f'    s_cbranch_scc1 L_GC{tag}_{u}_{p}')
    acc(p)
    a(f's_bitset1_b32 s42, {p}')
    a.label(f'L_GC{tag}_{u}_{p}', pad=False)
def gather(vaddr, off_sgpr, extract, load, acc, reg, nld=1):
    uid[0] += 1; u = uid[0]
    n = 16; full = 0xffff
    a('s_mov_b32 s3, 0')
    a('s_mov_b32 s42, 0')
    a('s_mov_b32 s43, 0')
    a.label(f'L_GA_{u}')
    a('s_andn2_b32 s7, s43, s42')
    a(f's_cmp_eq_u32 s7, {full}')
    a(f's_cbranch_scc1 L_GF_{u}')
    a(f's_cmp_eq_u32 s43, {full}')
    a(f's_cbranch_scc1 L_GNP_{u}')
    a(f'buffer_load_dword v{VT1}, v{vaddr}, {R(SWS)}, s{off_sgpr} offen sc1')
    a.label(f'L_GNP_{u}')
    a('s_cmp_eq_u32 s7, 0')
    a(f's_cbranch_scc1 L_GNL_{u}')
    for p in range(n):
        a(f's_bitcmp1_b32 s7, {p}')
        a(f's_cbranch_scc0 L_GK_{u}_{p}')
        load(p)
        a.label(f'L_GK_{u}_{p}', pad=False)
    a.label(f'L_GNL_{u}')
    a('s_waitcnt vmcnt(0)')
    a(f'v_cmp_eq_u32 vcc, s{S_NONCE}, v{VT1}')
    extract()
    a('s_or_b32 s43, s43, s4')
    a('s_cmp_eq_u32 s7, 0')
    a(f's_cbranch_scc1 L_GNC_{u}')
    for p in range(n):
        a.raw(f'    s_bitcmp1_b32 s7, {p}')
        a.raw(f'    s_cbranch_scc0 L_GCL_{u}_{p}')
        check_acc(u, p, reg(p), 4 * nld, acc, 'L')
    a.label(f'L_GNC_{u}', pad=False)
    a(f's_cmp_eq_u32 s42, {full}')
    a(f's_cbranch_scc1 L_GAX_{u}')
    a('s_add_u32 s3, s3, 1')
    a(f's_cmp_lt_u32 s3, {SPIN}')
    a(f's_cbranch_scc1 L_GA_{u}')
    a(f's_branch L_GAX_{u}')
    a.label(f'L_GF_{u}')
    AHEAD = 6
    for p in range(n + AHEAD):
        if p < n: load(p)
        if p >= AHEAD:
            q = p - AHEAD
            a(f's_waitcnt vmcnt({(min(n - 1, p) - q) * nld})')
            check_acc(u, q, reg(q), 4 * nld, acc, 'F')
    a(f's_branch L_GNC_{u}')
    a.label(f'L_GAX_{u}')
    a('s_nop 7')

def o_offsets(dst_o, dst_f):
    a(f's_lshl_b32 s53, s{S_RB}, 1')
    a(f's_add_u32 s53, s53, s{S_PI}')
    a('s_lshl_b32 s53, s53, 1')
    a(f's_add_u32 s53, s53, s{S_HH}')
    a(f's_lshl_b32 s54, s{S_HP}, 1')
    a(f's_add_u32 s54, s54, s{S_J}')
    a(f's_lshl_b32 s{dst_o}, s53, 5')
    a(f's_add_u32 s{dst_o}, s{dst_o}, s54')
    a(f's_lshl_b32 s{dst_o}, s{dst_o}, 10')
    a(f's_lshl_b32 s{dst_f}, s53, 8')
    a('s_lshl_b32 s54, s54, 2')
    a(f's_add_u32 s{dst_f}, s{dst_f}, s54')
    a(f's_add_u32 s{dst_f}, s{dst_f}, {WS_FL + 64*256}')

def hedgehog(xp, WP, PK, ST, SUM, E, EP, mid=None):
    for t in range(2):
        for ft in range(2):
            a(f'v_mfma_f32_16x16x32_bf16 {vr(PK+8*t+4*ft,4)}, {vr(WP+4*ft,4)}, {vr(xp+4*t,4)}, 0')
    for t in range(2):
        s = PK + 8 * t
        for n, d in (('', ST + t), ('-', ST + 2 + t)):
            a(f'v_max3_f32 v{d}, {n}v{s}, {n}v{s+1}, {n}v{s+2}')
            a(f'v_max3_f32 v{d}, v{d}, {n}v{s+3}, {n}v{s+4}')
            a(f'v_max3_f32 v{d}, v{d}, {n}v{s+5}, {n}v{s+6}')
            a(f'v_max_f32_e64 v{d}, v{d}, {n}v{s+7}')
    xlane4('v_max_f32', [ST, ST + 1, ST + 2, ST + 3])
    for q in range(4):
        a(f'v_mul_f32_e64 v{ST+q}, -s90, v{ST+q}')
        a(f'v_cndmask_b32_e64 v{ST+4+q}, v{ST+q}, v10, s[{M48}:{M48+1}]')
    for sg in range(2):
        for t in range(2):
            for ft in range(2):
                for r in range(4):
                    p = PK + 8 * t + 4 * ft + r
                    a(f'v_fma_f32 v{E+16*sg+8*t+4*ft+r}, {"-" if sg else ""}v{p}, s90, v{ST+4*ft+2*sg+t}')
            for r in range(8):
                a(f'v_exp_f32 v{E+16*sg+8*t+r}, v{E+16*sg+8*t+r}')
            q = 2 * sg + t
            cvt4(EP + 4 * q, E + 8 * q, E + 8 * q + 4)
            a(f'v_mfma_f32_16x16x32_bf16 {vr(SUM+4*q,4)}, {vr(ONES,4)}, {vr(EP+4*q,4)}, 0')
        if mid and (1 + sg) in mid: mid[1 + sg]()
    for q in range(4):
        a(f'v_rcp_f32 v{SUM+4*q}, v{SUM+4*q}')
    for q in range(4):
        for r in range(0, 8, 2):
            a(f'v_pk_mul_f32 {vr(E+8*q+r,2)}, {vr(E+8*q+r,2)}, {vr(SUM+4*q,2)} op_sel_hi:[1,0]')
        cvt4(EP + 4 * q, E + 8 * q, E + 8 * q + 4)
        if mid and 3 in mid: mid[3](q)

X0, X1, WF, QACC, QWP = 16, 36, 56, 88, 232
A_Q, A_K, A_V, B_Q = QACC, QACC + 32, QACC + 72, QACC + 112
MC = [88, 100, 56, 58]
def aq_scalars():
    common_consts(L_XQ, 14)
    o_offsets(96, 97)
    a('s_lshr_b32 s40, s96, 14')
    a('s_lshl_b32 s40, s40, 8')
    a(f's_add_u32 s40, s40, {WS_G}')
    a(f's_lshl_b32 s41, s{S_HP}, 1')
    a(f's_add_u32 s41, s41, s{S_J}')
    a('s_lshl_b32 s41, s41, 12')
    a(f's_add_u32 s41, s41, {WS_KVR}')
    a(f's_lshl_b32 s53, s{S_RB}, 8')
    a(f's_lshl_b32 s54, s{S_HP}, 8')
    a('s_add_u32 s54, s54, 4096')
    a('v_mov_b32 v249, s53')
    a('v_mov_b32 v248, s54')
    a('v_cmp_lt_u32 vcc, 15, v0')
    a('v_cndmask_b32 v249, v249, v248, vcc')
    a('v_lshl_add_u32 v249, v1, 2, v249')
    a(f's_mov_b32 s38, {WS_FL + 192*256}')
    a(f's_lshl_b32 s39, 1, s{S_PI}')
    a(f's_lshl_b32 s53, s{S_J}, 1')
    a('s_add_u32 s53, s53, 16')
    a('s_lshl_b32 s53, 3, s53')
    a('s_or_b32 s39, s39, s53')
    a(f's_mov_b32 s91, {f2u(1e-6):#x}')
a(f's_cmp_eq_u32 s{S_HH}, 0')
a('s_cbranch_scc1 L_AQ_COMP')
def aql_post():
    phi_loads(100)
    aq_scalars()
    nonce_prefetch()
    for r in range(4): a(f'v_mov_b32 v{240+r}, -1')
    for br in range(2):
        a(f's_add_u32 s53, s96, {(br*WS_OB - 32768) & 0xffffffff}')
        for t in range(4):
            a(f'buffer_store_dwordx4 v[240:243], v11, {R(SWS)}, s53 offen sc1')
            a('s_add_u32 s53, s53, 16384')
def aql_mid():
    a('s_waitcnt vmcnt(0)')
    wp_pack(100, QWP)
    nonce_resolve()
WL_AQ = [(SWB, 0), (SWA, 0), (SWA, 1), (SWA, 2)]
loader_loop('Q', True, SLOT_Q, WL_AQ, False, aql_post, 25, aql_mid)
QP, KP, VP, QXP = 16, 24, 36, 48
a(f'buffer_load_dword v{VT1}, v249, {R(SWS)}, s38 offen sc1')
a('s_barrier')
for n in range(10):
    a(f'ds_read_b128 {vr(QP+4*n,4)}, v251 offset:{n*1024}')
a('s_branch L_AQ_EPI')
a.label('L_AQ_COMP')
a('s_and_b32 s53, s2, 127')
a('s_mul_i32 s53, s53, 3136')
a(f's_lshl_b32 s54, s{S_WAVE}, 10')
a('s_add_u32 s53, s53, s54')
a(f'buffer_load_dwordx4 v[244:247], v11, {R(SWOA)}, s53 offen')
phi_loads(24)
aq_scalars()
frag_addr_setup(18432, 9216)
a('v_or_b32 v16, 8, v1')
a('v_lshrrev_b32 v6, 1, v16')
a('v_xor_b32 v6, v2, v6')
a('v_lshlrev_b32 v6, 4, v6')
a('v_and_b32 v16, 7, v16')
a('v_lshl_add_u32 v6, v16, 7, v6')
a(f's_mul_i32 s53, s{S_PI}, 9216')
a('v_add_u32 v6, s53, v6')
a('v_xor_b32 v7, 64, v6')
for r in range(QACC, QACC + 144): a(f'v_mov_b32 v{r}, 0')
a('s_waitcnt vmcnt(0)')
wp_pack(24, QWP)
def xreads(X, ks):
    L = [f'ds_read_b128 {vr(X+4*t,4)}, v{4+ks} offset:{1024 + t*2048}' for t in range(4)]
    L.append(f'ds_read_b128 {vr(X+16,4)}, v{6+ks}')
    return L
def wreads(b, ks):
    return [f'ds_read_b64_tr_b16 {vr(WF+(b*2+dt)*4+h2*2,2)}, v{8+dt} offset:{b*8192+(32*ks+4*h2)*128}' for dt in range(2) for h2 in range(2)]
def blk(b, X):
    XX = lambda t: vr(X + 4 * t, 4) if t >= 0 else vr(X + 16, 4)
    W = lambda dt: vr(WF + (b * 2 + dt) * 4, 4)
    L = []
    if b < 2:
        base = B_Q if b == 0 else A_Q
        for t in range(4):
            for dt in range(2):
                c = vr(base + (t * 2 + dt) * 4, 4); L.append(f'v_mfma_f32_16x16x32_bf16 {c}, {W(dt)}, {XX(t)}, {c}')
    else:
        base = A_K if b == 2 else A_V
        for t in range(-1, 4):
            for dt in range(2):
                c = vr(base + ((t + 1) * 2 + dt) * 4, 4)
                L.append(f'v_mfma_f32_16x16x32_bf16 {c}, {W(dt)}, {XX(t)}, {c}' if b == 2 else f'v_mfma_f32_16x16x32_bf16 {c}, {XX(t)}, {W(dt)}, {c}')
    return L
LQ = []
def lissue(tag, ins):
    a(ins); LQ.append(tag)
def lwait(tags):
    idx = max([i for i, t in enumerate(LQ) if t in tags], default=-1)
    if idx < 0: return
    n = len(LQ) - 1 - idx
    a(f's_waitcnt lgkmcnt({min(n, 15)})')
    del LQ[:len(LQ) - min(n, 15)]
def kstep(cur, Xc, Xn, ksn, pend, flush):
    for b in range(4):
        q = []
        if b == 0:
            q += [(f'w3_{cur}', r) for r in pend] + [(f'x_{cur+1}', r) for r in xreads(Xn, ksn)]
        else:
            q += [(f'w{b-1}_{cur+1}', r) for r in wreads(b - 1, ksn)]
        lwait({f'x_{cur}', f'w{b}_{cur}'})
        M = blk(b, Xc)
        for n, m in enumerate(M):
            a(m)
            k0 = (n * len(q)) // min(len(M), len(q)) if n < len(q) else None
            if n < len(q): lissue(*q[n])
        for t in q[len(M):]: lissue(*t)
    if flush:
        for r in wreads(3, ksn): lissue(f'w3_{cur+1}', r)
a(f's_mov_b32 s68, {SLOT_Q}')
a(f's_mov_b32 s69, {-2*SLOT_Q & 0xffffffff}')
a('s_mov_b32 s67, 0')
a('s_mov_b32 s70, 0')
a('s_barrier')
for r in xreads(X0, 0): lissue('x_0', r)
for b in range(3):
    for r in wreads(b, 0): lissue(f'w{b}_0', r)
a.label('L_CP_Q')
kstep(0, X0, X1, 1, wreads(3, 0), True)
a('s_add_u32 s70, s70, 1')
a('s_cmp_eq_u32 s70, 3')
a('s_cselect_b32 s53, s69, s68')
a('s_cselect_b32 s70, 0, s70')
a('s_waitcnt lgkmcnt(0)')
LQ.clear()
for r in (4, 5, 6, 7, 8, 9): a(f'v_add_u32 v{r}, s53, v{r}')
a('s_barrier')
kstep(1, X1, X0, 0, [], False)
assert [t.split('_')[0] for t in LQ] == ['x'] * 5 + ['w0'] * 4 + ['w1'] * 4 + ['w2'] * 4, LQ
a('s_add_u32 s67, s67, 1')
a('s_cmp_lt_u32 s67, 7')
a('s_cbranch_scc1 L_CP_Q')
a('s_waitcnt lgkmcnt(0)')
stamp(1)
a('s_waitcnt vmcnt(0)')
nonce_prefetch()
def packA(q, k, v, b, t0):
    for t in range(2):
        cvt4(q + 4 * t, A_Q + (t0 + t) * 8, A_Q + (t0 + t) * 8 + 4)
        zero_pad(q + 4 * t)
    for t in range(3):
        cvt4(k + 4 * t, A_K + (t0 + t) * 8, A_K + (t0 + t) * 8 + 4)
    for t in range(3):
        for dt in range(2):
            s = A_V + ((t0 + t) * 2 + dt) * 4
            a(f'v_cvt_pk_bf16_f32 v{v+dt*6+2*t}, v{s}, v{s+1}')
            a(f'v_cvt_pk_bf16_f32 v{v+dt*6+2*t+1}, v{s+2}, v{s+3}')
    for t in range(2):
        cvt4(b + 4 * t, B_Q + (t0 + t) * 8, B_Q + (t0 + t) * 8 + 4)
packA(QP, KP, VP, QXP, 2)
for n in range(10):
    a(f'ds_write_b128 v251, {vr(QP+4*n,4)} offset:{n*1024}')
a('s_waitcnt lgkmcnt(0)')
a('s_barrier')
packA(QP, KP, VP, QXP, 0)
a('s_waitcnt vmcnt(0)')
nonce_resolve()
a(f'buffer_load_dword v{VT1}, v249, {R(SWS)}, s38 offen sc1')
a.label('L_AQ_EPI')
set_flag(97)
GV = 56
MP = [56, 58, 60, 62]; MC = [64, 66, 68, 70]; MP0 = [36, 42, 86, 100]
a('v_lshlrev_b32 v3, 2, v2')
a('v_add_u32 v4, 9, v1')
for r in range(4):
    a(f'v_add_u32 v5, {r}, v3')
    a(f'v_cmp_ge_u32 s[{MP[r]}:{MP[r]+1}], v5, v4')
    a('v_sub_u32 v6, v1, v5')
    a(f'v_cmp_gt_u32 s[{MC[r]}:{MC[r]+1}], 8, v6')
a(f's_or_b32 s53, s{S_RB}, s{S_HH}')
a('s_cmp_eq_u32 s53, 0')
for r in range(4):
    a(f's_cselect_b64 s[{MP0[r]}:{MP0[r]+1}], 0, s[{MP[r]}:{MP[r]+1}]')
a('s_waitcnt lgkmcnt(0)')
SC = 88
for t in range(2):
    a(f'v_mfma_f32_16x16x32_bf16 {vr(SC+8*t,4)}, {vr(KP+4*t,4)}, {vr(QP+4*t,4)}, 0')
    a(f'v_mfma_f32_16x16x32_bf16 {vr(SC+8*t+4,4)}, {vr(KP+4*(t+1),4)}, {vr(QP+4*t,4)}, 0')
MX = 104
for t in range(2):
    for r in range(4):
        mp = (MP0 if t == 0 else MP)[r]
        a(f'v_cndmask_b32_e64 v{SC+8*t+r}, v10, v{SC+8*t+r}, s[{mp}:{mp+1}]')
        a(f'v_cndmask_b32_e64 v{SC+8*t+4+r}, v10, v{SC+8*t+4+r}, s[{MC[r]}:{MC[r]+1}]')
    s = SC + 8 * t
    a(f'v_max3_f32 v{MX+t}, v{s}, v{s+1}, v{s+2}')
    a(f'v_max3_f32 v{MX+t}, v{MX+t}, v{s+3}, v{s+4}')
    a(f'v_max3_f32 v{MX+t}, v{MX+t}, v{s+5}, v{s+6}')
    a(f'v_max_f32 v{MX+t}, v{MX+t}, v{s+7}')
xlane2('v_max_f32', MX, MX + 1)
poll_mask(249, 38, 39)
a('v_lshlrev_b32 v3, 2, v0')
for t in range(2):
    a(f'buffer_load_dword v{GV+t}, v3, {R(SWS)}, s40 offen offset:{t*256} sc1')
a(f's_mov_b32 s88, {f2u(28 ** -0.5 * LOG2E):#x}')
PP = 108
OO = 116
for t in range(2):
    a(f'v_mul_f32 v{MX+t}, s88, v{MX+t}')
    for r in range(8):
        a(f'v_fma_f32 v{SC+8*t+r}, v{SC+8*t+r}, s88, -v{MX+t}')
    for r in range(8):
        a(f'v_exp_f32 v{SC+8*t+r}, v{SC+8*t+r}')
    cvt4(PP + 4 * t, SC + 8 * t, SC + 8 * t + 4)
    a(f'v_mfma_f32_16x16x32_bf16 {vr(OO+12*t+8,4)}, {vr(ONES,4)}, {vr(PP+4*t,4)}, 0')
    for dt in range(2):
        a(f'v_mfma_f32_16x16x32_bf16 {vr(OO+12*t+4*dt,4)}, {vr(VP+dt*6+2*t,4)}, {vr(PP+4*t,4)}, 0')
a('s_mov_b32 s53, s96')
a('s_waitcnt vmcnt(0)')
for t in range(2):
    o = OO + 12 * t
    a(f'v_rcp_f32 v{o+8}, v{o+8}')
    a(f'v_mul_f32 v{o+8}, v{o+8}, v{GV+t}')
    for r in range(0, 8, 2):
        a(f'v_pk_mul_f32 {vr(o+r,2)}, {vr(o+r,2)}, {vr(o+8,2)} op_sel_hi:[1,0]')
    cvt4(140 + 4 * t, o, o + 4)
    zero_pad(140 + 4 * t)
    sanitize(140 + 4 * t)
    a(f'buffer_store_dwordx4 {vr(140+4*t,4)}, v11, {R(SWS)}, s53 offen sc1')
    a('s_add_u32 s53, s53, 16384')
stamp(15)
PK, ST, SUM, E, EP = 16, 32, 60, 200, 76
def kvloads():
    for q in range(4):
        a(f'buffer_load_dwordx4 {vr(PK+4*q,4)}, v11, {R(SWS)}, s41 offen offset:{q*1024} sc1')
def kvfetch():
    kvloads()
    a('s_add_u32 s53, s97, 16384')
    set_flag(53)
hedgehog(QXP, QWP, PK, ST, SUM, E, EP, {2: kvfetch})
stamp(3)
KF = PK
OB = 200
a('s_mov_b32 s3, 0')
a.label('L_KVW')
a('s_waitcnt vmcnt(0)')
empty_test(KF, 16)
a('s_cbranch_scc0 L_KVOK')
kvloads()
a('s_add_u32 s3, s3, 1')
a(f's_cmp_lt_u32 s3, {SPIN}')
a('s_cbranch_scc1 L_KVW')
a('s_waitcnt vmcnt(0)')
a.label('L_KVOK')
stamp(2)
for t in range(2):
    for dt in range(2):
        c = vr(OB + (t * 2 + dt) * 4, 4)
        a(f'v_mfma_f32_16x16x32_bf16 {c}, {vr(KF+dt*4,4)}, {vr(EP+t*4,4)}, 0')
for t in range(2):
    for dt in (1, 0):
        c = vr(OB + (t * 2 + dt) * 4, 4)
        a(f'v_mfma_f32_16x16x32_bf16 {c}, {vr(KF+(2+dt)*4,4)}, {vr(EP+(2+t)*4,4)}, {c}')
for t in range(2): a(f'v_sub_f32 v{GV+2+t}, 1.0, v{GV+t}')
a(f's_add_u32 s53, s96, {WS_OB}')
a(f'v_mov_b32 v216, v{OB+4}')
a(f'v_mov_b32 v217, v{OB+12}')
a('v_permlane32_swap_b32 v216, v217')
a('v_mov_b32 v216, v217')
a('v_permlane16_swap_b32 v217, v216')
a('v_add_f32 v216, s91, v216')
a('v_rcp_f32 v216, v216')
a('v_mov_b32 v217, v216')
a('v_permlane32_swap_b32 v216, v217')
for t in range(2):
    o = OB + 8 * t
    a(f'v_mul_f32 v{218+2*t}, v{216+t}, v{GV+2+t}')
    for r in range(0, 8, 2): a(f'v_pk_mul_f32 {vr(o+r,2)}, {vr(o+r,2)}, {vr(218+2*t,2)} op_sel_hi:[1,0]')
    cvt4(224 + 4 * t, o, o + 4)
    zero_pad(224 + 4 * t)
    sanitize(224 + 4 * t)
    a(f'buffer_store_dwordx4 {vr(224+4*t,4)}, v11, {R(SWS)}, s53 offen sc1')
    a('s_add_u32 s53, s53, 16384')
stamp(5)
a('s_branch L_END')

a.label('L_KV')
WP = 240
KXP = 24
F0, F1, ACC = 24, 68, 112
def kv_setup():
    phi_loads(224)
    common_consts(L_XK, 11)
    a('v_cmp_eq_u32 s[88:89], 12, v1')
    a(f's_lshl_b32 s36, s{S_HP}, 4')
    a(f's_add_u32 s36, s36, s{S_RB}')
    a('s_lshl_b32 s36, s36, 3')
    a(f's_add_u32 s36, s36, s{S_WAVE}')
    a('s_lshl_b32 s36, s36, 10')
    a(f's_add_u32 s36, s36, {WS_KVP}')
    a(f's_lshl_b32 s37, s{S_HP}, 3')
    a(f's_add_u32 s37, s37, s{S_WAVE}')
    a('s_lshl_b32 s37, s37, 8')
    a(f's_lshl_b32 s54, s{S_RB}, 2')
    a('s_add_u32 s37, s37, s54')
    a(f's_add_u32 s37, s37, {WS_FL}')
    a(f'v_lshrrev_b32 v248, 3, v0')
    a(f'v_and_b32 v{VT2}, 6, v248')
    a(f'v_mul_u32_u24 v248, 896, v248')
    a(f'v_xor_b32 v{VT2}, v0, v{VT2}')
    a(f'v_and_b32 v{VT2}, 7, v{VT2}')
    a(f'v_lshl_add_u32 v248, v{VT2}, 4, v248')
    a(f's_mul_i32 s53, s{S_WAVE}, {7*7168}')
    a(f's_lshl_b32 s54, s{S_NB}, 7')
    a('s_add_u32 s53, s53, s54')
    a('v_add_u32 v248, s53, v248')
    a(f's_mul_i32 s44, s{S_WAVE}, 7168')
    a('s_and_b32 s4, s2, 7')
    a(f's_and_b32 s53, s{S_WORK}, 1')
    a('s_lshl_b32 s53, s53, 1')
    a(f's_add_u32 s53, s53, s{S_J}')
    a('s_lshr_b32 s5, s53, 1')
    a('s_and_b32 s6, s53, 1')
    a('s_lshl_b32 s38, s6, 2')
    a('s_add_u32 s38, s38, s5')
    a('s_lshl_b32 s39, s4, 17')
    a('s_lshl_b32 s40, s38, 10')
    a('s_add_u32 s39, s39, s40')
    a(f's_add_u32 s39, s39, {WS_KVP}')
    a('s_lshl_b32 s40, s4, 3')
    a('s_add_u32 s38, s38, s40')
    a('s_lshl_b32 s38, s38, 8')
    a(f's_add_u32 s38, s38, {WS_FL}')
    a('s_lshl_b32 s40, s4, 1')
    a('s_add_u32 s40, s40, s5')
    a('s_lshl_b32 s40, s40, 12')
    a('s_lshl_b32 s41, s6, 11')
    a('s_add_u32 s40, s40, s41')
    a(f's_add_u32 s40, s40, {WS_KVR}')
    a('s_lshl_b32 s41, s4, 8')
    a('s_lshl_b32 s53, s53, 2')
    a('s_add_u32 s41, s41, s53')
    a(f's_add_u32 s41, s41, {WS_FL + 208*256}')
def kv_late():
    a('s_waitcnt vmcnt(0)')
    wp_pack(224, WP)
    a(f's_lshr_b32 s53, s{S_WAVE}, 1')
    a(f's_lshl_b32 s54, s{S_J}, 13')
    a(f's_add_u32 s54, s54, {L_VF}')
    a('v_add_u32 v21, s54, v11')
    a(f's_lshl_b32 s62, s{S_PI}, 11')
    a('v_add_u32 v22, s62, v21')
    a('v_lshrrev_b32 v6, 1, v1')
    a('v_and_b32 v6, 3, v6')
    a('v_lshlrev_b32 v6, 5, v6')
    a('v_lshl_add_u32 v6, v2, 3, v6')
    a('v_lshl_add_u32 v16, v1, 7, v6')
    a(f's_lshl_b32 s54, s{S_J}, 14')
    a(f's_add_u32 s54, s54, {L_PT}')
    a('s_lshl_b32 s62, s53, 12')
    a('s_add_u32 s62, s62, s54')
    a('v_add_u32 v16, s62, v16')
    for Ft in range(1, 4):
        a(f'v_xor_b32 v{16+Ft}, {Ft*32}, v16')
    a('v_lshrrev_b32 v6, 2, v1')
    a('v_lshl_add_u32 v6, v2, 2, v6')
    a('v_lshrrev_b32 v7, 1, v6')
    a('v_and_b32 v7, 3, v7')
    a('v_xor_b32 v7, s53, v7')
    a('v_lshlrev_b32 v7, 5, v7')
    a('v_lshl_add_u32 v20, v6, 7, v7')
    a('v_and_b32 v7, 3, v0')
    a('v_lshl_add_u32 v20, v7, 3, v20')
    a('v_add_u32 v20, s54, v20')
a(f's_cmp_eq_u32 s{S_HH}, 0')
a('s_cbranch_scc1 L_KV_COMP')
def kvl_post():
    kv_setup()
    nonce_prefetch()
    for r in range(4): a(f'v_mov_b32 v{100+r}, -1')
    a('s_sub_u32 s53, s36, 4096')
    a(f'buffer_store_dwordx4 v[100:103], v11, {R(SWS)}, s36 offen sc1')
    a(f'buffer_store_dwordx4 v[100:103], v11, {R(SWS)}, s53 offen sc1')
    a(f's_cmp_lt_u32 s{S_WORK}, 14')
    a('s_cbranch_scc1 L_NC_K')
    a(f's_cmp_ge_u32 s{S_WAVE}, 6')
    a('s_cbranch_scc1 L_NC_K')
    a(f'buffer_store_dwordx4 v[100:103], v11, {R(SWS)}, s40 offen sc1')
    a(f'buffer_store_dwordx4 v[100:103], v11, {R(SWS)}, s40 offen offset:1024 sc1')
    a.label('L_NC_K')
def kvl_mid():
    kv_late()
    nonce_resolve()
    set_flag(37)
    a('s_sub_u32 s53, s37, 1024')
    set_flag(53)
    a(f's_cmp_lt_u32 s{S_WORK}, 14')
    a('s_cbranch_scc1 L_NKRF')
    a(f's_cmp_ge_u32 s{S_WAVE}, 6')
    a('s_cbranch_scc1 L_NKRF')
    set_flag(41)
    a.label('L_NKRF')
loader_loop('K', False, SLOT_K, [(SWB, 1), (SWB, 2)], True, kvl_post, 19, kvl_mid)
a('s_barrier')
a(f'ds_read_b128 {vr(KXP,4)}, v251')
a(f'ds_read_b128 {vr(KXP+4,4)}, v251 offset:1024')
a('s_waitcnt lgkmcnt(0)')
a('s_branch L_KV_EPI')
a.label('L_KV_COMP')
a('s_cmp_lg_u32 s2, 255')
a('s_cbranch_scc1 L_NOSCAN')
a(f's_cmp_lg_u32 s{S_WAVE}, 3')
a('s_cbranch_scc1 L_NOSCAN')
a('v_lshrrev_b32 v3, 2, v0')
a('v_lshlrev_b32 v3, 8, v3')
a('v_and_b32 v4, 3, v0')
a('v_lshl_add_u32 v3, v4, 4, v3')
a(f's_mov_b32 s53, {WS_FL}')
NS = NGRP // 16
for n in range(NS):
    a(f'buffer_load_dwordx4 {vr(100+4*n,4)}, v3, {R(SWS)}, s53 offen sc1')
    a('s_add_u32 s53, s53, 4096')
a('s_memrealtime s[88:89]')
a('s_waitcnt vmcnt(0) lgkmcnt(0)')
a('s_or_b32 s88, s88, 1')
a.label('L_SCAN')
a('s_mov_b64 s[90:91], 0')
for n in range(4 * NS):
    a(f'v_cmp_eq_u32 vcc, s88, v{100+n}')
    a('s_or_b64 s[90:91], s[90:91], vcc')
a('s_cmp_eq_u64 s[90:91], 0')
a('s_cbranch_scc1 L_SCANOK')
a('s_add_u32 s88, s88, 2')
a('s_branch L_SCAN')
a.label('L_SCANOK')
a('v_mov_b32 v3, 0')
a('v_mov_b32 v5, s88')
a('s_mov_b64 exec, 1')
a(f'buffer_store_dword v5, v3, {R(SDBG)}, 0 offen sc1')
a('s_mov_b64 exec, -1')
a.label('L_NOSCAN')
a('s_and_b32 s53, s2, 127')
a('s_mul_i32 s53, s53, 3136')
a(f's_lshl_b32 s54, s{S_WAVE}, 10')
a('s_add_u32 s53, s53, s54')
a(f'buffer_load_dwordx4 v[200:203], v11, {R(SWOB)}, s53 offen')
kv_setup()
frag_addr_setup(16384, 8192)
kv_late()
a(f's_lshl_b32 s53, s{S_ROT}, 7')
a(f's_add_u32 s53, s53, {L_GATE}')
a('v_lshlrev_b32 v3, 4, v2')
a('v_add_u32 v3, s53, v3')
a(f's_mov_b32 s71, s{S_ROT}')
for r in range(ACC, ACC + 80): a(f'v_mov_b32 v{r}, 0')
def readsK(F, ks):
    L = [f'ds_read_b128 {vr(F+4*t,4)}, v{4+ks} offset:{t*2048}' for t in range(4)]
    for b in range(2):
        for dt in range(2):
            for h2 in range(2):
                L.append(f'ds_read_b64_tr_b16 {vr(F+20+(b*2+dt)*4+h2*2,2)}, v{8+dt} offset:{b*8192+(32*ks+4*h2)*128}')
    L.append(f'ds_read_b128 {vr(F+16,4)}, v3 offset:{ks*64}')
    return L
def mfmasK(F):
    L = []
    X = lambda t: vr(F + 4 * t, 4)
    W = lambda b, dt: vr(F + 20 + (b * 2 + dt) * 4, 4)
    for t in (2, 3, 0, 1):
        for dt in range(2):
            c = vr(ACC + (t * 2 + dt) * 4, 4); L.append(f'v_mfma_f32_16x16x32_bf16 {c}, {W(0,dt)}, {X(t)}, {c}')
    for t in range(4):
        for dt in range(2):
            c = vr(ACC + 32 + (t * 2 + dt) * 4, 4); L.append(f'v_mfma_f32_16x16x32_bf16 {c}, {X(t)}, {W(1,dt)}, {c}')
    for t in range(4):
        c = vr(ACC + 64 + t * 4, 4); L.append(f'v_mfma_f32_16x16x32_bf16 {c}, {vr(F+16,4)}, {X(t)}, {c}')
    return L
def interleave(M, Rr):
    for n, m in enumerate(M):
        a(m)
        if n < len(Rr): a(Rr[n])
a(f's_mov_b32 s68, {SLOT_K}')
a(f's_mov_b32 s69, {-2*SLOT_K & 0xffffffff}')
a('s_movk_i32 s60, 128')
a('s_movk_i32 s61, -768')
a('s_mov_b32 s67, 0')
a('s_mov_b32 s70, 0')
a('s_barrier')
for r in readsK(F0, 0): a(r)
a.label('L_CP_K')
a('s_waitcnt lgkmcnt(0)')
interleave(mfmasK(F0), readsK(F1, 1))
a('s_add_u32 s70, s70, 1')
a('s_cmp_eq_u32 s70, 3')
a('s_cselect_b32 s53, s69, s68')
a('s_cselect_b32 s70, 0, s70')
a('s_waitcnt lgkmcnt(0)')
for r in (4, 5, 8, 9): a(f'v_add_u32 v{r}, s53, v{r}')
a('s_add_u32 s71, s71, 1')
a('s_cmp_eq_u32 s71, 7')
a('s_cselect_b32 s53, s61, s60')
a('s_cselect_b32 s71, 0, s71')
a('v_add_u32 v3, s53, v3')
a('s_barrier')
interleave(mfmasK(F1), readsK(F0, 0))
a('s_add_u32 s67, s67, 1')
a('s_cmp_lt_u32 s67, 7')
a('s_cbranch_scc1 L_CP_K')
a('s_waitcnt lgkmcnt(0)')
stamp(1)
nonce_prefetch()
for t in range(2):
    cvt4(44 + 4 * t, ACC + (2 + t) * 8, ACC + (2 + t) * 8 + 4)
    a(f'ds_write_b128 v251, {vr(44+4*t,4)} offset:{t*1024}')
for t in range(2):
    cvt4(KXP + 4 * t, ACC + t * 8, ACC + t * 8 + 4)
a('s_waitcnt lgkmcnt(0)')
a('s_barrier')
for hh in range(2):
    for dt in range(2):
        d = 44 + (hh * 2 + dt) * 4
        cvt4(d, ACC + 32 + ((2 * hh) * 2 + dt) * 4, ACC + 32 + ((2 * hh + 1) * 2 + dt) * 4)
        if dt:
            for r in range(4):
                a(f'v_cndmask_b32_e64 v{d+r}, v{d+r}, v{ONES}, s[88:89]')
        a(f'ds_write_b128 v22, {vr(d,4)} offset:{hh*4096 + dt*1024}')
a(f's_or_b32 s53, s{S_HP}, s{S_J}')
a('s_cmp_lg_u32 s53, 0')
a('s_cbranch_scc1 L_KV_EPI')
a(f's_lshl_b32 s53, s{S_RB}, 1')
a(f's_add_u32 s53, s53, s{S_PI}')
a('s_lshl_b32 s53, s53, 10')
a(f's_add_u32 s53, s53, {WS_G}')
a('v_lshlrev_b32 v3, 2, v0')
for t in range(4):
    gs = ACC + 64 + 4 * t
    a(f'v_mul_f32 v{gs}, s90, v{gs}')
    a(f'v_exp_f32 v{gs}, -v{gs}')
    a(f'v_add_f32 v{gs}, 1.0, v{gs}')
    a(f'v_rcp_f32 v{gs}, v{gs}')
    a(f'buffer_store_dword v{gs}, v3, {R(SWS)}, s53 offen offset:{t*256} sc1')
a.label('L_KV_EPI')
KPK, KST, KSUM, KE, KEP = 64, 80, 88, 104, 224
def ptwrite(q):
    sg, t = q >> 1, q & 1
    for ft in range(2):
        a(f'ds_write_b64 v{16+sg*2+ft}, {vr(KEP+q*4+2*ft,2)} offset:{t*2048}')
hedgehog(KXP, WP, KPK, KST, KSUM, KE, KEP, {3: ptwrite})
stamp(10)
a('s_waitcnt lgkmcnt(0)')
a('s_barrier')
ET, VG, KV = 136, 152, 184
for u in range(4):
    for hh in range(2):
        a(f'ds_read_b64_tr_b16 {vr(ET+4*u+2*hh,2)}, v20 offset:{(u*32+hh*16)*128}')
    for dt in range(2):
        a(f'ds_read_b128 {vr(VG+(u*2+dt)*4,4)}, v21 offset:{(u*2+dt)*1024}')
for u in range(4):
    a(f's_waitcnt lgkmcnt({4*(3-u)})')
    for dt in range(2):
        c = vr(KV + 4 * dt, 4)
        a(f'v_mfma_f32_16x16x32_bf16 {c}, {vr(ET+4*u,4)}, {vr(VG+(u*2+dt)*4,4)}, {c if u else 0}')
cvt4(192, KV, KV + 4)
sanitize(192)
a(f'buffer_store_dwordx4 v[192:195], v11, {R(SWS)}, s36 offen sc1')
stamp(12)
AC2, OF, WB = 24, 56, 120
a('v_lshrrev_b32 v3, 2, v1')
a('v_and_b32 v4, 3, v0')
a('v_lshl_add_u32 v5, v2, 2, v3')
a('v_lshlrev_b32 v5, 7, v5')
a('v_lshl_add_u32 v5, v4, 3, v5')
a(f's_mul_i32 s53, s{S_HH}, 28672')
a(f's_add_u32 s53, s53, {L_WO + 57344}')
a('v_add_u32 v5, s53, v5')
a('v_lshrrev_b32 v6, 1, v3')
a('v_lshl_add_u32 v6, v2, 1, v6')
for par in range(2):
    a(f'v_add_u32 v8, {2*par}, v6')
    a('v_and_b32 v8, 3, v8')
    for T in range(4):
        a(f'v_xor_b32 v9, {T}, v8')
        a(f'v_lshl_add_u32 v{16+par*4+T}, v9, 5, v5')
a(f's_and_b32 s54, s{S_WAVE}, 3')
a(f's_lshl_b32 s63, s{S_RB2}, 3')
a('s_add_u32 s63, s63, s54')
a('s_lshl_b32 s64, s63, 14')
a(f's_lshl_b32 s53, s{S_HH}, 13')
a('s_add_u32 s64, s64, s53')
a('s_lshr_b32 s65, s63, 1')
a('s_lshl_b32 s65, s65, 8')
a(f's_add_u32 s65, s65, {WS_FL + 64*256}')
a(f's_lshl_b32 s66, s{S_HH}, 3')
a('v_and_b32 v6, 1, v2')
a('v_lshlrev_b32 v6, 9, v6')
a('v_lshl_add_u32 v6, v1, 2, v6')
a('s_waitcnt vmcnt(1)')
nonce_resolve()
a(f's_or_b32 s53, s{S_HP}, s{S_J}')
a(f's_or_b32 s53, s53, s{S_HH}')
a('s_cmp_lg_u32 s53, 0')
a('s_cbranch_scc1 L_NOGF')
a(f's_lshl_b32 s53, s{S_RB}, 8')
a(f's_lshl_b32 s5, s{S_PI}, 2')
a('s_add_u32 s53, s53, s5')
a(f's_add_u32 s53, s53, {WS_FL + 192*256}')
set_flag(53)
a.label('L_NOGF')
stamp(2)
a(f's_cmp_lt_u32 s{S_WORK}, 14')
a('s_cbranch_scc1 L_NORED')
a(f's_cmp_ge_u32 s{S_WAVE}, 2')
a('s_cbranch_scc1 L_END')
PL, SEL, RS = 56, 184, 192
a('v_lshrrev_b32 v4, 2, v1')
a('v_cmp_eq_u32 vcc, v4, v2')
a('v_and_b32 v4, 3, v1')
a('v_and_b32 v5, 1, v4')
a('v_lshlrev_b32 v5, 4, v5')
a('v_mov_b32 v8, 0x3f80')
a('v_lshlrev_b32 v8, v5, v8')
a('v_cndmask_b32 v8, 0, v8, vcc')
a('v_cmp_gt_u32 vcc, 2, v4')
a(f'v_cndmask_b32 v{SEL}, 0, v8, vcc')
a(f'v_cndmask_b32 v{SEL+1}, v8, 0, vcc')
for r in (2, 3, 4, 5): a(f'v_mov_b32 v{SEL+r}, 0')
a(f'v_mov_b32 v{SEL+6}, v{SEL}')
a(f'v_mov_b32 v{SEL+7}, v{SEL+1}')
for r in range(16): a(f'v_mov_b32 v{RS+r}, 0')
def rextract():
    a('s_lshr_b32 s4, vcc_lo, 16')
    a('s_and_b32 s4, s4, vcc_lo')
def rload(p):
    a(f's_add_u32 s53, s39, {p*8192}')
    a(f'buffer_load_dwordx4 {vr(PL+8*p,4)}, v11, {R(SWS)}, s53 offen sc1')
    a(f'buffer_load_dwordx4 {vr(PL+8*p+4,4)}, v11, {R(SWS)}, s53 offen offset:2048 sc1')
def racc(p):
    for f in range(2):
        for dt in range(2):
            c = vr(RS + (dt * 2 + f) * 4, 4)
            a(f'v_mfma_f32_16x16x32_bf16 {c}, {vr(SEL+4*dt,4)}, {vr(PL+8*p+4*f,4)}, {c}')
gather(6, 38, rextract, rload, racc, lambda p: PL + 8 * p, nld=2)
for dt in range(2):
    cvt4(208 + 4 * dt, RS + dt * 8, RS + dt * 8 + 4)
    sanitize(208 + 4 * dt)
    a(f'buffer_store_dwordx4 {vr(208+4*dt,4)}, v11, {R(SWS)}, s40 offen offset:{dt*1024} sc1')
stamp(4)
a('s_branch L_END')
a.label('L_NORED')
for r in range(32): a(f'v_mov_b32 v{AC2+r}, 0')
for br in (0, 1):
    for n in range(7):
        a(f's_add_u32 m0, s44, {L_WO + (1-br)*57344 + n*1024}')
        a(f's_mov_b32 s5, {n*7168}')
        a(f'buffer_load_dwordx4 v248, {R(SWOA if br == 0 else SWOB)}, s5 offen lds')
a('s_waitcnt vmcnt(0)')
a('s_barrier')
stamp(11)
def wfrags():
    for h in range(8):
        for T in range(4):
            for sec in range(2):
                a(f'ds_read_b64_tr_b16 {vr(WB+(h*4+T)*4+2*sec,2)}, v{16+(h&1)*4+T} offset:{h*3584 + sec*2048}')
def oextract():
    a('s_lshr_b32 s4, vcc_lo, s66')
    a('s_lshr_b32 s5, s4, 8')
    a('s_and_b32 s4, s4, 0xff')
    a('s_and_b32 s5, s5, 0xff00')
    a('s_or_b32 s4, s4, s5')
    a('s_waitcnt lgkmcnt(0)')
def oload(p):
    a(f's_add_u32 s53, s64, {(p>>3)*65536 + (p&7)*1024}')
    a(f'buffer_load_dwordx4 {vr(OF+4*p,4)}, v11, {R(SWS)}, s53 offen sc1')
def oacc(p):
    for T in range(4):
        c = vr(AC2 + (p >> 3) * 16 + 4 * T, 4)
        a(f'v_mfma_f32_16x16x32_bf16 {c}, {vr(WB+((p&7)*4+T)*4,4)}, {vr(OF+4*p,4)}, {c}')
a('s_mov_b32 s67, 0')
a.label('L_P2_HALF')
wfrags()
gather(6, 65, oextract, oload, oacc, lambda p: OF + 4 * p)
a('s_cmp_eq_u32 s67, 1')
a('s_cbranch_scc1 L_P2_FIN')
stamp(7)
a('s_mov_b32 s67, 1')
for r in range(16, 24): a(f'v_subrev_u32 v{r}, 57344, v{r}')
a('s_add_u32 s65, s65, 16384')
a(f's_add_u32 s64, s64, {WS_OB}')
a('s_lshl_b32 s53, s54, 13')
a(f's_add_u32 s53, s53, {L_RED}')
a('v_add_u32 v3, s53, v11')
a(f's_lshl_b32 s62, s{S_RB2}, 7')
a('s_lshl_b32 s53, s54, 5')
a('s_add_u32 s62, s62, s53')
a(f's_add_u32 s62, s62, s{S_HH}')
a('s_mul_i32 s62, s62, 896')
a(f's_lshl_b32 s53, s{S_NB}, 7')
a('s_add_u32 s62, s62, s53')
a('v_mul_u32_u24 v5, 1792, v1')
a('v_lshl_add_u32 v5, v2, 3, v5')
a('s_branch L_P2_HALF')
a.label('L_P2_FIN')
stamp(8)
a(f's_cmp_eq_u32 s{S_HH}, 0')
a('s_cbranch_scc1 L_P2_K0')
for T in range(4): a(f'ds_write_b128 v3, {vr(AC2+4*T,4)} offset:{T*1024}')
a('s_waitcnt lgkmcnt(0)')
a('s_barrier')
for T in range(4): a(f'ds_read_b128 {vr(OF+4*T,4)}, v3 offset:{4096+T*1024}')
for r in range(16): a(f'v_mov_b32 v{AC2+r}, v{AC2+16+r}')
a('s_branch L_P2_ST')
a.label('L_P2_K0')
for T in range(4): a(f'ds_write_b128 v3, {vr(AC2+16+4*T,4)} offset:{4096+T*1024}')
a('s_waitcnt lgkmcnt(0)')
a('s_barrier')
for T in range(4): a(f'ds_read_b128 {vr(OF+4*T,4)}, v3 offset:{T*1024}')
a.label('L_P2_ST')
for T in range(4):
    a(f's_waitcnt lgkmcnt({3-T})')
    for r in range(0, 4, 2): a(f'v_pk_add_f32 {vr(AC2+4*T+r,2)}, {vr(AC2+4*T+r,2)}, {vr(OF+4*T+r,2)}')
    a(f'v_cvt_pk_bf16_f32 v{OF+16+2*T}, v{AC2+4*T}, v{AC2+4*T+1}')
    a(f'v_cvt_pk_bf16_f32 v{OF+17+2*T}, v{AC2+4*T+2}, v{AC2+4*T+3}')
    a(f'buffer_store_dwordx2 {vr(OF+16+2*T,2)}, v5, {R(SOUT)}, s62 offen offset:{32*T}')
a.label('L_END')
if STAMP:
    a('s_waitcnt vmcnt(0)')
    stamp(9)
    a('s_lshl_b32 s3, s2, 3')
    a(f's_add_u32 s3, s3, s{S_WAVE}')
    a('s_lshl_b32 s3, s3, 8')
    a(f's_add_u32 s3, s3, {WS_ST}')
    a('v_lshlrev_b32 v3, 2, v0')
    a(f'buffer_store_dword v250, v3, {R(SWS)}, s3 offen')
    a('s_waitcnt vmcnt(0)')
a.label('L_EXIT')
a('s_endpgm')

a.raw('.section .rodata,"a"')
a.raw('.p2align 6')
a.raw(f'.amdhsa_kernel {KN}')
a.raw('  .amdhsa_next_free_vgpr 256')
a.raw('  .amdhsa_next_free_sgpr 102')
a.raw('  .amdhsa_accum_offset 256')
a.raw('  .amdhsa_group_segment_fixed_size 0')
a.raw('  .amdhsa_kernarg_size 88')
a.raw('  .amdhsa_user_sgpr_count 2')
a.raw('  .amdhsa_user_sgpr_kernarg_segment_ptr 1')
a.raw('  .amdhsa_system_sgpr_workgroup_id_x 1')
a.raw('.end_amdhsa_kernel')
sys.stdout.write(a.text())
```
